```python
import torch

def _softmax(x, axis=-1):
    return torch.softmax(x, dim=axis)
def _gelu(x):
    return torch.nn.functional.gelu(x, approximate="tanh")
def _silu(x):
    return torch.nn.functional.silu(x)
def _sigmoid(x):
    return torch.sigmoid(x)
def _layernorm(x, axis=-1, eps=1e-5):
    m = x.mean(dim=axis, keepdim=True)
    v = x.var(dim=axis, keepdim=True, unbiased=False)
    return (x - m) / torch.sqrt(v + eps)
def _scatter_add(tgt, idx, src, axis=0):
    return tgt.clone().index_add_(axis, idx, src)
def _segment_sum(src, seg, n):
    out = torch.zeros((n,) + src.shape[1:], dtype=src.dtype)
    return out.index_add_(0, seg, src)
def _pad(x, pw):
    flat = tuple(v for pair in reversed(pw) for v in pair)
    return torch.nn.functional.pad(x, flat)

kernel_name = 'gated_mix__ssm_conv_h3__spectral_fnet__prompt'

def setup_inputs():

    _w = (lambda a: (lambda t: t.to(torch.bfloat16) if t.is_floating_point() else t)(torch.as_tensor(a)))
    def _A_setup():
        B, S, D = 1, 2048, 512
        ks = 4
        return {
            "q": _w((lambda *s: torch.randn(*s, dtype=torch.bfloat16) * 0.05)(B, S, D)),
            "k": _w((lambda *s: torch.randn(*s, dtype=torch.bfloat16) * 3.2)(B, S, D)),
            "v": _w((lambda *s: torch.randn(*s, dtype=torch.bfloat16) * 3.2)(B, S, D)),
            "shift_k": _w((lambda *s: torch.randn(*s, dtype=torch.bfloat16) * 3.2)(D, ks) * 0.5),
            "ssm_k": _w((lambda *s: torch.randn(*s, dtype=torch.bfloat16) * 3.2)(D, S) * (1.0 / S ** 0.5)),
            "ssm_D": _w((lambda *s: torch.randn(*s, dtype=torch.bfloat16) * 3.2)(D)),
        }
    _A_in = _A_setup()

    def _B_setup():
        B, S, D = 1, 2048, 512
        ns = torch.arange(S)[:, None] * torch.arange(S)[None, :]
        nd = torch.arange(D)[:, None] * torch.arange(D)[None, :]
        Ws_re = torch.cos(-2.0 * torch.pi * ns / S).to(float)
        Ws_im = torch.sin(-2.0 * torch.pi * ns / S).to(float)
        Wd_re = torch.cos(-2.0 * torch.pi * nd / D).to(float)
        Wd_im = torch.sin(-2.0 * torch.pi * nd / D).to(float)
        return {
            "x": _w((lambda *s: torch.randn(*s, dtype=torch.bfloat16) * 0.05)(B, S, D)),
            "dft_seq_re": _w(Ws_re),
            "dft_seq_im": _w(Ws_im),
            "dft_hid_re": _w(Wd_re),
            "dft_hid_im": _w(Wd_im),
        }
    _B_in = _B_setup()

    return {
        "A_q": _A_in["q"],
        "A_k": _A_in["k"],
        "A_v": _A_in["v"],
        "A_shift_k": _A_in["shift_k"],
        "A_ssm_k": _A_in["ssm_k"],
        "A_ssm_D": _A_in["ssm_D"],
        "B_x": _B_in["x"],
        "B_dft_seq_re": _B_in["dft_seq_re"],
        "B_dft_seq_im": _B_in["dft_seq_im"],
        "B_dft_hid_re": _B_in["dft_hid_re"],
        "B_dft_hid_im": _B_in["dft_hid_im"],
        "gate_w": _w((lambda *s: torch.randn(*s, dtype=torch.bfloat16) * 0.05)(512) * 16.0),
    }

def reference(A_q, A_k, A_v, A_shift_k, A_ssm_k, A_ssm_D, B_x, B_dft_seq_re, B_dft_seq_im, B_dft_hid_re, B_dft_hid_im, gate_w):
    def _A_ref(q, k, v, shift_k, ssm_k, ssm_D):
        B, S, D = q.shape
        ks = shift_k.shape[-1]
        k_pad = _pad(k, ((0, 0), (ks - 1, 0), (0, 0)))
        k_shift = torch.zeros_like(k)
        for t in range(ks):
            k_shift = k_shift + k_pad[:, t:t + S, :] * shift_k[:, ks - 1 - t][None, None, :]
        kv = k_shift * v
        L = 2 * S
        kv_pad = _pad(kv, ((0, 0), (0, S), (0, 0)))
        kf_pad = _pad(ssm_k, ((0, 0), (0, S)))
        kv_f = (lambda x, axes=(-2,-1): torch.fft.rfft2(x.float(), dim=axes))(kv_pad[:, None, :, :], axes=(1, 2))
        kf_f = (lambda x, axes=(-2,-1): torch.fft.rfft2(x.float(), dim=axes))(kf_pad[:, None, :], axes=(1, 2))
        kf_f = (lambda x, *d: x.permute(*d))(kf_f, 1, 2, 0)
        y_f = kv_f * kf_f[None, :, :, :]
        y = (lambda x, s, axes=(-2,-1): torch.fft.irfft2(x, s=s, dim=axes).to(torch.bfloat16))(y_f, (1, L), axes=(1, 2))[:, 0, :S, :]
        y = y + kv * ssm_D[None, None, :]
        return q * y

    def _B_ref(x, dft_seq_re, dft_seq_im, dft_hid_re, dft_hid_im):
        a = torch.einsum("bsd,ed->bse", x, dft_hid_re)
        b = torch.einsum("bsd,ed->bse", x, dft_hid_im)
        y = torch.einsum("ts,bse->bte", dft_seq_re, a) - torch.einsum("ts,bse->bte", dft_seq_im, b)
        return y

    x = A_q
    g = _sigmoid((x * gate_w).sum(-1, keepdims=True))
    a = _A_ref(x, A_k, A_v, A_shift_k, A_ssm_k, A_ssm_D)
    b = _B_ref(x, B_dft_seq_re, B_dft_seq_im, B_dft_hid_re, B_dft_hid_im)
    return g * a + (1 - g) * b
```

```python
import re

REG_RE = re.compile(r'(?<![\w.])(-?\|?)([vas])(?:(\d+)|\[(\d+):(\d+)\])(?![\w])')
TRANS = ('v_exp_f32', 'v_log_f32', 'v_rcp_f32', 'v_rsq_f32', 'v_sqrt_f32', 'v_sin_f32', 'v_cos_f32')


class R:
    def __init__(self, kind, base, n=1):
        self.kind, self.base, self.n = kind, base, n

    def __getitem__(self, i):
        if isinstance(i, slice):
            a = i.start or 0
            b = self.n if i.stop is None else i.stop
            assert 0 <= a < b <= self.n, (a, b, self.n)
            return R(self.kind, self.base + a, b - a)
        assert 0 <= i < self.n, (i, self.n)
        return R(self.kind, self.base + i, 1)

    def __str__(self):
        if self.n == 1:
            return f'{self.kind}{self.base}'
        return f'{self.kind}[{self.base}:{self.base + self.n - 1}]'
    __repr__ = __str__

    def __format__(self, spec):
        return str(self)


class Alloc:
    def __init__(self, kind, lo, hi):
        self.kind = kind
        self.free = set(range(lo, hi))
        self.hi_water = lo
        self.owner = {}

    def get(self, n=1, align=None, name=''):
        if align is None:
            align = 1 if n == 1 else (2 if self.kind != 's' else (2 if n == 2 else 4))
        b = 0
        mx = max(self.free) if self.free else -1
        while b + n - 1 <= mx:
            if all((b + i) in self.free for i in range(n)):
                for i in range(n):
                    self.free.discard(b + i)
                    self.owner[b + i] = name
                self.hi_water = max(self.hi_water, b + n)
                return R(self.kind, b, n)
            b += align
        raise RuntimeError(f'out of {self.kind} registers for {name} x{n}; free={len(self.free)}')

    def put(self, *rs):
        if getattr(self, 'held', None) is not None:
            self.held += list(rs)
            return
        for r in rs:
            for i in range(r.n):
                assert (r.base + i) not in self.free, f'double free {r}'
                self.free.add(r.base + i)


def regs_of(op):
    out = []
    for m in REG_RE.finditer(op):
        k = m.group(2)
        if m.group(3) is not None:
            out.append((k, int(m.group(3))))
        else:
            out += [(k, i) for i in range(int(m.group(4)), int(m.group(5)) + 1)]
    if re.search(r'\bvcc\b', op):
        out.append(('s', 'vcc'))
    if re.search(r'\bexec\b', op):
        out.append(('s', 'exec'))
    if re.search(r'\bm0\b', op):
        out.append(('s', 'm0'))
    return out


def split_ops(s):
    ops, cur, d = [], '', 0
    for ch in s:
        if ch in '[(':
            d += 1
        if ch in '])':
            d -= 1
        if ch == ',' and d == 0:
            ops.append(cur.strip())
            cur = ''
        else:
            cur += ch
    if cur.strip():
        ops.append(cur.strip())
    return ops


class I:
    def __init__(self, text):
        self.text = text
        t = text.split(';')[0].strip()
        parts = t.split(None, 1)
        self.mn = parts[0]
        rest = parts[1] if len(parts) > 1 else ''
        self.ops = split_ops(rest)
        mn = self.mn
        self.is_mfma = mn.startswith('v_mfma')
        self.is_valu = mn.startswith('v_') and not self.is_mfma
        self.is_salu = mn.startswith('s_')
        self.is_ds = mn.startswith('ds_')
        self.is_vm = mn.startswith(('global_', 'buffer_'))
        self.is_smem = mn.startswith(('s_load', 's_memtime', 's_memrealtime'))
        self.is_trans = mn.replace('_e32', '').replace('_e64', '') in TRANS
        self.is_dot = mn.startswith('v_dot')
        self.is_dpp = '_dpp' in mn
        self.lds_dma = self.is_vm and (' lds' in t or 'load_lds' in mn)
        rl = [regs_of(o) for o in self.ops]
        flat = lambda L: [r for x in L for r in x]
        nodef = (mn.startswith(('ds_write', 'global_store', 'buffer_store', 's_cmp', 's_bitcmp', 's_waitcnt',
                                's_barrier', 's_cbranch', 's_branch', 's_nop', 's_endpgm', 's_sleep', 's_setprio',
                                'buffer_inv', 'buffer_wbl2'))
                 or self.lds_dma or ('atomic' in mn and ' sc0' not in t))
        if nodef:
            self.defs, self.uses = [], flat(rl)
        elif mn.startswith(('v_swap', 'v_permlane')):
            self.defs, self.uses = flat(rl), flat(rl)
        elif mn.startswith(('v_add_co', 'v_addc_co', 'v_sub_co')):
            self.defs, self.uses = flat(rl[:2]), flat(rl[2:])
        else:
            self.defs = rl[0] if rl else []
            self.uses = flat(rl[1:])
            if mn.startswith(('v_fmac', 'v_dot2c', 'v_pk_fmac', 's_addk', 's_mulk', 'v_writelane')) or self.is_dpp \
                    or 'd16' in mn:
                self.uses = self.uses + self.defs
            if 'saveexec' in mn:
                self.defs = self.defs + [('s', 'exec')]
        if self.is_mfma:
            self.srcA, self.srcB, self.srcC = rl[1], rl[2], rl[3]
            self.passes = 8 if '32x32' in mn else 4
        self.wide_store = self.is_vm and 'store' in mn and ('x3' in mn or 'x4' in mn)
        if self.wide_store:
            self.sdata = rl[1] if mn.startswith('global') else rl[0]
        self.states = 1
        if mn == 's_nop':
            self.states = int(self.ops[0], 0) + 1


def need_states(p, c):
    n = 0
    pd, cu, cd = set(p.defs), set(c.uses), set(c.defs)
    vg = lambda S: {r for r in S if r[0] in 'va'}
    sg = lambda S: {r for r in S if r[0] == 's'}
    if p.is_valu:
        raw = vg(pd) & cu
        if raw:
            if c.is_mfma:
                n = max(n, 2)
            if c.is_dpp or c.mn.startswith('v_permlane'):
                n = max(n, 2)
            if c.mn.startswith(('v_readlane', 'v_readfirstlane')):
                n = max(n, 1)
            if p.is_trans and not c.is_trans:
                n = max(n, 1)
        if p.is_dot and (vg(pd) & (cu | cd)):
            same_c = False
            if c.mn == p.mn:
                ab = set(regs_of(c.ops[1]) + regs_of(c.ops[2]))
                same_c = not (ab & pd)
            if not same_c:
                n = max(n, 3)
        sraw = sg(pd) & cu
        if sraw:
            if c.is_vm:
                n = max(n, 5)
            elif c.mn.startswith(('v_readlane', 'v_writelane')):
                n = max(n, 4)
            elif c.is_valu or c.is_mfma:
                n = max(n, 2)
            else:
                n = max(n, 2)
    if p.is_mfma:
        big = p.passes == 8
        if c.is_mfma:
            if pd & (set(c.srcA) | set(c.srcB)):
                n = max(n, 12 if big else 8)
            if pd & set(c.srcC):
                if not (list(p.defs) == list(c.srcC) and p.mn == c.mn):
                    n = max(n, 10 if big else 6)
            elif pd & cd:
                n = max(n, 12 if big else 8)
        elif pd & (cu | cd):
            n = max(n, 12 if big else 8)
        if c.is_valu and (set(p.srcC) & cd):
            n = max(n, 7 if big else 3)
        if (c.is_ds or c.is_vm) and (set(p.srcC) & cd):
            n = max(n, 7 if big else 3)
    if p.wide_store and (set(p.sdata) & cd):
        n = max(n, 2)
    if p.is_salu and ('s', 'm0') in pd and c.lds_dma:
        n = max(n, 1)
    return n


class Kern:
    def __init__(self, name):
        self.name = name
        self.items = []
        self.v = Alloc('v', 1, 256)
        self.s = Alloc('s', 4, 100)
        self.nlab = 0

    def __call__(self, text):
        for ln in text.strip().split('\n'):
            ln = ln.strip()
            if ln:
                self.items.append(('i', I(ln)))

    def capture(self, fn, *a, **kw):
        sv, self.items = self.items, []
        fn(*a, **kw)
        got, self.items = self.items, sv
        return got

    def hold(self):
        self.v.held, self.s.held = [], []

    def release(self):
        hv, hs = self.v.held, self.s.held
        self.v.held = self.s.held = None
        self.v.put(*hv)
        self.s.put(*hs)

    def interleave(self, main, side, every):
        side = list(side)
        for n, it in enumerate(main):
            assert it[0] in ('i', 'raw', 'mark', 'waitfor') or not side, 'side items left at a branch'
            if side and n % every == 0:
                self.items.append(side.pop(0))
            self.items.append(it)
        self.items += side

    def waitfor(self, *texts, lg=None, vm=None):
        regs = set()
        for t in texts:
            regs |= set(regs_of(str(t)))
        self.items.append(('waitfor', (regs, lg, vm)))

    def mark(self, name):
        self.items.append(('mark', name))

    def raw(self, text):
        self.items.append(('raw', text))

    def comment(self, text):
        self.items.append(('raw', '    ; ' + text))

    def label(self, base):
        self.nlab += 1
        return f'L_{self.name[:6]}_{base}_{self.nlab}'

    def begin_skip(self, branch, base):
        lab = self.label(base)
        self(f'{branch} {lab}')
        self.items.append(('if', lab))
        return lab

    def end_skip(self, lab):
        self.items.append(('endif', lab))

    def loop_label(self, base):
        lab = self.label(base)
        self.items.append(('loop', lab))
        return lab

    def finalize(self):
        out = []
        vmq, lgq = [], []
        hists = [[]]
        stack = []
        marks = {}
        stats = dict(n=0, nop=0, wait=0, mfma=0)

        def push(ins):
            out.append('    ' + ins.text)
            stats['n'] += 1
            for h in hists:
                h.append(ins)
                if len(h) > 24:
                    del h[0]

        def apply_wait(ins):
            nonlocal vmq, lgq
            m = re.search(r'vmcnt\((\d+)\)', ins.text)
            if m:
                n = int(m.group(1))
                vmq = vmq[len(vmq) - n:] if n < len(vmq) else vmq
                if n == 0:
                    vmq = []
            m = re.search(r'lgkmcnt\((\d+)\)', ins.text)
            if m:
                n = int(m.group(1))
                if n == 0:
                    lgq = []
                else:
                    assert not any(x[1] for x in lgq), 'counted lgkmcnt with SMEM outstanding'
                    lgq = lgq[len(lgq) - n:] if n < len(lgq) else lgq

        for kind, it in self.items:
            if kind == 'raw':
                out.append(it)
                continue
            if kind == 'if':
                stack.append((list(vmq), list(lgq), [list(h) for h in hists]))
                continue
            if kind == 'endif':
                svm, slg, sh = stack.pop()
                assert len(vmq) == 0 or vmq == svm[len(svm) - len(vmq):], f'vm ops leak from block {it}'
                assert len(lgq) == 0 or lgq == slg[len(slg) - len(lgq):], f'lgkm ops leak from block {it}'
                vmq, lgq = svm, slg
                hists = hists + sh
                out.append(f'{it}:')
                continue
            if kind == 'loop':
                out.append(f'{it}:')
                continue
            if kind == 'mark':
                marks[it] = (vmq[-1] if vmq else None, lgq[-1] if lgq else None)
                continue
            if kind == 'waitfor':
                touched, lgm, vmm = it
                wv = wl = None
                for idx, d in enumerate(vmq):
                    if (d & touched) or (vmm is not None and d is marks[vmm][0]):
                        wv = len(vmq) - 1 - idx
                for idx, d in enumerate(lgq):
                    if (d[0] & touched) or (lgm is not None and d is marks[lgm][1]):
                        wl = len(lgq) - 1 - idx
                if wl is not None and any(x[1] for x in lgq):
                    wl = 0
                if wv is not None or wl is not None:
                    parts = []
                    if wv is not None:
                        parts.append(f'vmcnt({min(wv, 63)})')
                    if wl is not None:
                        parts.append(f'lgkmcnt({min(wl, 15)})')
                    w = I('s_waitcnt ' + ' '.join(parts))
                    apply_wait(w)
                    push(w)
                    stats['wait'] += 1
                continue
            ins = it
            if ins.mn == 's_waitcnt':
                apply_wait(ins)
                push(ins)
                stats['wait'] += 1
                continue
            touched = set(ins.uses) | set(ins.defs)
            wv = wl = None
            for idx, d in enumerate(vmq):
                if d & touched:
                    wv = len(vmq) - 1 - idx
            for idx, d in enumerate(lgq):
                if d[0] & touched:
                    wl = len(lgq) - 1 - idx
            if wl is not None and any(x[1] for x in lgq):
                wl = 0
            if wv is not None or wl is not None:
                parts = []
                if wv is not None:
                    parts.append(f'vmcnt({min(wv, 63)})')
                if wl is not None:
                    parts.append(f'lgkmcnt({min(wl, 15)})')
                w = I('s_waitcnt ' + ' '.join(parts))
                apply_wait(w)
                push(w)
                stats['wait'] += 1
            need = 0
            for h in hists:
                dist = 0
                for p in reversed(h):
                    r = need_states(p, ins)
                    if r > dist:
                        need = max(need, r - dist)
                    dist += p.states
                    if dist >= 20:
                        break
            if need:
                push(I(f's_nop {need - 1}'))
                stats['nop'] += 1
            push(ins)
            if ins.is_mfma:
                stats['mfma'] += 1
            if ins.is_vm and 'untracked' not in ins.text:
                vmq.append(set(ins.defs))
                assert len(vmq) <= 63, 'vmcnt overflow'
            if ins.is_ds or ins.is_smem:
                lgq.append((set(ins.defs), ins.is_smem))
            if len(hists) > 1:
                uniq = []
                for h in hists:
                    if not any(h[-20:] == u[-20:] for u in uniq):
                        uniq.append(h)
                hists = uniq
        self.stats = stats
        return '\n'.join(out)
```

```python
import sys, struct
from asmgen import Kern, R, I

NAME = 'gated_mix__ssm_conv_h3__spectral_fnet__prompt'
UOFF, ZOFF, QOFF, GOFF, COFF, SOFF = 0, 2 << 20, 4 << 20, 6 << 20, (6 << 20) + 65536, 8 << 20
L_X = 0
L_H = 10240
HC = 4224
HS = 2 * HC
PS, WS = 1280, 5152
L_U = 10240
L_YB = L_U + 4 * WS
L_YA = L_YB + 16 * 1088
L_H = L_YA + 4 * 4096
LDS_BYTES = L_H + 4 * HS
NREP = 8
SC = ' sc1'


def fl(x):
    return '0x%08x' % struct.unpack('<I', struct.pack('<f', x))[0]


class Ctx:
    pass


def stamp(k, c, name, pre=None):
    if c.stamps and name in c.stamps:
        if pre:
            k(pre)
        i = c.stamps.index(name)
        k(f'{c.clk} {c.st[2 * i:2 * i + 2]}')
        k('s_waitcnt lgkmcnt(0)')


def stamps_out(k, c):
    if not c.stamps:
        return
    if c.stretch is not None:
        k(f's_memrealtime {c.st[22:24]}')
        k(f's_sub_u32 {c.t0}, {c.st[2]}, {c.st[0]}')
        k(f's_mul_i32 {c.t0}, {c.t0}, {c.stretch}')
        k(f's_min_u32 {c.t0}, {c.t0}, 100000')
        k('s_waitcnt lgkmcnt(0)')
        k(f's_mov_b32 {c.t1}, {c.st[22]}')
        lp = k.loop_label('stretch')
        k(f's_memrealtime {c.st[22:24]}')
        k('s_waitcnt lgkmcnt(0)')
        k(f's_sub_u32 {c.t2}, {c.st[22]}, {c.t1}')
        k(f's_cmp_lt_u32 {c.t2}, {c.t0}')
        k(f's_cbranch_scc1 {lp}')
        return
    t = k.v.get(2)
    a = k.v.get()
    k(f's_lshl_b32 {c.t0}, s2, 2')
    k(f's_add_u32 {c.t0}, {c.t0}, {c.w}')
    k(f's_lshl_b32 {c.t0}, {c.t0}, 7')
    k(f's_add_u32 {c.t0}, {c.t0}, {SOFF}')
    k(f'v_mov_b32 {a}, {c.t0}')
    for i in range(len(c.stamps)):
        k(f'v_mov_b32 {t[0]}, {c.st[2 * i]}')
        k(f'v_mov_b32 {t[1]}, {c.st[2 * i + 1]}')
        k(f'global_store_dwordx2 {a}, {t}, {c.pws} offset:{8 * i}')
    k.v.put(t, a)


def sincos(k, base, step, mults, cs, sn, negsin=False):
    for i, m in enumerate(mults):
        if m:
            k(f'v_fmamk_f32 {sn[i]}, {step}, {fl(m)}, {base}')
    for i, m in enumerate(mults):
        src = base if m == 0 else sn[i]
        k(f'v_cos_f32 {cs[i]}, {src}')
        k(f'v_sin_f32 {sn[i]}, {"-" if negsin else ""}{src}')


def cmul_tw(k, a, b, cc, ss, t):
    for h in (0, 2):
        k(f'v_pk_mul_f32 {t[h:h + 2]}, {b[h:h + 2]}, {ss[h:h + 2]}')
        k(f'v_pk_mul_f32 {b[h:h + 2]}, {b[h:h + 2]}, {cc[h:h + 2]}')
    for h in (0, 2):
        k(f'v_pk_fma_f32 {b[h:h + 2]}, {a[h:h + 2]}, {ss[h:h + 2]}, {b[h:h + 2]} neg_lo:[1,0,0] neg_hi:[1,0,0]')
        k(f'v_pk_fma_f32 {a[h:h + 2]}, {a[h:h + 2]}, {cc[h:h + 2]}, {t[h:h + 2]}')


class Stream:
    def __init__(self, mfmas):
        self.m = list(mfmas)
        n = len(self.m)
        self.vec = [[] for _ in range(n)]
        self.sca = [[] for _ in range(n)]
        self.lgw = [None] * n
        self.tail = []

    def place(self, g, instrs, per_gap=2):
        last = g
        used = 0
        for ins in instrs:
            while g < len(self.m):
                mem = ins.startswith(('ds_', 'global_', 'buffer_'))
                ok = len(self.vec[g]) < 2 and used < per_gap
                if ok and mem and used and not self.vec[g][-1].startswith(('ds_', 'global_', 'buffer_')):
                    ok = False
                if ok and mem and any(x.startswith('ds_') for x in self.vec[g]) and ins.startswith('ds_'):
                    ok = False
                if ok:
                    break
                g += 1
                used = 0
            if g >= len(self.m):
                self.tail.append(ins)
                last = len(self.m)
                continue
            self.vec[g].append(ins)
            used += 1
            last = g
        return last

    def scalar(self, g, ins):
        self.sca[g].append(ins)

    def barrier_after(self, g, mark):
        self.lgw[g] = mark
        self.sca[g + 1].append('s_barrier')
        return g + 1

    def emit(self, k):
        isa = lambda x: x.split('@')[0]
        for i, m in enumerate(self.m):
            k(m)
            mem = [x for x in self.vec[i] if x.startswith(('ds_', 'global_', 'buffer_'))]
            alu = [x for x in self.vec[i] if x not in mem]
            look = [isa(x) for x in self.vec[i]]
            if i + 1 < len(self.m):
                look.append(self.m[i + 1])
                if self.sca[i + 1]:
                    look += [isa(x) for x in self.vec[i + 1]]
                    if i + 2 < len(self.m):
                        look.append(self.m[i + 2])
            k.waitfor(*look, lg=self.lgw[i])
            for x in self.sca[i]:
                k(x)
            for x in mem + alu:
                k(isa(x))
                if '@' in x:
                    k.mark(x.split('@')[1])
        for x in self.tail:
            k(isa(x))
            if '@' in x:
                k.mark(x.split('@')[1])


def setup(k, c):
    s, v = k.s, k.v
    c.end = k.label('end')
    k('s_cmp_ge_u32 s2, 256')
    k(f's_cbranch_scc1 {c.end}')
    a0 = s.get(8, 4); a1 = s.get(4, 4); a2 = s.get(8, 4)
    k(f's_load_dwordx8 {a0}, s[0:1], 0')
    k(f's_load_dwordx8 {a2}, s[0:1], 88')
    k(f's_load_dwordx4 {a1}, s[0:1], 32')
    c.pq, c.pk, c.pv, c.psk = a0[0:2], a0[2:4], a0[4:6], a0[6:8]
    c.ph, c.pD = a1[0:2], a1[2:4]
    c.pgw, c.pout, c.pdbg, c.pws = a2[0:2], a2[2:4], a2[4:6], a2[6:8]
    if c.stamps:
        c.st = s.get(24, 4)
        if 'start' in c.stamps:
            i = c.stamps.index('start')
            k(f'{c.clk} {c.st[2 * i:2 * i + 2]}')
    c.x, c.j, c.w, c.t0, c.t1, c.t2, c.s0, c.iA, c.E, c.tau, c.lead = (s.get() for _ in range(11))
    c.l, c.l16, c.n, c.g = (v.get() for _ in range(4))
    t0, t1 = c.t0, c.t1
    k(f'v_lshrrev_b32 {c.l}, 6, v0')
    k(f's_and_b32 {c.x}, s2, 7')
    k(f'v_readfirstlane_b32 {c.w}, {c.l}')
    k(f's_lshr_b32 {c.j}, s2, 3')
    k(f'v_and_b32 {c.l}, 63, v0')
    k(f'v_lshlrev_b32 {c.l16}, 4, {c.l}')
    k(f's_lshl_b32 {c.E}, {c.x}, 4')
    k(f's_and_b32 {t1}, {c.j}, 15')
    k(f's_add_u32 {t0}, {c.E}, {t1}')
    k(f's_sub_u32 {t1}, 256, {t0}')
    k(f's_cmp_eq_u32 {t0}, 0')
    k(f's_cselect_b32 {t1}, 128, {t1}')
    k(f's_cmp_lt_u32 {c.j}, 16')
    k(f's_cselect_b32 {c.s0}, {t0}, {t1}')
    k(f's_and_b32 {t0}, {c.w}, 2')
    k(f's_add_u32 {c.iA}, {c.w}, {t0}')
    k(f's_lshl_b32 {t0}, {c.iA}, 8')
    k(f's_add_u32 {t0}, {t0}, {c.s0}')
    k(f's_lshl_b32 {t0}, {t0}, 10')
    aq = v.get(4, 1)
    k(f'v_add_u32 {aq[0]}, {t0}, {c.l16}')
    k(f's_sub_u32 {t1}, {2048 * 1024 + 1008}, {t0}')
    k(f's_and_b32 {t1}, {t1}, {2048 * 1024 - 1}')
    k(f'v_sub_u32 {aq[1]}, {t1}, {c.l16}')
    k(f'v_add_u32 {aq[2]}, {512 * 1024}, {aq[0]}')
    k(f's_sub_u32 {t1}, {1536 * 1024 + 1008}, {t0}')
    k(f'v_sub_u32 {aq[3]}, {t1}, {c.l16}')
    k(f'v_and_b32 {c.n}, 15, v0')
    k(f'v_lshrrev_b32 {c.g}, 4, {c.l}')
    P, cb, akv, akh, ask, ah, aD, acl, zero = (v.get() for _ in range(9))
    ap = v.get(2, 1)
    k(f'v_and_b32 {P}, 31, v0')
    k(f'v_lshrrev_b32 {cb}, 5, {c.l}')
    k(f's_lshl_b32 {t0}, {c.j}, 3')
    k(f's_add_u32 {t0}, {t0}, {c.w}')
    k(f's_lshl_b32 {t0}, {t0}, 6')
    k(f's_add_u32 {t0}, {t0}, {c.x}')
    k(f's_add_u32 {t0}, {t0}, 32')
    k(f's_lshl_b32 {t0}, {t0}, 7')
    k(f'v_lshl_add_u32 {akv}, {cb}, 15, {t0}')
    k(f'v_lshl_add_u32 {akv}, {P}, 2, {akv}')
    k(f'v_subrev_u32 {akh}, 7168, {akv}')
    k(f'v_and_b32 {ap[0]}, 1, {c.g}')
    k(f'v_lshl_add_u32 {ap[0]}, {ap[0]}, 2, {cb}')
    k(f's_lshl_b32 {t0}, {c.s0}, 3')
    k(f's_add_u32 {t0}, {t0}, {c.w}')
    k(f's_lshl_b32 {t0}, {t0}, 7')
    k(f'v_lshl_add_u32 {ap[0]}, {ap[0]}, 18, {t0}')
    k(f'v_lshl_add_u32 {ap[0]}, {c.n}, 3, {ap[0]}')
    k(f'v_add_u32 {ap[1]}, {512 * 1024}, {ap[0]}')
    srdk = s.get(4, 4)
    c.srdws = s.get(4, 4)
    k(f's_mov_b32 {srdk[2]}, {2 << 20}')
    k(f's_mov_b32 {srdk[3]}, 0x00020000')
    k(f's_mov_b32 {c.srdws[2]}, {1 << 28}')
    k(f's_mov_b32 {c.srdws[3]}, 0x00020000')
    c.qd = [v.get(4), v.get(4)]
    c.qm = [v.get(4), v.get(4)]
    k('s_waitcnt lgkmcnt(0)')
    stamp(k, c, 'karg')
    k(f'global_load_dwordx4 {c.qd[0]}, {aq[0]}, {c.pq}')
    k(f's_mov_b32 {srdk[0]}, {c.pk[0]}')
    k(f'global_load_dwordx4 {c.qm[0]}, {aq[1]}, {c.pq}')
    k(f's_and_b32 {srdk[1]}, {c.pk[1]}, 0xffff')
    k(f'global_load_dwordx4 {c.qd[1]}, {aq[2]}, {c.pq}')
    k(f's_mov_b32 {c.srdws[0]}, {c.pws[0]}')
    k(f'global_load_dwordx4 {c.qm[1]}, {aq[3]}, {c.pq}')
    k(f's_and_b32 {c.srdws[1]}, {c.pws[1]}, 0xffff')
    k(f's_lshr_b32 {t0}, {c.j}, 1')
    k(f's_add_u32 {c.E}, {c.E}, {t0}')
    k(f's_and_b32 {c.tau}, {c.j}, 1')
    k(f's_lshl_b32 {t1}, {c.x}, 9')
    k(f'v_lshl_add_u32 {ask}, {P}, 4, {t1}')
    k(f's_lshl_b32 {t0}, {c.E}, 2')
    k(f's_add_u32 {t0}, {t0}, {c.w}')
    k(f's_lshl_b32 {t1}, {t0}, 12')
    k(f'v_add_u32 {ah}, {t1}, {c.l16}')
    k(f's_lshl_b32 {t0}, {t0}, 1')
    k(f'v_mov_b32 {aD}, {t0}')
    k(f's_or_b32 {c.lead}, s2, {c.w}')
    k(f's_cselect_b32 {c.lead}, 2.0, 0')
    k(f's_add_u32 {t0}, {c.lead}, {COFF}')
    k(f'v_lshl_add_u32 {acl}, {c.l}, 9, {t0}')
    k(f'v_mov_b32 {zero}, 0')
    c.K, c.V = v.get(11, 1), v.get(8, 1)
    c.gw, c.skw = v.get(4), v.get(4)
    c.qp = [v.get(4), v.get(4)]
    c.H = [v.get(4) for _ in range(4)]
    c.Dv = v.get()
    L = []
    L += [f'buffer_store_dword {zero}, {acl}, {c.srdws}, 0 offen{SC}',
          f'buffer_store_dword {zero}, {acl}, {c.srdws}, 0 offen offset:256{SC}']
    L += [f'global_load_dwordx4 {c.gw}, {c.l16}, {c.pgw}']
    L += [f'buffer_load_dword {c.K[t]}, {akh}, {srdk}, 0 offen offset:{1024 * t}' for t in range(3)]
    L += [f'global_load_dword {c.K[3 + t]}, {akv}, {c.pk} offset:{1024 * (t - 4)}' for t in range(8)]
    L += [f'global_load_dwordx4 {c.skw}, {ask}, {c.psk}']
    L += [f'global_load_dword {c.V[t]}, {akv}, {c.pv} offset:{1024 * (t - 4)}' for t in range(8)]
    c.Lq = [f'global_load_dwordx2 {c.qp[eh][2 * r:2 * r + 2]}, {ap[r]}, {c.pq} offset:{512 * eh}' for eh in range(2) for r in range(2)]
    c.Lh = [f'global_load_dwordx4 {c.H[n]}, {ah}, {c.ph} offset:{1024 * n}' for n in range(4)]
    c.Lh += [f'global_load_ushort {c.Dv}, {aD}, {c.pD}']
    if c.hpos == 0:
        L += c.Lh
    c.late_free = [ah, aD, ap]
    c.loads = [('i', I(x)) for x in L]
    c.P, c.cb = P, cb
    c.setup_free_v = [aq, akv, akh, ask, acl, zero]
    c.setup_free_s = [srdk]


def extras(k, c):
    v, s = k.v, k.s
    c.dummy = v.get()
    a = v.get()
    if c.touch:
        k(f's_lshl_b32 {c.t0}, {c.x}, 7')
        k(f'v_mov_b32 {a}, {c.t0}')
        k(f'global_load_dword {c.dummy}, {a}, {c.pout}')
    if c.prefetch:
        pc = s.get(2)
        k(f's_getpc_b64 {pc}')
        here = k.label('pc')
        k.raw(f'{here}:')
        k(f's_and_b32 {c.t0}, {c.j}, 1')
        k(f's_lshl_b32 {c.t0}, {c.t0}, 2')
        k(f's_add_u32 {c.t0}, {c.t0}, {c.w}')
        k(f's_lshl_b32 {c.t0}, {c.t0}, 11')
        k(f'v_lshl_add_u32 {a}, {c.l}, 5, {c.t0}')
        k(f'v_min_u32 {a}, {c.end}-{here}, {a}')
        c.dummy2 = v.get()
        k(f'global_load_dword {c.dummy2}, {a}, {pc}')
        s.put(pc)
    v.put(a)


MULT = [0, 1, 2, 3, 16, 17, 18, 19]


def consts_b(k, c):
    s, v = k.s, k.v
    base, step, t = v.get(), v.get(), v.get()
    cs, sn = v.get(8), v.get(8)
    c.sg = s.get()
    k(f's_mov_b32 {c.sg}, 0x80008000')
    k(f'v_mul_u32_u24 {base}, {c.g}, {c.n}')
    k(f'v_cvt_f32_u32 {step}, {c.n}')
    k(f'v_cvt_f32_u32 {base}, {base}')
    k(f'v_mul_f32 {step}, {fl(1 / 32)}, {step}')
    k(f'v_mul_f32 {base}, {fl(1 / 8)}, {base}')
    sincos(k, base, step, MULT, cs, sn)
    c.CBc = [v.get(4), v.get(4)]
    c.CBs = [v.get(4), v.get(4)]
    c.CBn = [v.get(4), v.get(4)]
    c.a2, c.gea = v.get(), v.get()
    k(f's_lshl_b32 {c.t1}, {c.w}, 2')
    k(f'v_lshrrev_b32 {c.a2}, 2, {c.n}')
    k(f'v_add_u32 {t}, {c.t1}, {c.a2}')
    k(f'v_mul_u32_u24 {c.gea}, {c.g}, {t}')
    for m in range(4):
        k(f'v_cvt_pk_bf16_f32 {c.CBc[0][m]}, {cs[2 * m]}, {cs[2 * m + 1]}')
        k(f'v_cvt_pk_bf16_f32 {c.CBs[0][m]}, {sn[2 * m]}, {sn[2 * m + 1]}')
    for m in range(4):
        k(f'v_xor_b32 {c.CBn[0][m]}, {c.sg}, {c.CBs[0][m]}')
        k(f'v_xor_b32 {c.CBc[1][m]}, 0x80000000, {c.CBc[0][m]}')
        k(f'v_xor_b32 {c.CBs[1][m]}, 0x80000000, {c.CBs[0][m]}')
        k(f'v_xor_b32 {c.CBn[1][m]}, 0x00008000, {c.CBs[0][m]}')
    k(f'v_cvt_f32_u32 {base}, {c.gea}')
    k(f'v_cvt_f32_u32 {step}, {t}')
    k(f'v_mul_f32 {base}, {fl(1 / 128)}, {base}')
    k(f'v_mul_f32 {step}, {fl(1 / 512)}, {step}')
    sincos(k, base, step, MULT, cs, sn)
    c.tw1c, c.tw1s = cs, sn
    c.aXw, c.aXr, c.aZ, c.aQ, c.aU, c.aGs = v.get(), v.get(), v.get(2, 1), v.get(2, 1), v.get(), v.get()
    t0, t1 = c.t0, c.t1
    k(f's_mul_i32 {t0}, {c.iA}, 1280')
    k(f's_and_b32 {t1}, {c.iA}, 1')
    k(f's_lshl_b32 {t1}, {t1}, 5')
    k(f's_add_u32 {t0}, {t0}, {t1}')
    k(f'v_add_u32 {c.aXw}, {t0}, {c.l16}')
    k(f'v_bfe_u32 {t}, v0, 2, 1')
    k(f'v_mul_u32_u24 {c.aXr}, {1280 + 32}, {t}')
    k(f'v_bfe_u32 {t}, v0, 3, 1')
    k(f'v_mul_u32_u24 {t}, {2560 + 128}, {t}')
    k(f'v_lshl_add_u32 {c.aXr}, {c.g}, 6, {c.aXr}')
    k(f'v_and_b32 {base}, 3, v0')
    k(f'v_lshl_add_u32 {t}, {base}, 3, {t}')
    k(f'v_add_u32 {c.aXr}, {c.aXr}, {t}')
    k(f's_lshl_b32 {t0}, {c.w}, 8')
    k(f's_add_u32 {t0}, {t0}, {c.s0}')
    k(f's_lshl_b32 {t0}, {t0}, 6')
    k(f's_add_u32 {t0}, {t0}, {ZOFF}')
    k(f'v_lshl_add_u32 {t}, {c.g}, 4, {t0}')
    k(f'v_lshl_add_u32 {c.aZ[0]}, {c.n}, 16, {t}')
    k(f'v_add_u32 {c.aZ[1]}, {1 << 20}, {c.aZ[0]}')
    k(f's_and_b32 {t0}, {c.s0}, 1')
    k(f's_lshl_b32 {t0}, {t0}, 7')
    k(f's_lshr_b32 {t1}, {c.s0}, 1')
    k(f's_add_u32 {t0}, {t0}, {t1}')
    k(f's_lshl_b32 {c.t2}, {t0}, 5')
    k(f's_lshl_b32 {t1}, {c.w}, 12')
    k(f's_add_u32 {t0}, {t0}, {t1}')
    k(f's_lshl_b32 {t0}, {t0}, 6')
    k(f's_add_u32 {t0}, {t0}, {QOFF}')
    k(f'v_lshl_add_u32 {t}, {c.g}, 4, {t0}')
    k(f'v_lshl_add_u32 {c.aQ[0]}, {c.n}, 14, {t}')
    k(f'v_add_u32 {c.aQ[1]}, {1 << 20}, {c.aQ[0]}')
    k(f's_and_b32 {t0}, {c.w}, 1')
    k(f's_lshl_b32 {t0}, {t0}, 4')
    k(f's_and_b32 {t1}, {c.w}, 2')
    k(f's_lshl_b32 {t1}, {t1}, 2')
    k(f's_add_u32 {t0}, {t0}, {t1}')
    k(f's_add_u32 {t0}, {t0}, {c.t2}')
    k(f's_add_u32 {t0}, {t0}, {GOFF}')
    m63 = s.get(2)
    k(f'v_cmp_eq_u32 {m63}, 63, {c.l}')
    k(f'v_mov_b32 {c.aGs}, {t0}')
    k(f's_lshl_b32 {t0}, {c.x}, 9')
    k(f's_add_u32 {t0}, {t0}, {c.j}')
    k(f'v_cndmask_b32 {c.aGs}, 2.0, {c.aGs}, {m63}')
    k(f's_lshl_b32 {t0}, {t0}, 2')
    k(f's_add_u32 {t0}, {t0}, {c.w}')
    k(f's_lshl_b32 {t0}, {t0}, 7')
    k(f'v_lshl_add_u32 {c.aU}, {c.cb}, 5, {t0}')
    k(f'v_lshrrev_b32 {t}, 1, {c.P}')
    k(f'v_lshl_add_u32 {c.aU}, {t}, 14, {c.aU}')
    k(f'v_and_b32 {t}, 1, {c.P}')
    k(f'v_lshl_add_u32 {c.aU}, {t}, 4, {c.aU}')
    s.put(m63)
    v.put(base, step, t, c.P, c.cb)
    c.sel_lo, c.sel_hi = s.get(), s.get()
    k(f's_mov_b32 {c.sel_lo}, 0x00003f80')
    k(f's_mov_b32 {c.sel_hi}, 0x3f800000')


def consts_a(k, c):
    s, v = k.s, k.v
    ip, base, step = (v.get() for _ in range(3))
    cs, sn = v.get(8), v.get(8)
    k(f's_lshr_b32 {c.t0}, {c.s0}, 7')
    k(f's_and_b32 {c.t1}, {c.s0}, 127')
    k(f's_cselect_b32 {c.t0}, {c.t0}, 0')
    k(f'v_and_b32 {ip}, 3, v0')
    k(f'v_lshl_add_u32 {ip}, {ip}, 1, {c.t0}')
    k(f'v_lshlrev_b32 {base}, 7, {c.gea}')
    k(f'v_mad_u32_u24 {base}, {ip}, {c.s0}, {base}')
    k(f'v_cvt_f32_u32 {step}, {ip}')
    k(f'v_cvt_f32_u32 {base}, {base}')
    k(f'v_mul_f32 {step}, {fl(1 / 8)}, {step}')
    k(f'v_mul_f32 {base}, {fl(1 / 2048)}, {base}')
    sincos(k, base, step, range(8), cs, sn, negsin=True)
    k(f's_cmp_lg_u32 {c.t1}, 0')
    lab = k.begin_skip('s_cbranch_scc1', 'nospecial')
    c2, s2 = v.get(8), v.get(8)
    k(f'v_cvt_f32_u32 {c2[0]}, {c.s0}')
    k(f'v_add_f32 {step}, {fl(1 / 8)}, {step}')
    k(f'v_fmac_f32 {base}, {fl(1 / 2048)}, {c2[0]}')
    sincos(k, base, step, range(8), c2, s2)
    for i in range(8):
        if i & 1:
            continue
        k(f'v_pk_add_f32 {cs[i:i + 2]}, {cs[i:i + 2]}, {s2[i:i + 2]}')
        k(f'v_pk_add_f32 {sn[i:i + 2]}, {sn[i:i + 2]}, {c2[i:i + 2]}')
        k(f'v_pk_mul_f32 {cs[i:i + 2]}, 0.5, {cs[i:i + 2]} op_sel_hi:[0,1]')
        k(f'v_pk_mul_f32 {sn[i:i + 2]}, 0.5, {sn[i:i + 2]} op_sel_hi:[0,1]')
    v.put(c2, s2)
    k.end_skip(lab)
    c.CAr = [v.get(4) for _ in range(4)]
    c.CAi = [v.get(4) for _ in range(4)]
    mo, m2, m12 = ip, base, step
    odd = s.get(2)
    k(f'v_and_b32 {mo}, 1, {c.a2}')
    k(f'v_lshrrev_b32 {m2}, 1, {c.a2}')
    k(f'v_cmp_eq_u32 {odd}, 1, {mo}')
    k(f'v_mul_lo_u32 {mo}, {mo}, {c.sg}')
    k(f'v_mul_lo_u32 {m2}, {m2}, {c.sg}')
    k(f'v_xor_b32 {m12}, {mo}, {m2}')
    for m in range(4):
        k(f'v_cvt_pk_bf16_f32 {c.CAr[0][m]}, {cs[2 * m]}, {cs[2 * m + 1]}')
        k(f'v_cvt_pk_bf16_f32 {c.CAi[0][m]}, {sn[2 * m]}, {sn[2 * m + 1]}')
    for m in range(4):
        k(f'v_cndmask_b32 {c.CAr[3][m]}, {c.CAr[0][m]}, {c.CAi[0][m]}, {odd}')
        k(f'v_cndmask_b32 {c.CAi[3][m]}, {c.CAi[0][m]}, {c.CAr[0][m]}, {odd}')
        k(f'v_xor_b32 {c.CAr[2][m]}, {c.CAr[0][m]}, {mo}')
        k(f'v_xor_b32 {c.CAi[2][m]}, {c.CAi[0][m]}, {mo}')
    for m in range(4):
        k(f'v_xor_b32 {c.CAr[1][m]}, {c.CAr[3][m]}, {m2}')
        k(f'v_xor_b32 {c.CAi[1][m]}, {c.CAi[3][m]}, {m12}')
        k(f'v_xor_b32 {c.CAr[3][m]}, {c.CAr[3][m]}, {m12}')
        k(f'v_xor_b32 {c.CAi[3][m]}, {c.CAi[3][m]}, {m2}')
    s.put(odd, c.sg)
    v.put(ip, base, step, cs, sn, c.a2, c.gea)


def p1_dft(k, c):
    s, v = k.s, k.v
    f = v.get(8)
    o = v.get(4)
    X = v.get()
    if c.stamps and 'qarr' in c.stamps:
        k.waitfor(*c.qd, *c.qm)
        stamp(k, c, 'qarr')
    for r in range(2):
        A, M = c.qd[r], c.qm[r]
        k(f'v_mov_b32_dpp {X}, {M[0]} wave_ror:1 row_mask:0xf bank_mask:0xf')
        for m in range(4):
            k(f'v_lshlrev_b32 {f[2 * m]}, 16, {A[m]}')
            k(f'v_and_b32 {f[2 * m + 1]}, 0xffff0000, {A[m]}')
        src = [(X, 0), (M[3], 1), (M[3], 0), (M[2], 1), (M[2], 0), (M[1], 1), (M[1], 0), (M[0], 1)]
        for e in range(8):
            k(f'v_dot2c_f32_bf16 {f[e]}, {c.sel_hi if src[e][1] else c.sel_lo}, {src[e][0]}')
        dst = o if r == 0 else c.qm[0]
        for m in range(4):
            k(f'v_cvt_pk_bf16_f32 {dst[m]}, {f[2 * m]}, {f[2 * m + 1]}')
        k(f'ds_write_b128 {c.aXw}, {dst} offset:{L_X + r * (2560 + 128)}')
    z = v.get(2)
    for m in range(4):
        for r in range(2):
            k(f'v_dot2_f32_bf16 {z[r]}, {c.qd[r][m]}, {c.gw[m]}, {z[r] if m else 0}')
    k(c.go_store)
    k('s_waitcnt lgkmcnt(0)')
    stamp(k, c, 'xt')
    k('s_barrier')
    v.put(f, o, X, c.qm[0], c.qm[1], c.aXw, c.qd[0], c.qd[1], c.gw)
    F = [[v.get(4) for _ in range(4)] for _ in range(2)]
    for T in range(2):
        for ks in range(4):
            for h in range(2):
                k(f'ds_read_b64_tr_b16 {F[T][ks][2 * h:2 * h + 2]}, {c.aXr} offset:{L_X + 5120 * h + 256 * ks + 32 * T}')
    for x in c.Lq:
        k(x)
    Dr = [v.get(4), v.get(4)]
    Di = [v.get(4), v.get(4)]
    mf = []
    for T in range(2):
        for ks in range(4):
            mf.append(f'v_mfma_f32_16x16x32_bf16 {Dr[T]}, {F[T][ks]}, {c.CAr[ks]}, {Dr[T] if ks else 0}')
            mf.append(f'v_mfma_f32_16x16x32_bf16 {Di[T]}, {F[T][ks]}, {c.CAi[ks]}, {Di[T] if ks else 0}')
    st = Stream(mf)
    gate = []
    for ctl in ['row_ror:1 row_mask:0xf', 'row_ror:2 row_mask:0xf', 'row_ror:4 row_mask:0xf',
                'row_ror:8 row_mask:0xf', 'row_bcast:15 row_mask:0xa', 'row_bcast:31 row_mask:0xc']:
        gate += [f'v_add_f32_dpp {z[r]}, {z[r]}, {z[r]} {ctl} bank_mask:0xf' for r in range(2)]
    gate += [f'v_mul_f32 {z[r]}, {fl(-1.4426950408889634)}, {z[r]}' for r in range(2)]
    g = st.place(0, gate)
    g = st.place(g + 1, [f'v_exp_f32 {z[r]}, {z[r]}' for r in range(2)], per_gap=1)
    g = st.place(g + 1, [f'v_add_f32 {z[r]}, 1.0, {z[r]}' for r in range(2)])
    g = st.place(g + 1, [f'v_rcp_f32 {z[r]}, {z[r]}' for r in range(2)], per_gap=1)
    g = st.place(g + 1, [f'buffer_store_dwordx2 {z}, {c.aGs}, {c.srdws}, 0 offen{SC}'])
    st.emit(k)
    Re, Im, t = v.get(4), v.get(4), v.get(4)
    for T in range(2):
        cmul_tw(k, Dr[T], Di[T], c.tw1c[4 * T:4 * T + 4], c.tw1s[4 * T:4 * T + 4], t)
        for h in range(2):
            k(f'v_cvt_pk_bf16_f32 {Im[2 * T + h]}, {Di[T][2 * h]}, {Di[T][2 * h + 1]}')
        for h in range(2):
            k(f'v_cvt_pk_bf16_f32 {Re[2 * T + h]}, {Dr[T][2 * h]}, {Dr[T][2 * h + 1]}')
    Hr, Hi = F[0][0:2], F[0][2:4]
    mf = []
    for Tb in range(2):
        mf.append(f'v_mfma_f32_16x16x32_bf16 {Hr[Tb]}, {Im}, {c.CBs[Tb]}, 0')
        mf.append(f'v_mfma_f32_16x16x32_bf16 {Hi[Tb]}, {Im}, {c.CBc[Tb]}, 0')
        mf.append(f'v_mfma_f32_16x16x32_bf16 {Hr[Tb]}, {Re}, {c.CBc[Tb]}, {Hr[Tb]}')
        mf.append(f'v_mfma_f32_16x16x32_bf16 {Hi[Tb]}, {Re}, {c.CBn[Tb]}, {Hi[Tb]}')
    st = Stream(mf)
    if c.hpos == 1:
        st.place(0, c.Lh, per_gap=1)
    st.emit(k)
    for Tb in range(2):
        o = F[1][Tb]
        for i in range(4):
            k(f'v_cvt_pk_bf16_f32 {o[i]}, {Hr[Tb][i]}, {Hi[Tb][i]}')
        k(f'global_store_dwordx4 {c.aZ[Tb]}, {o}, {c.pws}{SC}')
    v.put(*F[0], *F[1], *Dr, *Di, Re, Im, t, c.aXr, c.aZ, c.tw1c, c.tw1s, z, c.aGs)
    v.put(*c.CAr, *c.CAi, *c.CBc, *c.CBs, *c.CBn)


def p1_kv(k, c):
    s, v = k.s, k.v
    Kf = [v.get(2) for _ in range(11)]
    if c.stamps and 'karr' in c.stamps:
        k.waitfor(c.K)
        stamp(k, c, 'karr')
    for t in range(11):
        k(f'v_lshlrev_b32 {Kf[t][0]}, 16, {c.K[t]}')
        k(f'v_and_b32 {Kf[t][1]}, 0xffff0000, {c.K[t]}')
    Wt = [v.get(2) for _ in range(4)]
    for ch in range(2):
        for jj in range(4):
            src = c.skw[2 * ch + (jj >> 1)]
            if jj & 1:
                k(f'v_and_b32 {Wt[jj][ch]}, 0xffff0000, {src}')
            else:
                k(f'v_lshlrev_b32 {Wt[jj][ch]}, 16, {src}')
    S = [v.get(2) for _ in range(8)]
    for jj in range(4):
        for t in range(8):
            if jj == 0:
                k(f'v_pk_mul_f32 {S[t]}, {Kf[3 + t]}, {Wt[0]}')
            else:
                k(f'v_pk_fma_f32 {S[t]}, {Kf[3 + t - jj]}, {Wt[jj]}, {S[t]}')
    stamp(k, c, 'ks')
    if c.stamps and 'varr' in c.stamps:
        k.waitfor(c.V)
        stamp(k, c, 'varr')
    k.waitfor(c.V, *c.qp)
    stamp(k, c, 'qparr')
    for eh in range(2):
        k(f'global_store_dwordx4 {c.aQ[eh]}, {c.qp[eh]}, {c.pws}{SC}')
    stamp(k, c, 'qst')
    for t in range(8):
        k(f'v_lshlrev_b32 {Kf[t][0]}, 16, {c.V[t]}')
        k(f'v_and_b32 {Kf[t][1]}, 0xffff0000, {c.V[t]}')
    for t in range(8):
        k(f'v_pk_mul_f32 {S[7 - t]}, {S[7 - t]}, {Kf[7 - t]}')
    o = [v.get(4), v.get(4)]
    for p in range(2):
        for m in range(4):
            k(f'v_cvt_pk_bf16_f32 {o[p][m]}, {S[7 - 2 * m][p]}, {S[6 - 2 * m][p]}')
        k(f'global_store_dwordx4 {c.aU}, {o[p]}, {c.pws} offset:{UOFF + 64 * p}{SC}')
    k.mark('stores')
    v.put(*Wt, *Kf, *S, *o, c.K, c.V, c.skw, c.aU, c.aQ, *c.qp)


def p2_consts(k, c):
    s, v = k.s, k.v
    t0, t1 = c.t0, c.t1
    k1, base, step, t = (v.get() for _ in range(4))
    m = s.get(2)
    k(f'v_lshrrev_b32 {t}, 2, {c.n}')
    k(f'v_and_b32 {k1}, 3, v0')
    k(f'v_lshl_add_u32 {k1}, {k1}, 2, {t}')
    c.sgn = v.get()
    c.psel = s.get()
    k(f's_cmp_eq_u32 {c.tau}, 0')
    k(f's_mov_b32 {t0}, 0x03020c0c')
    k(f's_cselect_b32 {c.psel}, 0x01000c0c, {t0}')
    k(f'v_lshlrev_b32 {t}, 31, {t}')
    k(f'v_xor_b32 {c.sgn}, 1.0, {t}')
    cs, sn = v.get(4), v.get(4)
    k(f's_lshl_b32 {t0}, {c.tau}, 3')
    k(f'v_lshl_add_u32 {t}, {c.g}, 1, {t0}')
    k(f'v_mul_u32_u24 {base}, {t}, {k1}')
    k(f'v_cvt_f32_u32 {step}, {k1}')
    k(f'v_cvt_f32_u32 {base}, {base}')
    k(f'v_mul_f32 {step}, {fl(1 / 16)}, {step}')
    k(f'v_mul_f32 {base}, {fl(1 / 16)}, {base}')
    sincos(k, base, step, [0, 1], cs, sn)
    c.Fa = v.get(4)
    c.Far, c.Fai = c.Fa[0:2], c.Fa[2:4]
    k(f'v_mul_u32_u24 {base}, {c.g}, {k1}')
    for jj in range(2):
        k(f'v_cvt_pk_bf16_f32 {c.Far[jj]}, {cs[jj]}, {sn[jj]}')
        k(f'v_cvt_pk_bf16_f32 {c.Fai[jj]}, -{sn[jj]}, {cs[jj]}')
    k(f'v_cvt_f32_u32 {base}, {base}')
    k(f'v_mul_f32 {base}, {fl(1 / 4)}, {base}')
    sincos(k, base, step, [0, 1, 2, 3], cs, sn)
    c.Fb = v.get(4)
    k(f'v_mul_f32 {base}, {fl(1 / 16)}, {base}')
    k(f'v_mul_f32 {step}, {fl(1 / 16)}, {step}')
    for h in range(2):
        k(f'v_cvt_pk_bf16_f32 {c.Fb[h]}, {cs[2 * h]}, {cs[2 * h + 1]}')
        k(f'v_cvt_pk_bf16_f32 {c.Fb[2 + h]}, {sn[2 * h]}, {sn[2 * h + 1]}')
    sincos(k, base, step, [0, 1, 2, 3], cs, sn)
    c.tw2c, c.tw2s = cs, sn
    c.Ci = [v.get(4) for _ in range(4)]
    c.SP = v.get(8)
    for jj in range(4):
        k(f'v_pk_mov_b32 {c.Ci[jj][0:2]}, 0, 0')
        k(f'v_pk_mov_b32 {c.Ci[jj][2:4]}, 0, 0')
        k(f'v_pk_mov_b32 {c.SP[2 * jj:2 * jj + 2]}, 0, 0')
    k(f's_mul_i32 {t0}, {c.w}, {WS}')
    k(f'v_mul_u32_u24 {t}, {PS}, {c.g}')
    k(f'v_lshl_add_u32 {t}, {c.n}, 4, {t}')
    c.aB = v.get()
    k(f'v_add_u32 {c.aB}, {t0}, {t}')
    k(f'ds_write_b128 {c.aB}, {c.Ci[0]} offset:{L_U}')
    c.aHw, c.aHr = v.get(), v.get()
    k(f's_mul_i32 {t0}, {c.w}, {HS}')
    k(f's_add_u32 {t0}, {t0}, {L_H}')
    k(f'v_lshl_add_u32 {t}, {c.n}, 2, {t0}')
    k(f'v_add_u32 {c.aHw}, {t0}, {c.l16}')
    k(f'ds_write_b32 {t}, {c.Ci[0][0]}')
    k(f'ds_write_b32 {t}, {c.Ci[0][0]} offset:{HC}')
    k(f's_add_u32 {t1}, {c.tau}, 1')
    k(f'v_lshl_add_u32 {t}, {c.g}, 2, {c.n}')
    k(f'v_add_u32 {t}, {t1}, {t}')
    k(f'v_and_b32 {base}, 1, {t}')
    k(f'v_mul_u32_u24 {base}, {HC - 4}, {base}')
    k(f'v_lshl_add_u32 {t}, {t}, 2, {t0}')
    k(f'v_add_u32 {c.aHr}, {base}, {t}')
    v.put(k1, base, step, t)
    s.put(m)


def p2_addrs(k, c):
    s, v = k.s, k.v
    t0, t1 = c.t0, c.t1
    t, u, xl = v.get(), v.get(), v.get()
    m = s.get(2)
    c.aUg, c.aUw = v.get(2, 1), v.get()
    c.e14 = s.get()
    k(f's_lshl_b32 {c.e14}, {c.E}, 14')
    k(f's_add_u32 {t0}, {c.e14}, {UOFF + 4096}')
    k(f'v_lshl_add_u32 {c.aUg[0]}, v0, 4, {t0}')
    k(f'v_add_u32 {c.aUg[1]}, 8192, {c.aUg[0]}')
    k(f'v_and_b32 {t}, 1, v0')
    k(f'v_bfe_u32 {u}, v0, 2, 1')
    k(f'v_lshl_add_u32 {t}, {t}, 1, {u}')
    k(f'v_mul_u32_u24 {c.aUw}, {WS}, {t}')
    k(f'v_bfe_u32 {t}, v0, 3, 2')
    k(f'v_xor_b32 {t}, 3, {t}')
    k(f'v_mul_u32_u24 {t}, {PS}, {t}')
    k(f'v_and_b32 {u}, 0xe0, v0')
    k(f'v_add3_u32 {c.aUw}, {c.aUw}, {t}, {u}')
    k(f'v_and_b32 {t}, 2, v0')
    k(f'v_lshl_add_u32 {c.aUw}, {t}, 3, {c.aUw}')
    c.aZ0, c.aZ1, c.aG, c.aQg = (v.get() for _ in range(4))
    c.aSP = v.get(2, 1)
    k(f's_lshl_b32 {t1}, {c.w}, 4')
    k(f's_add_u32 {t0}, {c.e14}, {t1}')
    k(f's_add_u32 {t0}, {t0}, {ZOFF}')
    k(f'v_mov_b32 {c.aSP[0]}, {t0}')
    k(f'v_add_u32 {c.aSP[1]}, 8192, {c.aSP[0]}')
    k(f's_lshl_b32 {t1}, {c.tau}, 13')
    k(f's_add_u32 {t0}, {t0}, {t1}')
    k(f'v_cmp_eq_u32 {m}, 0, {c.l}')
    k(f'v_lshl_add_u32 {c.aZ1}, {c.n}, 6, {t0}')
    k(f'v_lshl_add_u32 {c.aZ1}, {c.g}, 11, {c.aZ1}')
    k(f'v_cndmask_b32 {c.aZ0}, {c.aZ1}, 2.0, {m}')
    k(f's_lshl_b32 {t0}, {c.w}, 2')
    k(f'v_and_b32 {t}, 3, v0')
    k(f'v_and_b32 {u}, 60, v0')
    k(f'v_lshl_add_u32 {xl}, {u}, 2, {t}')
    k(f'v_add_u32 {xl}, {t0}, {xl}')
    c.aYBw, c.aYBr, c.aYAw, c.aYAr = (v.get() for _ in range(4))
    k(f'v_mul_u32_u24 {c.aYBr}, 1088, {t}')
    k(f'v_and_b32 {u}, 12, v0')
    k(f'v_lshl_add_u32 {c.aYBr}, {u}, 2, {c.aYBr}')
    k(f's_lshl_b32 {t0}, {c.w}, 6')
    k(f'v_lshl_add_u32 {u}, {c.g}, 8, {t0}')
    k(f'v_add_u32 {c.aYBr}, {c.aYBr}, {u}')
    c.aO = v.get(4, 1)
    k(f's_lshl_b32 {t0}, {c.tau}, 7')
    k(f's_add_u32 {t0}, {t0}, {c.E}')
    k(f's_lshl_b32 {t0}, {t0}, 3')
    k(f'v_lshl_add_u32 {c.aO[0]}, {xl}, 11, {t0}')
    for cc in range(1, 4):
        k(f'v_add_u32 {c.aO[cc]}, {cc << 19}, {c.aO[0]}')
    k(f'v_and_b32 {t}, 127, {xl}')
    k(f'v_lshrrev_b32 {u}, 7, {xl}')
    k(f'v_lshl_add_u32 {t}, {t}, 1, {u}')
    k(f's_lshl_b32 {t0}, {c.tau}, 12')
    k(f's_add_u32 {t0}, {t0}, {GOFF}')
    k(f'v_lshl_add_u32 {c.aG}, {t}, 4, {t0}')
    k(f's_add_u32 {t0}, {c.e14}, {t1}')
    k(f's_add_u32 {t0}, {t0}, {QOFF}')
    k(f'v_lshl_add_u32 {c.aQg}, {t}, 5, {t0}')
    k(f's_mul_i32 {t0}, {c.w}, {4 * 1088}')
    k(f'v_add_u32 {c.aYBw}, {t0}, {c.l16}')
    k(f'v_lshlrev_b32 {c.aYAw}, 4, v0')
    k(f'v_lshlrev_b32 {c.aYAr}, 2, v0')
    k(f'v_add_u32 {c.aYAr}, {L_YA}, {c.aYAr}')
    v.put(t, u, xl)
    s.put(m, c.e14)


def p2_hstage(k, c):
    s, v = k.s, k.v
    H = c.H
    P = v.get(4, 1)
    U = [v.get(4) for _ in range(4)]
    sh = s.get()
    k(f's_lshl_b32 {sh}, {c.tau}, 4')
    k(f's_xor_b32 {sh}, {sh}, 16')
    k.waitfor(*H, c.Dv)
    k(f'v_mov_b32_dpp {P[0]}, {H[0][3]} wave_shr:1 row_mask:0xf bank_mask:0xf bound_ctrl:0')
    for n in range(1, 4):
        k(f'v_mov_b32_dpp {P[n]}, {H[n - 1][3]} wave_ror:1 row_mask:0xf bank_mask:0xf')
    for n in range(1, 4):
        k(f'v_mov_b32_dpp {P[n]}, {H[n][3]} wave_shr:1 row_mask:0xf bank_mask:0xf')
    for n in range(4):
        for m in (1, 2, 3):
            k(f'v_alignbit_b32 {U[n][m]}, {H[n][m]}, {H[n][m - 1]}, {sh}')
        k(f'v_alignbit_b32 {U[n][0]}, {H[n][0]}, {P[n]}, {sh}')
        k(f'ds_write_b128 {c.aHw}, {U[n]} offset:{64 + 1024 * n}')
    k(f'v_lshlrev_b32 {c.Dv}, {sh}, {c.Dv}')
    k(f's_cmp_eq_u32 {c.tau}, 1')
    lab = k.begin_skip('s_cbranch_scc1', 'noshift')
    for n in range(3):
        k(f'v_mov_b32_dpp {H[n][3]}, {U[n + 1][0]} wave_rol:1 row_mask:0xf bank_mask:0xf')
    for n in range(4):
        k(f'v_pk_mov_b32 {H[n][0:2]}, {U[n][0:2]}, {U[n][2:4]} op_sel:[1,0]')
        k(f'v_mov_b32 {H[n][2]}, {U[n][3]}')
    for n in range(4):
        k(f'v_mov_b32_dpp {H[n][3]}, {U[n][0]} wave_shl:1 row_mask:0xf bank_mask:0xf')
    k.end_skip(lab)
    k(f'ds_write_b32 {c.aHw}, {U[0][0]} offset:{HC + 60}')
    for n in range(4):
        k(f'ds_write_b128 {c.aHw}, {H[n]} offset:{HC + 64 + 1024 * n}')
    c.AD = v.get(4)
    t = P[0]
    ms = [s.get(2) for _ in range(4)]
    k(f'v_lshl_add_u32 {t}, {c.g}, 2, {c.n}')
    for m in range(4):
        k(f'v_cmp_eq_u32 {ms[m]}, {15 - m}, {t}')
    for m in range(4):
        k(f'v_cndmask_b32 {c.AD[m]}, 0, {c.Dv}, {ms[m]}')
    s.put(*ms, sh)
    v.put(P, *H, *U, c.Dv, c.aHw)


def p2_afrags(k, c, ps):
    for p in ps:
        for r in range(16):
            a = R('a', 4 * (16 * p + r), 4)
            for h in range(2):
                k(f'ds_read_b64 {a[2 * h:2 * h + 2]}, {c.aHr} offset:{64 * (16 * p + r) + 8 * h}')
        if p == 3:
            k.v.put(c.aHr)


def p2_xloads(k, c):
    s, v = k.s, k.v
    c.Ul = [v.get(4) for _ in range(4)]
    c.Zl = v.get(8)
    c.G = v.get(4)
    c.qn = v.get(8)
    ul = lambda n: f'global_load_dwordx4 {c.Ul[n]}, {c.aUg[n >> 1]}, {c.pws} offset:{-4096 + 4096 * (n & 1)}{SC}'
    k(ul(0))
    k(ul(1))
    k(f'buffer_load_dwordx4 {c.Zl[0:4]}, {c.aZ0}, {c.srdws}, 0 offen{SC}')
    k(f'buffer_load_dwordx4 {c.Zl[4:8]}, {c.aZ1}, {c.srdws}, 0 offen offset:1024{SC}')
    k('s_mov_b64 exec, 0xffff')
    k(f'global_load_dwordx4 {c.SP[0:4]}, {c.aSP[0]}, {c.pws}{SC}')
    k(f'global_load_dwordx4 {c.SP[4:8]}, {c.aSP[1]}, {c.pws}{SC}')
    k('s_mov_b64 exec, -1')
    k(ul(2))
    k(ul(3))
    k(f'global_load_dwordx4 {c.G}, {c.aG}, {c.pws}{SC}')
    for h in range(2):
        k(f'global_load_dwordx4 {c.qn[4 * h:4 * h + 4]}, {c.aQg}, {c.pws} offset:{16 * h}{SC}')
    v.put(c.aUg, c.aZ0, c.aZ1, c.aSP, c.aG, c.aQg, c.l, c.l16, c.n, c.g)


def p2_main(k, c):
    s, v = k.s, k.v
    o = c.o
    Zl, SP, Ul, G, qn, Ci = c.Zl, c.SP, c.Ul, c.G, c.qn, c.Ci
    uw = lambda n: f'ds_write_b128 {c.aUw}, {Ul[n]} offset:{L_U + 256 + 256 * n}'
    rd = lambda dst, q, r: f'ds_read_b128 {dst}, {c.aB} offset:{L_U + 16 + 256 * q + 16 * (15 - r)}'
    k(uw(0))
    k(uw(1))
    k('s_waitcnt lgkmcnt(0)')
    k('s_barrier')
    stamp(k, c, 'ubar')
    v.put(Ul[0], Ul[1])
    B0 = [v.get(4) for _ in range(16)]
    B1 = [v.get(4) for _ in range(16)]
    Di = [v.get(4) for _ in range(4)]
    acc = [v.get(4) for _ in range(2)]
    ya, ob, t = v.get(4), v.get(2), v.get(2)
    gq = c.Fa
    Bf = [Zl[0:4], Zl[4:8]]
    ring2 = [SP[0:4], SP[4:8], Ul[2], Ul[3]]
    ring3 = ring2 + Di[:o.get('r3', 2)]
    Y = Ci
    NPRE = o.get('npre', 6)
    for r in range(NPRE):
        k(rd(B0[r], 0, r))
    A = lambda p, r: R('a', 4 * (16 * p + r), 4)
    fr = [Zl[0:2], Zl[4:6], Zl[2:4], Zl[6:8]]
    mf = []
    seen = set()
    def add(cc, a, b, tag=None):
        d = acc[cc & 1]
        mf.append((cc, tag, f'v_mfma_f32_16x16x32_bf16 {d}, {a}, {b}, {d if cc in seen else 0}'))
        seen.add(cc)
    streams = []
    def addstream(cc, p, q, r, reg):
        streams.append((q, r, reg))
        add(cc, A(p, r), reg, ('s', len(streams) - 1))
        if r == 0 and p == 0:
            add(cc, c.AD, reg, ('s', len(streams) - 1))
    add(0, c.AD, B0[0])
    for r in range(16):
        add(0, A(0, r), B0[r])
    for r in range(16):
        add(1, A(1, r), B0[r])
    add(1, c.AD, B1[0])
    for r in range(16):
        add(1, A(0, r), B1[r])
    for r in range(16):
        add(2, A(2, r), B0[r])
        add(2, A(1, r), B1[r])
        addstream(2, 0, 2, r, ring2[r % 4])
    n3 = len(ring3)
    order3 = ring3[4:] + ring3[:4]
    for r in range(16):
        add(3, A(3, r), B0[r])
        addstream(3, 1, 2, r, order3[(2 * r) % n3])
        add(3, A(2, r), B1[r])
        addstream(3, 0, 3, r, order3[(2 * r + 1) % n3])
    sa = o.get('sa', 20)
    sta = []
    for jj in range(4):
        sta.append((-1, ('a', jj), f'v_mfma_f32_16x16x16_bf16 {Di[jj]}, {fr[jj]}, {c.Fai}, 0'))
        sta.append((-1, ('a', jj), f'v_mfma_f32_16x16x16_bf16 {Ci[jj]}, {fr[jj]}, {c.Far}, {Ci[jj]}'))
    mf[sa:sa] = sta
    sb = o.get('sb', [38, 49, 61, 74])
    for jj in range(4):
        mf.insert(sb[jj], (-1, ('b', jj), f'v_mfma_f32_16x16x32_bf16 {Y[jj]}, {c.Fb}, {Bf[jj & 1]}, 0'))
    st = Stream([m[2] for m in mf])
    pos = lambda tag: [i for i, m in enumerate(mf) if m[1] == tag]
    last = {cc: max(i for i, m in enumerate(mf) if m[0] == cc) for cc in range(4)}
    g = st.place(0, [rd(B0[r], 0, r) for r in range(NPRE, 16)])
    g = st.place(g + 1, [rd(B1[r], 1, r) for r in range(16)])
    yaw = lambda cc: f'ds_write_b128 {c.aYAw}, {acc[cc & 1]} offset:{L_YA + 4096 * cc}@ya{cc}'
    g = st.place(max(g + 1, last[0] + 4), [yaw(0)])
    g = st.place(g + 3, [uw(2)])
    g = st.place(g + 3, [uw(3) + '@uw'])
    gu = st.barrier_after(g + 4, 'uw')
    prev_use = {}
    for si, (q, r, reg) in enumerate(streams):
        p_ = pos(('s', si))
        lo = prev_use.get(str(reg), None)
        if lo is None:
            lo = max(gu, p_[0] - 12)
            if any(str(reg) == str(d) for d in Di):
                lo = max(lo, pos(('b', 3))[0])
        gg = st.place(lo, [rd(reg, q, r)])
        assert gg < p_[0] - 3, (si, gg, p_)
        prev_use[str(reg)] = p_[-1]
    g1 = st.place(last[1] + 4, [yaw(1)])
    pre_a = [f'v_perm_b32 {SP[i]}, {SP[i]}, {SP[i]}, {c.psel}' for i in range(8)]
    pre_a += [f'v_fma_f32 {Ci[jj][0]}, {SP[4 + jj]}, {c.sgn}, {SP[jj]}' for jj in range(4)]
    g = st.place(o.get('zs', 4), [f'v_swap_b32 {Zl[1]}, {Zl[4]}', f'v_swap_b32 {Zl[3]}, {Zl[6]}'], per_gap=1)
    g = st.place(g + 1, pre_a)
    assert g < sa - 1, (g, sa)
    g = sa + 4
    gw_ = 0
    for jj in range(4):
        a, b = Ci[jj], Di[jj]
        tw = []
        for h in (0, 2):
            for i in (h, h + 1):
                tw.append(f'v_mul_f32 {t[i & 1]}, {b[i]}, {c.tw2s[i]}')
                tw.append(f'v_mul_f32 {b[i]}, {b[i]}, {c.tw2c[i]}')
            for i in (h, h + 1):
                tw.append(f'v_fma_f32 {b[i]}, -{a[i]}, {c.tw2s[i]}, {b[i]}')
                tw.append(f'v_fma_f32 {a[i]}, {a[i]}, {c.tw2c[i]}, {t[i & 1]}')
        cv = [f'v_cvt_pk_bf16_f32 {Bf[jj & 1][2 + h]}, {b[2 * h]}, {b[2 * h + 1]}' for h in range(2)]
        cv += [f'v_cvt_pk_bf16_f32 {Bf[jj & 1][h]}, {a[2 * h]}, {a[2 * h + 1]}' for h in range(2)]
        g = st.place(max(g, pos(('a', jj))[-1] + 3), tw)
        g = st.place(max(g, sa + 7), cv)
        pb = pos(('b', jj))[0]
        assert g < pb - 1, ('stage b too early', jj, g, pb)
        sys.stderr.write(f'tw{jj} done at gap {g}, stage b at {pb}\n')
        gw_ = st.place(pb + 3, [f'ds_write_b128 {c.aYBw}, {Y[jj]} offset:{L_YB + 1088 * jj}' + ('@yb' if jj == 3 else '')])
    assert gw_ > g1
    gb = st.barrier_after(gw_ + 4, 'yb')
    gy = st.place(gb, [f'ds_read_b128 {Y[w]}, {c.aYBr} offset:{L_YB + 4 * 1088 * w}' for w in range(4)])

    def epi(cc):
        e2 = [f'ds_read2st64_b32 {ya[0:2]}, {c.aYAr} offset0:{16 * cc} offset1:{16 * cc + 4}',
              f'ds_read2st64_b32 {ya[2:4]}, {c.aYAr} offset0:{16 * cc + 8} offset1:{16 * cc + 12}']
        e3 = [f'v_fma_f32 {ya[w]}, {gq[w]}, {ya[w]}, {Y[w][cc]}' for w in range(4)]
        e3 += [f'v_cvt_pk_bf16_f32 {ob[h]}, {ya[2 * h]}, {ya[2 * h + 1]}' for h in range(2)]
        e4 = [f'global_store_dwordx2 {c.aO[cc]}, {ob}, {c.pout}']
        return e2, e3, e4

    def pre(cc):
        o1 = []
        for h in range(2):
            o1.append(f'v_lshlrev_b32 {gq[2 * h]}, 16, {qn[2 * cc + h]}')
            o1.append(f'v_and_b32 {gq[2 * h + 1]}, 0xffff0000, {qn[2 * cc + h]}')
        o1 += [f'v_mul_f32 {gq[w]}, {G[cc]}, {gq[w]}' for w in range(4)]
        o2 = [f'v_fma_f32 {Y[w][cc]}, -{G[cc]}, {Y[w][cc]}, {Y[w][cc]}' for w in range(4)]
        return o1, o2
    gp = g + 1
    gfree = gu
    for cc in range(4):
        o1, o2 = pre(cc)
        gp = st.place(gp, o1)
        if cc == 0:
            e2, e3, e4 = epi(0)
            g = st.place(gfree, e2)
            gp = st.place(max(g + 5, gp), [f'v_mul_f32 {ya[w]}, {gq[w]}, {ya[w]}' for w in range(4)] + [f'v_sub_f32 {G[0]}, 1.0, {G[0]}'])
            g = st.place(max(gp, gy + 3), [f'v_fmac_f32 {ya[w]}, {G[0]}, {Y[w][0]}' for w in range(4)] + e3[4:])
            gfree = g + 1
            g = st.place(g + 1, e4)
            sys.stderr.write(f'store {cc} at gap {g} of {len(mf)}\n')
            gp += 1
            continue
        gp = st.place(max(gp, gy + 4), o2)
        if cc < 3:
            e2, e3, e4 = epi(cc)
            if cc == 1:
                gfree = max(gfree, gb)
            if cc == 2:
                g2 = st.place(last[2] + 4, [yaw(2)])
                gfree = max(gfree, st.barrier_after(g2 + 4, 'ya2'))
            g = st.place(gfree, e2)
            g = st.place(max(g + 5, gp), e3)
            gfree = g + 1
            gp = g + 1
            g = st.place(g + 1, e4)
            sys.stderr.write(f'store {cc} at gap {g} of {len(mf)}\n')
    assert not st.tail
    for pat in c.drop:
        st.vec = [[x for x in g_ if not x.startswith(pat) or '@' in x] for g_ in st.vec]
        st.sca = [[x for x in g_ if not x.startswith(pat)] for g_ in st.sca]
    st.emit(k)
    stamp(k, c, 'conv')
    k(yaw(3).split('@')[0])
    k('s_waitcnt lgkmcnt(0)')
    k('s_barrier')
    e2, e3, e4 = epi(3)
    for ins in e2 + e3 + e4:
        k(ins)


def sync_go(k, c):
    s, v = k.s, k.v
    c.srdd = s.get(4, 4)
    c.ago = v.get()
    c.one = v.get()
    k(f's_mov_b32 {c.srdd[0]}, {c.pdbg[0]}')
    k(f's_and_b32 {c.srdd[1]}, {c.pdbg[1]}, 0xffff')
    k(f's_mov_b32 {c.srdd[2]}, 4')
    k(f's_mov_b32 {c.srdd[3]}, 0x00020000')
    k(f'v_lshl_add_u32 {c.ago}, {c.l}, 2, {c.lead}')
    k(f'v_mov_b32 {c.one}, 1')
    c.go_store = f'buffer_store_dword {c.one}, {c.ago}, {c.srdd}, 0 offen{SC}'


def sync_pre(k, c):
    s, v = k.s, k.v
    c.go, c.az, c.aat, c.apoll = (v.get() for _ in range(4))
    m = s.get(2)
    k(f'v_mov_b32 {c.az}, 0')
    k(f'global_load_dword {c.go}, {c.az}, {c.pdbg}{SC}')
    if c.hpos == 2:
        for x in c.Lh:
            k(x)
    v.put(*c.late_free, c.ago)
    k(f's_and_b32 {c.t0}, s2, 15')
    k(f's_lshl_b32 {c.t0}, {c.t0}, 8')
    k(f's_add_u32 {c.t0}, {c.t0}, {COFF}')
    k(f'v_cmp_gt_u32 {m}, {NREP}, v0')
    k(f'v_lshl_add_u32 {c.aat}, v0, 12, {c.t0}')
    k(f's_and_b32 {c.t0}, {c.x}, {NREP - 1}')
    k(f's_lshl_b32 {c.t0}, {c.t0}, 12')
    k(f's_add_u32 {c.t0}, {c.t0}, {COFF}')
    k(f'v_cndmask_b32 {c.aat}, 2.0, {c.aat}, {m}')
    k(f'v_lshl_add_u32 {c.apoll}, {c.n}, 8, {c.t0}')
    s.put(m)


def sync_arrive(k, c):
    s, v = k.s, k.v
    k.waitfor(c.go, vm='stores')
    stamp(k, c, 'ack')
    k(f'v_readfirstlane_b32 {c.t0}, {c.go}')
    k(f's_mov_b32 {c.t1}, 0')
    k(f's_or_b32 {c.t0}, {c.t0}, {c.w}')
    lab = k.begin_skip('s_cbranch_scc1', 'gook')
    lp = k.loop_label('gospin')
    k(f'global_load_dword {c.go}, {c.az}, {c.pdbg}{SC}')
    k(f's_add_u32 {c.t1}, {c.t1}, 1')
    k('s_waitcnt vmcnt(0)')
    k(f'v_readfirstlane_b32 {c.t0}, {c.go}')
    k(f's_lshr_b32 {c.t2}, {c.t1}, 20')
    k(f's_or_b32 {c.t0}, {c.t0}, {c.t2}')
    k(f's_cbranch_scc0 {lp}')
    k.end_skip(lab)
    k('s_barrier')
    k(f'buffer_atomic_add {c.one}, {c.aat}, {c.srdws}, 0 offen{SC}')
    v.put(c.az, c.aat, c.one)


def sync_wait(k, c):
    s, v = k.s, k.v
    d = c.go
    k(f's_cmp_lg_u32 {c.w}, 0')
    lab = k.begin_skip('s_cbranch_scc1', 'nopoll')
    k(f's_mov_b32 {c.t1}, 0')
    lp = k.loop_label('poll')
    k(f'global_load_dword {d}, {c.apoll}, {c.pws}{SC}')
    k(f's_add_u32 {c.t1}, {c.t1}, 1')
    k(f's_cmp_lt_u32 {c.t1}, 0x100000')
    k(f's_cselect_b32 {c.t2}, 16, 0')
    k('s_waitcnt vmcnt(0)')
    k(f'v_cmp_gt_u32 vcc, {c.t2}, {d}')
    k(f's_cbranch_vccnz {lp}')
    k.end_skip(lab)
    k('s_barrier')
    v.put(c.apoll, d)


def kern(opts):
    k = Kern(NAME + '_kernel')
    c = Ctx()
    c.stamps = opts.get('stamps', None)
    c.stretch = opts.get('stretch', None)
    c.clk = 's_memtime' if opts.get('cyc') else 's_memrealtime'
    c.prefetch = opts.get('prefetch', True)
    c.touch = opts.get('touch', True)
    c.ring = opts.get('ring', 6)
    c.drop = opts.get('drop', [])
    c.prestart = opts.get('prestart', 8)
    c.o = opts
    c.hpos = opts.get('hpos', 1)
    setup(k, c)
    k.hold()
    cb = k.capture(consts_b, k, c)
    k.interleave(cb, c.loads, opts.get('every', 3))
    k.release()
    k.v.put(*c.setup_free_v)
    k.s.put(*c.setup_free_s)
    stamp(k, c, 'cb')
    consts_a(k, c)
    sync_go(k, c)
    extras(k, c)
    stamp(k, c, 'ca')
    early = opts.get('early', 0)
    if early >= 1:
        p2_addrs(k, c)
    stamp(k, c, 'pre')
    p1_dft(k, c)
    stamp(k, c, 'dft1')
    p1_kv(k, c)
    stamp(k, c, 'kv')
    sync_pre(k, c)
    p2_consts(k, c)
    if early < 1:
        p2_addrs(k, c)
    hs_first = opts.get('hsfirst', c.hpos != 2)
    if hs_first:
        p2_hstage(k, c)
    stamp(k, c, 'shadow')
    sync_arrive(k, c)
    stamp(k, c, 'arr')
    if not hs_first:
        p2_hstage(k, c)
    k('s_waitcnt lgkmcnt(0)')
    n1 = opts.get('afr', 4)
    p2_afrags(k, c, range(0, n1))
    stamp(k, c, 'af')
    sync_wait(k, c)
    stamp(k, c, 'sync')
    p2_xloads(k, c)
    p2_afrags(k, c, range(n1, 4))
    stamp(k, c, 'xiss')
    p2_main(k, c)
    stamp(k, c, 'epi')
    stamp(k, c, 'end', 's_waitcnt vmcnt(0)')
    stamps_out(k, c)
    k.raw(f'{c.end}:')
    k('s_endpgm')
    return k


HEADER = open('cdna_kernels/%s.s.ref' % NAME).read().split('; Override launch')[0]


def build(opts):
    k = kern(opts)
    body = k.finalize()
    sys.stderr.write(f'{k.stats} vhi={k.v.hi_water} shi={k.s.hi_water}\n')
    out = [HEADER.rstrip('\n'), f'; @launch grid=(256,1,1) block=(256,1,1) lds={LDS_BYTES}',
           '.amdgcn_target "amdgcn-amd-amdhsa--gfx950"', '.text',
           f'.globl {k.name}', '.p2align 8', f'.type {k.name},@function', f'{k.name}:', body,
           '.section .rodata,"a"', '.p2align 6', f'.amdhsa_kernel {k.name}',
           '  .amdhsa_next_free_vgpr 512', '  .amdhsa_next_free_sgpr 102', '  .amdhsa_accum_offset 256',
           '  .amdhsa_group_segment_fixed_size 0', '  .amdhsa_kernarg_size 120', '  .amdhsa_user_sgpr_count 2',
           '  .amdhsa_user_sgpr_kernarg_segment_ptr 1', '  .amdhsa_system_sgpr_workgroup_id_x 1',
           '  .amdhsa_float_denorm_mode_32 3', '.end_amdhsa_kernel']
    return '\n'.join(out) + '\n'


if __name__ == '__main__':
    opts = {}
    for a in sys.argv[2:]:
        kk, vv = a.split('=', 1)
        opts[kk] = eval(vv)
    open(sys.argv[1], 'w').write(build(opts))
```

```python
import sys, struct
from asmgen import Kern, R, I

NAME = 'gated_mix__ssm_conv_h3__spectral_fnet__prompt'
UOFF, ZOFF, QOFF, GOFF, COFF, SOFF = 0, 2 << 20, 4 << 20, 6 << 20, (6 << 20) + 65536, 8 << 20
L_X = 0
L_H = 10240
HC = 4224
HS = 2 * HC
PS, WS = 1280, 5152
L_U = 10240
L_YB = L_U + 4 * WS
L_YA = L_YB + 16 * 1088
L_H = L_YA + 4 * 4096
LDS_BYTES = L_H + 4 * HS
NREP = 8
SC = ' sc1'


def fl(x):
    return '0x%08x' % struct.unpack('<I', struct.pack('<f', x))[0]


class Ctx:
    pass


def stamp(k, c, name, pre=None):
    if c.stamps and name in c.stamps:
        if pre:
            k(pre)
        i = c.stamps.index(name)
        k(f'{c.clk} {c.st[2 * i:2 * i + 2]}')
        k('s_waitcnt lgkmcnt(0)')


def stamps_out(k, c):
    if not c.stamps:
        return
    if c.stretch is not None:
        k(f's_memrealtime {c.st[22:24]}')
        k(f's_sub_u32 {c.t0}, {c.st[2]}, {c.st[0]}')
        k(f's_mul_i32 {c.t0}, {c.t0}, {c.stretch}')
        k(f's_min_u32 {c.t0}, {c.t0}, 100000')
        k('s_waitcnt lgkmcnt(0)')
        k(f's_mov_b32 {c.t1}, {c.st[22]}')
        lp = k.loop_label('stretch')
        k(f's_memrealtime {c.st[22:24]}')
        k('s_waitcnt lgkmcnt(0)')
        k(f's_sub_u32 {c.t2}, {c.st[22]}, {c.t1}')
        k(f's_cmp_lt_u32 {c.t2}, {c.t0}')
        k(f's_cbranch_scc1 {lp}')
        return
    t = k.v.get(2)
    a = k.v.get()
    k(f's_lshl_b32 {c.t0}, s2, 2')
    k(f's_add_u32 {c.t0}, {c.t0}, {c.w}')
    k(f's_lshl_b32 {c.t0}, {c.t0}, 7')
    k(f's_add_u32 {c.t0}, {c.t0}, {SOFF}')
    k(f'v_mov_b32 {a}, {c.t0}')
    for i in range(len(c.stamps)):
        k(f'v_mov_b32 {t[0]}, {c.st[2 * i]}')
        k(f'v_mov_b32 {t[1]}, {c.st[2 * i + 1]}')
        k(f'global_store_dwordx2 {a}, {t}, {c.pws} offset:{8 * i}')
    k.v.put(t, a)


def sincos(k, base, step, mults, cs, sn, negsin=False):
    for i, m in enumerate(mults):
        if m:
            k(f'v_fmamk_f32 {sn[i]}, {step}, {fl(m)}, {base}')
    for i, m in enumerate(mults):
        src = base if m == 0 else sn[i]
        k(f'v_cos_f32 {cs[i]}, {src}')
        k(f'v_sin_f32 {sn[i]}, {"-" if negsin else ""}{src}')


def cmul_tw(k, a, b, cc, ss, t):
    for h in (0, 2):
        k(f'v_pk_mul_f32 {t[h:h + 2]}, {b[h:h + 2]}, {ss[h:h + 2]}')
        k(f'v_pk_mul_f32 {b[h:h + 2]}, {b[h:h + 2]}, {cc[h:h + 2]}')
    for h in (0, 2):
        k(f'v_pk_fma_f32 {b[h:h + 2]}, {a[h:h + 2]}, {ss[h:h + 2]}, {b[h:h + 2]} neg_lo:[1,0,0] neg_hi:[1,0,0]')
        k(f'v_pk_fma_f32 {a[h:h + 2]}, {a[h:h + 2]}, {cc[h:h + 2]}, {t[h:h + 2]}')


class Stream:
    def __init__(self, mfmas):
        self.m = list(mfmas)
        n = len(self.m)
        self.vec = [[] for _ in range(n)]
        self.sca = [[] for _ in range(n)]
        self.lgw = [None] * n
        self.tail = []

    def place(self, g, instrs, per_gap=2):
        last = g
        used = 0
        for ins in instrs:
            while g < len(self.m):
                mem = ins.startswith(('ds_', 'global_', 'buffer_'))
                ok = len(self.vec[g]) < 2 and used < per_gap
                if ok and mem and used and not self.vec[g][-1].startswith(('ds_', 'global_', 'buffer_')):
                    ok = False
                if ok and mem and any(x.startswith('ds_') for x in self.vec[g]) and ins.startswith('ds_'):
                    ok = False
                if ok:
                    break
                g += 1
                used = 0
            if g >= len(self.m):
                self.tail.append(ins)
                last = len(self.m)
                continue
            self.vec[g].append(ins)
            used += 1
            last = g
        return last

    def scalar(self, g, ins):
        self.sca[g].append(ins)

    def barrier_after(self, g, mark):
        self.lgw[g] = mark
        self.sca[g + 1].append('s_barrier')
        return g + 1

    def emit(self, k):
        isa = lambda x: x.split('@')[0]
        for i, m in enumerate(self.m):
            k(m)
            mem = [x for x in self.vec[i] if x.startswith(('ds_', 'global_', 'buffer_'))]
            alu = [x for x in self.vec[i] if x not in mem]
            look = [isa(x) for x in self.vec[i]]
            if i + 1 < len(self.m):
                look.append(self.m[i + 1])
                if self.sca[i + 1]:
                    look += [isa(x) for x in self.vec[i + 1]]
                    if i + 2 < len(self.m):
                        look.append(self.m[i + 2])
            k.waitfor(*look, lg=self.lgw[i])
            for x in self.sca[i]:
                k(x)
            for x in mem + alu:
                k(isa(x))
                if '@' in x:
                    k.mark(x.split('@')[1])
        for x in self.tail:
            k(isa(x))
            if '@' in x:
                k.mark(x.split('@')[1])


def setup(k, c):
    s, v = k.s, k.v
    c.end = k.label('end')
    k('s_cmp_ge_u32 s2, 256')
    k(f's_cbranch_scc1 {c.end}')
    a0 = s.get(8, 4); a1 = s.get(4, 4); a2 = s.get(8, 4)
    k(f's_load_dwordx8 {a0}, s[0:1], 0')
    k(f's_load_dwordx8 {a2}, s[0:1], 88')
    k(f's_load_dwordx4 {a1}, s[0:1], 32')
    c.pq, c.pk, c.pv, c.psk = a0[0:2], a0[2:4], a0[4:6], a0[6:8]
    c.ph, c.pD = a1[0:2], a1[2:4]
    c.pgw, c.pout, c.pdbg, c.pws = a2[0:2], a2[2:4], a2[4:6], a2[6:8]
    if c.stamps:
        c.st = s.get(24, 4)
        if 'start' in c.stamps:
            i = c.stamps.index('start')
            k(f'{c.clk} {c.st[2 * i:2 * i + 2]}')
    if c.prefetch == 'first':
        pc = s.get(2)
        c.dummy2, a = v.get(), v.get()
        k(f's_getpc_b64 {pc}')
        here = k.label('pc')
        k.raw(f'{here}:')
        k(f's_lshl_b32 s3, s2, 9')
        k(f's_and_b32 s3, s3, 0x3000')
        k(f'v_lshl_add_u32 {a}, v0, 4, s3')
        k(f'v_min_u32 {a}, {c.end}-{here}, {a}')
        k(f'global_load_dword {c.dummy2}, {a}, {pc}')
        s.put(pc)
        v.put(a)
    c.x, c.j, c.w, c.t0, c.t1, c.t2, c.s0, c.iA, c.E, c.tau, c.lead = (s.get() for _ in range(11))
    c.l, c.l16, c.n, c.g = (v.get() for _ in range(4))
    t0, t1 = c.t0, c.t1
    k(f'v_lshrrev_b32 {c.l}, 6, v0')
    k(f's_and_b32 {c.x}, s2, 7')
    k(f'v_readfirstlane_b32 {c.w}, {c.l}')
    k(f's_lshr_b32 {c.j}, s2, 3')
    k(f'v_and_b32 {c.l}, 63, v0')
    k(f'v_lshlrev_b32 {c.l16}, 4, {c.l}')
    k(f's_lshl_b32 {c.E}, {c.x}, 4')
    k(f's_and_b32 {t1}, {c.j}, 15')
    k(f's_add_u32 {t0}, {c.E}, {t1}')
    k(f's_sub_u32 {t1}, 256, {t0}')
    k(f's_cmp_eq_u32 {t0}, 0')
    k(f's_cselect_b32 {t1}, 128, {t1}')
    k(f's_cmp_lt_u32 {c.j}, 16')
    k(f's_cselect_b32 {c.s0}, {t0}, {t1}')
    k(f's_and_b32 {t0}, {c.w}, 2')
    k(f's_add_u32 {c.iA}, {c.w}, {t0}')
    k(f's_lshl_b32 {t0}, {c.iA}, 8')
    k(f's_add_u32 {t0}, {t0}, {c.s0}')
    k(f's_lshl_b32 {t0}, {t0}, 10')
    aq = v.get(4, 1)
    k(f'v_add_u32 {aq[0]}, {t0}, {c.l16}')
    k(f's_sub_u32 {t1}, {2048 * 1024 + 1008}, {t0}')
    k(f's_and_b32 {t1}, {t1}, {2048 * 1024 - 1}')
    k(f'v_sub_u32 {aq[1]}, {t1}, {c.l16}')
    k(f'v_add_u32 {aq[2]}, {512 * 1024}, {aq[0]}')
    k(f's_sub_u32 {t1}, {1536 * 1024 + 1008}, {t0}')
    k(f'v_sub_u32 {aq[3]}, {t1}, {c.l16}')
    k(f'v_and_b32 {c.n}, 15, v0')
    k(f'v_lshrrev_b32 {c.g}, 4, {c.l}')
    P, cb, akv, akh, ask, ah, aD, acl, zero = (v.get() for _ in range(9))
    ap = v.get(2, 1)
    k(f'v_and_b32 {P}, 31, v0')
    k(f'v_lshrrev_b32 {cb}, 5, {c.l}')
    k(f's_lshl_b32 {t0}, {c.j}, 3')
    k(f's_add_u32 {t0}, {t0}, {c.w}')
    k(f's_lshl_b32 {t0}, {t0}, 6')
    k(f's_add_u32 {t0}, {t0}, {c.x}')
    k(f's_add_u32 {t0}, {t0}, 32')
    k(f's_lshl_b32 {t0}, {t0}, 7')
    k(f'v_lshl_add_u32 {akv}, {cb}, 15, {t0}')
    k(f'v_lshl_add_u32 {akv}, {P}, 2, {akv}')
    k(f'v_subrev_u32 {akh}, 7168, {akv}')
    k(f'v_and_b32 {ap[0]}, 1, {c.g}')
    k(f'v_lshl_add_u32 {ap[0]}, {ap[0]}, 2, {cb}')
    k(f's_lshl_b32 {t0}, {c.s0}, 3')
    k(f's_add_u32 {t0}, {t0}, {c.w}')
    k(f's_lshl_b32 {t0}, {t0}, 7')
    k(f'v_lshl_add_u32 {ap[0]}, {ap[0]}, 18, {t0}')
    k(f'v_lshl_add_u32 {ap[0]}, {c.n}, 3, {ap[0]}')
    k(f'v_add_u32 {ap[1]}, {512 * 1024}, {ap[0]}')
    srdk = s.get(4, 4)
    c.srdws = s.get(4, 4)
    k(f's_mov_b32 {srdk[2]}, {2 << 20}')
    k(f's_mov_b32 {srdk[3]}, 0x00020000')
    k(f's_mov_b32 {c.srdws[2]}, {1 << 28}')
    k(f's_mov_b32 {c.srdws[3]}, 0x00020000')
    c.qd = [v.get(4), v.get(4)]
    c.qm = [v.get(4), v.get(4)]
    k('s_waitcnt lgkmcnt(0)')
    stamp(k, c, 'karg')
    if c.prefetch == 'scalar':
        pc = s.get(2)
        c.sdummy = s.get()
        k(f's_getpc_b64 {pc}')
        here = k.label('pc')
        k.raw(f'{here}:')
        k(f's_lshl_b32 {t0}, {c.j}, 2')
        k(f's_add_u32 {t0}, {t0}, {c.w}')
        k(f's_lshl_b32 {t0}, {t0}, 7')
        k(f's_min_u32 {t0}, {t0}, {c.end}-{here}')
        k(f's_load_dword {c.sdummy}, {pc}, {t0}')
        s.put(pc)
    k(f'global_load_dwordx4 {c.qd[0]}, {aq[0]}, {c.pq}')
    k(f's_mov_b32 {srdk[0]}, {c.pk[0]}')
    k(f'global_load_dwordx4 {c.qm[0]}, {aq[1]}, {c.pq}')
    k(f's_and_b32 {srdk[1]}, {c.pk[1]}, 0xffff')
    k(f'global_load_dwordx4 {c.qd[1]}, {aq[2]}, {c.pq}')
    k(f's_mov_b32 {c.srdws[0]}, {c.pws[0]}')
    k(f'global_load_dwordx4 {c.qm[1]}, {aq[3]}, {c.pq}')
    k(f's_and_b32 {c.srdws[1]}, {c.pws[1]}, 0xffff')
    k(f's_lshr_b32 {t0}, {c.j}, 1')
    k(f's_add_u32 {c.E}, {c.E}, {t0}')
    k(f's_and_b32 {c.tau}, {c.j}, 1')
    k(f's_lshl_b32 {t1}, {c.x}, 9')
    k(f'v_lshl_add_u32 {ask}, {P}, 4, {t1}')
    k(f's_lshl_b32 {t0}, {c.E}, 2')
    k(f's_add_u32 {t0}, {t0}, {c.w}')
    k(f's_lshl_b32 {t1}, {t0}, 12')
    k(f'v_add_u32 {ah}, {t1}, {c.l16}')
    k(f's_lshl_b32 {t0}, {t0}, 1')
    k(f'v_mov_b32 {aD}, {t0}')
    k(f's_or_b32 {c.lead}, s2, {c.w}')
    k(f's_cselect_b32 {c.lead}, 2.0, 0')
    k(f's_add_u32 {t0}, {c.lead}, {COFF}')
    k(f'v_lshl_add_u32 {acl}, {c.l}, 9, {t0}')
    k(f'v_mov_b32 {zero}, 0')
    c.K, c.V = v.get(11, 1), v.get(8, 1)
    c.gw, c.skw = v.get(4), v.get(4)
    c.qp = [v.get(4), v.get(4)]
    c.H = [v.get(4) for _ in range(4)]
    c.Dv = v.get()
    L = []
    L += [f'buffer_store_dword {zero}, {acl}, {c.srdws}, 0 offen{SC}',
          f'buffer_store_dword {zero}, {acl}, {c.srdws}, 0 offen offset:256{SC}']
    c.Lq = [f'global_load_dwordx2 {c.qp[eh][2 * r:2 * r + 2]}, {ap[r]}, {c.pq} offset:{512 * eh}' for eh in range(2) for r in range(2)]
    if c.qmode == 'early':
        L += c.Lq
    L += [f'global_load_dwordx4 {c.gw}, {c.l16}, {c.pgw}']
    L += [f'buffer_load_dword {c.K[t]}, {akh}, {srdk}, 0 offen offset:{1024 * t}' for t in range(3)]
    L += [f'global_load_dword {c.K[3 + t]}, {akv}, {c.pk} offset:{1024 * (t - 4)}' for t in range(8)]
    L += [f'global_load_dwordx4 {c.skw}, {ask}, {c.psk}']
    L += [f'global_load_dword {c.V[t]}, {akv}, {c.pv} offset:{1024 * (t - 4)}' for t in range(8)]
    c.Lh = [f'global_load_dwordx4 {c.H[n]}, {ah}, {c.ph} offset:{1024 * n}' for n in range(4)]
    c.Lh += [f'global_load_ushort {c.Dv}, {aD}, {c.pD}']
    if c.hpos == 0:
        L += c.Lh
    c.late_free = [ah, aD, ap]
    c.loads = [('i', I(x)) for x in L]
    c.P, c.cb = P, cb
    c.setup_free_v = [aq, akv, akh, ask, acl, zero]
    c.setup_free_s = [srdk]


def extras(k, c):
    v, s = k.v, k.s
    c.dummy = v.get()
    a = v.get()
    if c.touch:
        k(f's_lshl_b32 {c.t0}, {c.x}, 7')
        k(f'v_mov_b32 {a}, {c.t0}')
        k(f'global_load_dword {c.dummy}, {a}, {c.pout}')
    if c.prefetch is True:
        pc = s.get(2)
        k(f's_getpc_b64 {pc}')
        here = k.label('pc')
        k.raw(f'{here}:')
        k(f's_and_b32 {c.t0}, {c.j}, 1')
        k(f's_lshl_b32 {c.t0}, {c.t0}, 2')
        k(f's_add_u32 {c.t0}, {c.t0}, {c.w}')
        k(f's_lshl_b32 {c.t0}, {c.t0}, 11')
        k(f'v_lshl_add_u32 {a}, {c.l}, 5, {c.t0}')
        k(f'v_min_u32 {a}, {c.end}-{here}, {a}')
        c.dummy2 = v.get()
        k(f'global_load_dword {c.dummy2}, {a}, {pc}')
        s.put(pc)
    v.put(a)


MULT = [0, 1, 2, 3, 16, 17, 18, 19]


def consts_b(k, c):
    s, v = k.s, k.v
    base, step, t = v.get(), v.get(), v.get()
    cs, sn = v.get(8), v.get(8)
    c.sg = s.get()
    k(f's_mov_b32 {c.sg}, 0x80008000')
    k(f'v_mul_u32_u24 {base}, {c.g}, {c.n}')
    k(f'v_cvt_f32_u32 {step}, {c.n}')
    k(f'v_cvt_f32_u32 {base}, {base}')
    k(f'v_mul_f32 {step}, {fl(1 / 32)}, {step}')
    k(f'v_mul_f32 {base}, {fl(1 / 8)}, {base}')
    sincos(k, base, step, MULT, cs, sn)
    c.CBc = [v.get(4), v.get(4)]
    c.CBs = [v.get(4), v.get(4)]
    c.CBn = [v.get(4), v.get(4)]
    c.a2, c.gea = v.get(), v.get()
    k(f's_lshl_b32 {c.t1}, {c.w}, 2')
    k(f'v_lshrrev_b32 {c.a2}, 2, {c.n}')
    k(f'v_add_u32 {t}, {c.t1}, {c.a2}')
    k(f'v_mul_u32_u24 {c.gea}, {c.g}, {t}')
    for m in range(4):
        k(f'v_cvt_pk_bf16_f32 {c.CBc[0][m]}, {cs[2 * m]}, {cs[2 * m + 1]}')
        k(f'v_cvt_pk_bf16_f32 {c.CBs[0][m]}, {sn[2 * m]}, {sn[2 * m + 1]}')
    for m in range(4):
        k(f'v_xor_b32 {c.CBn[0][m]}, {c.sg}, {c.CBs[0][m]}')
        k(f'v_xor_b32 {c.CBc[1][m]}, 0x80000000, {c.CBc[0][m]}')
        k(f'v_xor_b32 {c.CBs[1][m]}, 0x80000000, {c.CBs[0][m]}')
        k(f'v_xor_b32 {c.CBn[1][m]}, 0x00008000, {c.CBs[0][m]}')
    k(f'v_cvt_f32_u32 {base}, {c.gea}')
    k(f'v_cvt_f32_u32 {step}, {t}')
    k(f'v_mul_f32 {base}, {fl(1 / 128)}, {base}')
    k(f'v_mul_f32 {step}, {fl(1 / 512)}, {step}')
    sincos(k, base, step, MULT, cs, sn)
    c.tw1c, c.tw1s = cs, sn
    c.aXw, c.aXr, c.aZ, c.aQ, c.aU, c.aGs = v.get(), v.get(), v.get(2, 1), v.get(2, 1), v.get(), v.get()
    t0, t1 = c.t0, c.t1
    k(f's_mul_i32 {t0}, {c.iA}, 1280')
    k(f's_and_b32 {t1}, {c.iA}, 1')
    k(f's_lshl_b32 {t1}, {t1}, 5')
    k(f's_add_u32 {t0}, {t0}, {t1}')
    k(f'v_add_u32 {c.aXw}, {t0}, {c.l16}')
    k(f'v_bfe_u32 {t}, v0, 2, 1')
    k(f'v_mul_u32_u24 {c.aXr}, {1280 + 32}, {t}')
    k(f'v_bfe_u32 {t}, v0, 3, 1')
    k(f'v_mul_u32_u24 {t}, {2560 + 128}, {t}')
    k(f'v_lshl_add_u32 {c.aXr}, {c.g}, 6, {c.aXr}')
    k(f'v_and_b32 {base}, 3, v0')
    k(f'v_lshl_add_u32 {t}, {base}, 3, {t}')
    k(f'v_add_u32 {c.aXr}, {c.aXr}, {t}')
    k(f's_lshl_b32 {t0}, {c.w}, 8')
    k(f's_add_u32 {t0}, {t0}, {c.s0}')
    k(f's_lshl_b32 {t0}, {t0}, 6')
    k(f's_add_u32 {t0}, {t0}, {ZOFF}')
    k(f'v_lshl_add_u32 {t}, {c.g}, 4, {t0}')
    k(f'v_lshl_add_u32 {c.aZ[0]}, {c.n}, 16, {t}')
    k(f'v_add_u32 {c.aZ[1]}, {1 << 20}, {c.aZ[0]}')
    k(f's_and_b32 {t0}, {c.s0}, 1')
    k(f's_lshl_b32 {t0}, {t0}, 7')
    k(f's_lshr_b32 {t1}, {c.s0}, 1')
    k(f's_add_u32 {t0}, {t0}, {t1}')
    k(f's_lshl_b32 {c.t2}, {t0}, 5')
    k(f's_lshl_b32 {t1}, {c.w}, 12')
    k(f's_add_u32 {t0}, {t0}, {t1}')
    k(f's_lshl_b32 {t0}, {t0}, 6')
    k(f's_add_u32 {t0}, {t0}, {QOFF}')
    k(f'v_lshl_add_u32 {t}, {c.g}, 4, {t0}')
    k(f'v_lshl_add_u32 {c.aQ[0]}, {c.n}, 14, {t}')
    k(f'v_add_u32 {c.aQ[1]}, {1 << 20}, {c.aQ[0]}')
    k(f's_and_b32 {t0}, {c.w}, 1')
    k(f's_lshl_b32 {t0}, {t0}, 4')
    k(f's_and_b32 {t1}, {c.w}, 2')
    k(f's_lshl_b32 {t1}, {t1}, 2')
    k(f's_add_u32 {t0}, {t0}, {t1}')
    k(f's_add_u32 {t0}, {t0}, {c.t2}')
    k(f's_add_u32 {t0}, {t0}, {GOFF}')
    m63 = s.get(2)
    k(f'v_cmp_eq_u32 {m63}, 63, {c.l}')
    k(f'v_mov_b32 {c.aGs}, {t0}')
    k(f's_lshl_b32 {t0}, {c.x}, 9')
    k(f's_add_u32 {t0}, {t0}, {c.j}')
    k(f'v_cndmask_b32 {c.aGs}, 2.0, {c.aGs}, {m63}')
    k(f's_lshl_b32 {t0}, {t0}, 2')
    k(f's_add_u32 {t0}, {t0}, {c.w}')
    k(f's_lshl_b32 {t0}, {t0}, 7')
    k(f'v_lshl_add_u32 {c.aU}, {c.cb}, 5, {t0}')
    k(f'v_lshrrev_b32 {t}, 1, {c.P}')
    k(f'v_lshl_add_u32 {c.aU}, {t}, 14, {c.aU}')
    k(f'v_and_b32 {t}, 1, {c.P}')
    k(f'v_lshl_add_u32 {c.aU}, {t}, 4, {c.aU}')
    s.put(m63)
    v.put(base, step, t, c.P, c.cb)
    c.sel_lo, c.sel_hi = s.get(), s.get()
    k(f's_mov_b32 {c.sel_lo}, 0x00003f80')
    k(f's_mov_b32 {c.sel_hi}, 0x3f800000')


def consts_a(k, c):
    s, v = k.s, k.v
    ip, base, step = (v.get() for _ in range(3))
    cs, sn = v.get(8), v.get(8)
    k(f's_lshr_b32 {c.t0}, {c.s0}, 7')
    k(f's_and_b32 {c.t1}, {c.s0}, 127')
    k(f's_cselect_b32 {c.t0}, {c.t0}, 0')
    k(f'v_and_b32 {ip}, 3, v0')
    k(f'v_lshl_add_u32 {ip}, {ip}, 1, {c.t0}')
    k(f'v_lshlrev_b32 {base}, 7, {c.gea}')
    k(f'v_mad_u32_u24 {base}, {ip}, {c.s0}, {base}')
    k(f'v_cvt_f32_u32 {step}, {ip}')
    k(f'v_cvt_f32_u32 {base}, {base}')
    k(f'v_mul_f32 {step}, {fl(1 / 8)}, {step}')
    k(f'v_mul_f32 {base}, {fl(1 / 2048)}, {base}')
    sincos(k, base, step, range(8), cs, sn, negsin=True)
    k(f's_cmp_lg_u32 {c.t1}, 0')
    lab = k.begin_skip('s_cbranch_scc1', 'nospecial')
    c2, s2 = v.get(8), v.get(8)
    k(f'v_cvt_f32_u32 {c2[0]}, {c.s0}')
    k(f'v_add_f32 {step}, {fl(1 / 8)}, {step}')
    k(f'v_fmac_f32 {base}, {fl(1 / 2048)}, {c2[0]}')
    sincos(k, base, step, range(8), c2, s2)
    for i in range(8):
        if i & 1:
            continue
        k(f'v_pk_add_f32 {cs[i:i + 2]}, {cs[i:i + 2]}, {s2[i:i + 2]}')
        k(f'v_pk_add_f32 {sn[i:i + 2]}, {sn[i:i + 2]}, {c2[i:i + 2]}')
        k(f'v_pk_mul_f32 {cs[i:i + 2]}, 0.5, {cs[i:i + 2]} op_sel_hi:[0,1]')
        k(f'v_pk_mul_f32 {sn[i:i + 2]}, 0.5, {sn[i:i + 2]} op_sel_hi:[0,1]')
    v.put(c2, s2)
    k.end_skip(lab)
    c.CAr = [v.get(4) for _ in range(4)]
    c.CAi = [v.get(4) for _ in range(4)]
    mo, m2, m12 = ip, base, step
    odd = s.get(2)
    k(f'v_and_b32 {mo}, 1, {c.a2}')
    k(f'v_lshrrev_b32 {m2}, 1, {c.a2}')
    k(f'v_cmp_eq_u32 {odd}, 1, {mo}')
    k(f'v_mul_lo_u32 {mo}, {mo}, {c.sg}')
    k(f'v_mul_lo_u32 {m2}, {m2}, {c.sg}')
    k(f'v_xor_b32 {m12}, {mo}, {m2}')
    for m in range(4):
        k(f'v_cvt_pk_bf16_f32 {c.CAr[0][m]}, {cs[2 * m]}, {cs[2 * m + 1]}')
        k(f'v_cvt_pk_bf16_f32 {c.CAi[0][m]}, {sn[2 * m]}, {sn[2 * m + 1]}')
    for m in range(4):
        k(f'v_cndmask_b32 {c.CAr[3][m]}, {c.CAr[0][m]}, {c.CAi[0][m]}, {odd}')
        k(f'v_cndmask_b32 {c.CAi[3][m]}, {c.CAi[0][m]}, {c.CAr[0][m]}, {odd}')
        k(f'v_xor_b32 {c.CAr[2][m]}, {c.CAr[0][m]}, {mo}')
        k(f'v_xor_b32 {c.CAi[2][m]}, {c.CAi[0][m]}, {mo}')
    for m in range(4):
        k(f'v_xor_b32 {c.CAr[1][m]}, {c.CAr[3][m]}, {m2}')
        k(f'v_xor_b32 {c.CAi[1][m]}, {c.CAi[3][m]}, {m12}')
        k(f'v_xor_b32 {c.CAr[3][m]}, {c.CAr[3][m]}, {m12}')
        k(f'v_xor_b32 {c.CAi[3][m]}, {c.CAi[3][m]}, {m2}')
    s.put(odd, c.sg)
    v.put(ip, base, step, cs, sn, c.a2, c.gea)


def p1_dft(k, c):
    s, v = k.s, k.v
    f = v.get(8)
    o = v.get(4)
    X = v.get()
    if c.stamps and 'qarr' in c.stamps:
        k.waitfor(*c.qd, *c.qm)
        stamp(k, c, 'qarr')
    for r in range(2):
        A, M = c.qd[r], c.qm[r]
        k(f'v_mov_b32_dpp {X}, {M[0]} wave_ror:1 row_mask:0xf bank_mask:0xf')
        for m in range(4):
            k(f'v_lshlrev_b32 {f[2 * m]}, 16, {A[m]}')
            k(f'v_and_b32 {f[2 * m + 1]}, 0xffff0000, {A[m]}')
        src = [(X, 0), (M[3], 1), (M[3], 0), (M[2], 1), (M[2], 0), (M[1], 1), (M[1], 0), (M[0], 1)]
        for e in range(8):
            k(f'v_dot2c_f32_bf16 {f[e]}, {c.sel_hi if src[e][1] else c.sel_lo}, {src[e][0]}')
        dst = o if r == 0 else c.qm[0]
        for m in range(4):
            k(f'v_cvt_pk_bf16_f32 {dst[m]}, {f[2 * m]}, {f[2 * m + 1]}')
        k(f'ds_write_b128 {c.aXw}, {dst} offset:{L_X + r * (2560 + 128)}')
    z = v.get(2)
    for m in range(4):
        for r in range(2):
            k(f'v_dot2_f32_bf16 {z[r]}, {c.qd[r][m]}, {c.gw[m]}, {z[r] if m else 0}')
    k(c.go_store)
    k('s_waitcnt lgkmcnt(0)')
    stamp(k, c, 'xt')
    k('s_barrier')
    v.put(f, o, X, c.qm[0], c.qm[1], c.aXw, c.qd[0], c.qd[1], c.gw)
    F = [[v.get(4) for _ in range(4)] for _ in range(2)]
    for T in range(2):
        for ks in range(4):
            for h in range(2):
                k(f'ds_read_b64_tr_b16 {F[T][ks][2 * h:2 * h + 2]}, {c.aXr} offset:{L_X + 5120 * h + 256 * ks + 32 * T}')
    if c.qmode == 'late':
        for x in c.Lq:
            k(x)
    if c.qmode == 'early':
        for eh in range(2):
            k(f'global_store_dwordx4 {c.aQ[eh]}, {c.qp[eh]}, {c.pws}{SC}')
    if c.hpos == 4:
        for x in c.Lh:
            k(x)
    Dr = [v.get(4), v.get(4)]
    Di = [v.get(4), v.get(4)]
    mf = []
    for T in range(2):
        for ks in range(4):
            mf.append(f'v_mfma_f32_16x16x32_bf16 {Dr[T]}, {F[T][ks]}, {c.CAr[ks]}, {Dr[T] if ks else 0}')
            mf.append(f'v_mfma_f32_16x16x32_bf16 {Di[T]}, {F[T][ks]}, {c.CAi[ks]}, {Di[T] if ks else 0}')
    st = Stream(mf)
    gate = []
    for ctl in ['row_ror:1 row_mask:0xf', 'row_ror:2 row_mask:0xf', 'row_ror:4 row_mask:0xf',
                'row_ror:8 row_mask:0xf', 'row_bcast:15 row_mask:0xa', 'row_bcast:31 row_mask:0xc']:
        gate += [f'v_add_f32_dpp {z[r]}, {z[r]}, {z[r]} {ctl} bank_mask:0xf' for r in range(2)]
    gate += [f'v_mul_f32 {z[r]}, {fl(-1.4426950408889634)}, {z[r]}' for r in range(2)]
    g = st.place(0, gate)
    g = st.place(g + 1, [f'v_exp_f32 {z[r]}, {z[r]}' for r in range(2)], per_gap=1)
    g = st.place(g + 1, [f'v_add_f32 {z[r]}, 1.0, {z[r]}' for r in range(2)])
    g = st.place(g + 1, [f'v_rcp_f32 {z[r]}, {z[r]}' for r in range(2)], per_gap=1)
    g = st.place(g + 1, [f'buffer_store_dwordx2 {z}, {c.aGs}, {c.srdws}, 0 offen{SC}'])
    st.emit(k)
    Re, Im, t = v.get(4), v.get(4), v.get(4)
    for T in range(2):
        cmul_tw(k, Dr[T], Di[T], c.tw1c[4 * T:4 * T + 4], c.tw1s[4 * T:4 * T + 4], t)
        for h in range(2):
            k(f'v_cvt_pk_bf16_f32 {Im[2 * T + h]}, {Di[T][2 * h]}, {Di[T][2 * h + 1]}')
        for h in range(2):
            k(f'v_cvt_pk_bf16_f32 {Re[2 * T + h]}, {Dr[T][2 * h]}, {Dr[T][2 * h + 1]}')
    Hr, Hi = F[0][0:2], F[0][2:4]
    mf = []
    for Tb in range(2):
        mf.append(f'v_mfma_f32_16x16x32_bf16 {Hr[Tb]}, {Im}, {c.CBs[Tb]}, 0')
        mf.append(f'v_mfma_f32_16x16x32_bf16 {Hi[Tb]}, {Im}, {c.CBc[Tb]}, 0')
        mf.append(f'v_mfma_f32_16x16x32_bf16 {Hr[Tb]}, {Re}, {c.CBc[Tb]}, {Hr[Tb]}')
        mf.append(f'v_mfma_f32_16x16x32_bf16 {Hi[Tb]}, {Re}, {c.CBn[Tb]}, {Hi[Tb]}')
    st = Stream(mf)
    if c.hpos == 1:
        st.place(0, c.Lh, per_gap=1)
    st.emit(k)
    for Tb in range(2):
        o = F[1][Tb]
        for i in range(4):
            k(f'v_cvt_pk_bf16_f32 {o[i]}, {Hr[Tb][i]}, {Hi[Tb][i]}')
        k(f'global_store_dwordx4 {c.aZ[Tb]}, {o}, {c.pws}{SC}')
    v.put(*F[0], *F[1], *Dr, *Di, Re, Im, t, c.aXr, c.aZ, c.tw1c, c.tw1s, z, c.aGs)
    v.put(*c.CAr, *c.CAi, *c.CBc, *c.CBs, *c.CBn)


def p1_kv(k, c):
    s, v = k.s, k.v
    Kf = [v.get(2) for _ in range(11)]
    if c.stamps and 'karr' in c.stamps:
        k.waitfor(c.K)
        stamp(k, c, 'karr')
    for t in range(11):
        k(f'v_lshlrev_b32 {Kf[t][0]}, 16, {c.K[t]}')
        k(f'v_and_b32 {Kf[t][1]}, 0xffff0000, {c.K[t]}')
    Wt = [v.get(2) for _ in range(4)]
    for ch in range(2):
        for jj in range(4):
            src = c.skw[2 * ch + (jj >> 1)]
            if jj & 1:
                k(f'v_and_b32 {Wt[jj][ch]}, 0xffff0000, {src}')
            else:
                k(f'v_lshlrev_b32 {Wt[jj][ch]}, 16, {src}')
    S = [v.get(2) for _ in range(8)]
    for jj in range(4):
        for t in range(8):
            if jj == 0:
                k(f'v_pk_mul_f32 {S[t]}, {Kf[3 + t]}, {Wt[0]}')
            else:
                k(f'v_pk_fma_f32 {S[t]}, {Kf[3 + t - jj]}, {Wt[jj]}, {S[t]}')
    stamp(k, c, 'ks')
    if c.stamps and 'varr' in c.stamps:
        k.waitfor(c.V)
        stamp(k, c, 'varr')
    k.waitfor(c.V, *c.qp)
    stamp(k, c, 'qparr')
    if c.qmode == 'late':
        for eh in range(2):
            k(f'global_store_dwordx4 {c.aQ[eh]}, {c.qp[eh]}, {c.pws}{SC}')
    stamp(k, c, 'qst')
    for t in range(8):
        k(f'v_lshlrev_b32 {Kf[t][0]}, 16, {c.V[t]}')
        k(f'v_and_b32 {Kf[t][1]}, 0xffff0000, {c.V[t]}')
    for t in range(8):
        k(f'v_pk_mul_f32 {S[7 - t]}, {S[7 - t]}, {Kf[7 - t]}')
    o = [v.get(4), v.get(4)]
    for p in range(2):
        for m in range(4):
            k(f'v_cvt_pk_bf16_f32 {o[p][m]}, {S[7 - 2 * m][p]}, {S[6 - 2 * m][p]}')
        k(f'global_store_dwordx4 {c.aU}, {o[p]}, {c.pws} offset:{UOFF + 64 * p}{SC}')
    k.mark('stores')
    v.put(*Wt, *Kf, *S, *o, c.K, c.V, c.skw, c.aU, c.aQ, *c.qp)


def p2_consts(k, c):
    s, v = k.s, k.v
    t0, t1 = c.t0, c.t1
    k1, base, step, t = (v.get() for _ in range(4))
    m = s.get(2)
    k(f'v_lshrrev_b32 {t}, 2, {c.n}')
    k(f'v_and_b32 {k1}, 3, v0')
    k(f'v_lshl_add_u32 {k1}, {k1}, 2, {t}')
    c.sgn = v.get()
    c.psel = s.get()
    k(f's_cmp_eq_u32 {c.tau}, 0')
    k(f's_mov_b32 {t0}, 0x03020c0c')
    k(f's_cselect_b32 {c.psel}, 0x01000c0c, {t0}')
    k(f'v_lshlrev_b32 {t}, 31, {t}')
    k(f'v_xor_b32 {c.sgn}, 1.0, {t}')
    cs, sn = v.get(4), v.get(4)
    k(f's_lshl_b32 {t0}, {c.tau}, 3')
    k(f'v_lshl_add_u32 {t}, {c.g}, 1, {t0}')
    k(f'v_mul_u32_u24 {base}, {t}, {k1}')
    k(f'v_cvt_f32_u32 {step}, {k1}')
    k(f'v_cvt_f32_u32 {base}, {base}')
    k(f'v_mul_f32 {step}, {fl(1 / 16)}, {step}')
    k(f'v_mul_f32 {base}, {fl(1 / 16)}, {base}')
    sincos(k, base, step, [0, 1], cs, sn)
    c.Fa = v.get(4)
    c.Far, c.Fai = c.Fa[0:2], c.Fa[2:4]
    k(f'v_mul_u32_u24 {base}, {c.g}, {k1}')
    for jj in range(2):
        k(f'v_cvt_pk_bf16_f32 {c.Far[jj]}, {cs[jj]}, {sn[jj]}')
        k(f'v_cvt_pk_bf16_f32 {c.Fai[jj]}, -{sn[jj]}, {cs[jj]}')
    k(f'v_cvt_f32_u32 {base}, {base}')
    k(f'v_mul_f32 {base}, {fl(1 / 4)}, {base}')
    sincos(k, base, step, [0, 1, 2, 3], cs, sn)
    c.Fb = v.get(4)
    k(f'v_mul_f32 {base}, {fl(1 / 16)}, {base}')
    k(f'v_mul_f32 {step}, {fl(1 / 16)}, {step}')
    for h in range(2):
        k(f'v_cvt_pk_bf16_f32 {c.Fb[h]}, {cs[2 * h]}, {cs[2 * h + 1]}')
        k(f'v_cvt_pk_bf16_f32 {c.Fb[2 + h]}, {sn[2 * h]}, {sn[2 * h + 1]}')
    sincos(k, base, step, [0, 1, 2, 3], cs, sn)
    c.tw2c, c.tw2s = cs, sn
    c.Ci = [v.get(4) for _ in range(4)]
    c.SP = v.get(8)
    for jj in range(4):
        k(f'v_pk_mov_b32 {c.Ci[jj][0:2]}, 0, 0')
        k(f'v_pk_mov_b32 {c.Ci[jj][2:4]}, 0, 0')
        k(f'v_pk_mov_b32 {c.SP[2 * jj:2 * jj + 2]}, 0, 0')
    k(f's_mul_i32 {t0}, {c.w}, {WS}')
    k(f'v_mul_u32_u24 {t}, {PS}, {c.g}')
    k(f'v_lshl_add_u32 {t}, {c.n}, 4, {t}')
    c.aB = v.get()
    k(f'v_add_u32 {c.aB}, {t0}, {t}')
    k(f'ds_write_b128 {c.aB}, {c.Ci[0]} offset:{L_U}')
    c.aHw, c.aHr = v.get(), v.get()
    k(f's_mul_i32 {t0}, {c.w}, {HS}')
    k(f's_add_u32 {t0}, {t0}, {L_H}')
    k(f'v_lshl_add_u32 {t}, {c.n}, 2, {t0}')
    k(f'v_add_u32 {c.aHw}, {t0}, {c.l16}')
    k(f'ds_write_b32 {t}, {c.Ci[0][0]}')
    k(f'ds_write_b32 {t}, {c.Ci[0][0]} offset:{HC}')
    k(f's_add_u32 {t1}, {c.tau}, 1')
    k(f'v_lshl_add_u32 {t}, {c.g}, 2, {c.n}')
    k(f'v_add_u32 {t}, {t1}, {t}')
    k(f'v_and_b32 {base}, 1, {t}')
    k(f'v_mul_u32_u24 {base}, {HC - 4}, {base}')
    k(f'v_lshl_add_u32 {t}, {t}, 2, {t0}')
    k(f'v_add_u32 {c.aHr}, {base}, {t}')
    v.put(k1, base, step, t)
    s.put(m)


def p2_addrs(k, c):
    s, v = k.s, k.v
    t0, t1 = c.t0, c.t1
    t, u, xl = v.get(), v.get(), v.get()
    m = s.get(2)
    c.aUg, c.aUw = v.get(2, 1), v.get()
    c.e14 = s.get()
    k(f's_lshl_b32 {c.e14}, {c.E}, 14')
    k(f's_add_u32 {t0}, {c.e14}, {UOFF + 4096}')
    k(f'v_lshl_add_u32 {c.aUg[0]}, v0, 4, {t0}')
    k(f'v_add_u32 {c.aUg[1]}, 8192, {c.aUg[0]}')
    k(f'v_and_b32 {t}, 1, v0')
    k(f'v_bfe_u32 {u}, v0, 2, 1')
    k(f'v_lshl_add_u32 {t}, {t}, 1, {u}')
    k(f'v_mul_u32_u24 {c.aUw}, {WS}, {t}')
    k(f'v_bfe_u32 {t}, v0, 3, 2')
    k(f'v_xor_b32 {t}, 3, {t}')
    k(f'v_mul_u32_u24 {t}, {PS}, {t}')
    k(f'v_and_b32 {u}, 0xe0, v0')
    k(f'v_add3_u32 {c.aUw}, {c.aUw}, {t}, {u}')
    k(f'v_and_b32 {t}, 2, v0')
    k(f'v_lshl_add_u32 {c.aUw}, {t}, 3, {c.aUw}')
    c.aZ0, c.aZ1, c.aG, c.aQg = (v.get() for _ in range(4))
    c.aSP = v.get(2, 1)
    k(f's_lshl_b32 {t1}, {c.w}, 4')
    k(f's_add_u32 {t0}, {c.e14}, {t1}')
    k(f's_add_u32 {t0}, {t0}, {ZOFF}')
    k(f'v_mov_b32 {c.aSP[0]}, {t0}')
    k(f'v_add_u32 {c.aSP[1]}, 8192, {c.aSP[0]}')
    k(f's_lshl_b32 {t1}, {c.tau}, 13')
    k(f's_add_u32 {t0}, {t0}, {t1}')
    k(f'v_cmp_eq_u32 {m}, 0, {c.l}')
    k(f'v_lshl_add_u32 {c.aZ1}, {c.n}, 6, {t0}')
    k(f'v_lshl_add_u32 {c.aZ1}, {c.g}, 11, {c.aZ1}')
    k(f'v_cndmask_b32 {c.aZ0}, {c.aZ1}, 2.0, {m}')
    k(f's_lshl_b32 {t0}, {c.w}, 2')
    k(f'v_and_b32 {t}, 3, v0')
    k(f'v_and_b32 {u}, 60, v0')
    k(f'v_lshl_add_u32 {xl}, {u}, 2, {t}')
    k(f'v_add_u32 {xl}, {t0}, {xl}')
    c.aYBw, c.aYBr, c.aYAw, c.aYAr = (v.get() for _ in range(4))
    k(f'v_mul_u32_u24 {c.aYBr}, 1088, {t}')
    k(f'v_and_b32 {u}, 12, v0')
    k(f'v_lshl_add_u32 {c.aYBr}, {u}, 2, {c.aYBr}')
    k(f's_lshl_b32 {t0}, {c.w}, 6')
    k(f'v_lshl_add_u32 {u}, {c.g}, 8, {t0}')
    k(f'v_add_u32 {c.aYBr}, {c.aYBr}, {u}')
    c.aO = v.get(4, 1)
    k(f's_lshl_b32 {t0}, {c.tau}, 7')
    k(f's_add_u32 {t0}, {t0}, {c.E}')
    k(f's_lshl_b32 {t0}, {t0}, 3')
    k(f'v_lshl_add_u32 {c.aO[0]}, {xl}, 11, {t0}')
    for cc in range(1, 4):
        k(f'v_add_u32 {c.aO[cc]}, {cc << 19}, {c.aO[0]}')
    k(f'v_and_b32 {t}, 127, {xl}')
    k(f'v_lshrrev_b32 {u}, 7, {xl}')
    k(f'v_lshl_add_u32 {t}, {t}, 1, {u}')
    k(f's_lshl_b32 {t0}, {c.tau}, 12')
    k(f's_add_u32 {t0}, {t0}, {GOFF}')
    k(f'v_lshl_add_u32 {c.aG}, {t}, 4, {t0}')
    k(f's_add_u32 {t0}, {c.e14}, {t1}')
    k(f's_add_u32 {t0}, {t0}, {QOFF}')
    k(f'v_lshl_add_u32 {c.aQg}, {t}, 5, {t0}')
    k(f's_mul_i32 {t0}, {c.w}, {4 * 1088}')
    k(f'v_add_u32 {c.aYBw}, {t0}, {c.l16}')
    k(f'v_lshlrev_b32 {c.aYAw}, 4, v0')
    k(f'v_lshlrev_b32 {c.aYAr}, 2, v0')
    k(f'v_add_u32 {c.aYAr}, {L_YA}, {c.aYAr}')
    v.put(t, u, xl)
    s.put(m, c.e14)
    c.qn = v.get(8)
    c.qdone = 0


def narrow_q(k, c, n):
    if c.qmode != 'narrow':
        return
    for cc in range(c.qdone, c.qdone + n):
        k(f'global_load_dwordx2 {c.qn[2 * cc:2 * cc + 2]}, {c.aO[cc]}, {c.pq}')
    c.qdone += n


def p2_hstage(k, c):
    s, v = k.s, k.v
    H = c.H
    P = v.get(4, 1)
    U = [v.get(4) for _ in range(4)]
    sh = s.get()
    k(f's_lshl_b32 {sh}, {c.tau}, 4')
    k(f's_xor_b32 {sh}, {sh}, 16')
    k.waitfor(*H, c.Dv)
    k(f'v_mov_b32_dpp {P[0]}, {H[0][3]} wave_shr:1 row_mask:0xf bank_mask:0xf bound_ctrl:0')
    for n in range(1, 4):
        k(f'v_mov_b32_dpp {P[n]}, {H[n - 1][3]} wave_ror:1 row_mask:0xf bank_mask:0xf')
    for n in range(1, 4):
        k(f'v_mov_b32_dpp {P[n]}, {H[n][3]} wave_shr:1 row_mask:0xf bank_mask:0xf')
    for n in range(4):
        for m in (1, 2, 3):
            k(f'v_alignbit_b32 {U[n][m]}, {H[n][m]}, {H[n][m - 1]}, {sh}')
        k(f'v_alignbit_b32 {U[n][0]}, {H[n][0]}, {P[n]}, {sh}')
        k(f'ds_write_b128 {c.aHw}, {U[n]} offset:{64 + 1024 * n}')
    k(f'v_lshlrev_b32 {c.Dv}, {sh}, {c.Dv}')
    k(f's_cmp_eq_u32 {c.tau}, 1')
    lab = k.begin_skip('s_cbranch_scc1', 'noshift')
    for n in range(3):
        k(f'v_mov_b32_dpp {H[n][3]}, {U[n + 1][0]} wave_rol:1 row_mask:0xf bank_mask:0xf')
    for n in range(4):
        k(f'v_pk_mov_b32 {H[n][0:2]}, {U[n][0:2]}, {U[n][2:4]} op_sel:[1,0]')
        k(f'v_mov_b32 {H[n][2]}, {U[n][3]}')
    for n in range(4):
        k(f'v_mov_b32_dpp {H[n][3]}, {U[n][0]} wave_shl:1 row_mask:0xf bank_mask:0xf')
    k.end_skip(lab)
    k(f'ds_write_b32 {c.aHw}, {U[0][0]} offset:{HC + 60}')
    for n in range(4):
        k(f'ds_write_b128 {c.aHw}, {H[n]} offset:{HC + 64 + 1024 * n}')
    c.AD = v.get(4)
    t = P[0]
    ms = [s.get(2) for _ in range(4)]
    k(f'v_lshl_add_u32 {t}, {c.g}, 2, {c.n}')
    for m in range(4):
        k(f'v_cmp_eq_u32 {ms[m]}, {15 - m}, {t}')
    for m in range(4):
        k(f'v_cndmask_b32 {c.AD[m]}, 0, {c.Dv}, {ms[m]}')
    s.put(*ms, sh)
    v.put(P, *H, *U, c.Dv, c.aHw)


def p2_afrags(k, c, ps):
    for p in ps:
        for r in range(16):
            a = R('a', 4 * (16 * p + r), 4)
            for h in range(2):
                k(f'ds_read_b64 {a[2 * h:2 * h + 2]}, {c.aHr} offset:{64 * (16 * p + r) + 8 * h}')
        if p == 3:
            k.v.put(c.aHr)


def p2_xloads(k, c):
    s, v = k.s, k.v
    c.Ul = [v.get(4) for _ in range(4)]
    c.Zl = v.get(8)
    c.G = v.get(4)
    ul = lambda n: f'global_load_dwordx4 {c.Ul[n]}, {c.aUg[n >> 1]}, {c.pws} offset:{-4096 + 4096 * (n & 1)}{SC}'
    k(ul(0))
    k(ul(1))
    k(f'buffer_load_dwordx4 {c.Zl[0:4]}, {c.aZ0}, {c.srdws}, 0 offen{SC}')
    k(f'buffer_load_dwordx4 {c.Zl[4:8]}, {c.aZ1}, {c.srdws}, 0 offen offset:1024{SC}')
    k('s_mov_b64 exec, 0xffff')
    k(f'global_load_dwordx4 {c.SP[0:4]}, {c.aSP[0]}, {c.pws}{SC}')
    k(f'global_load_dwordx4 {c.SP[4:8]}, {c.aSP[1]}, {c.pws}{SC}')
    k('s_mov_b64 exec, -1')
    k(ul(2))
    k(ul(3))
    k(f'global_load_dwordx4 {c.G}, {c.aG}, {c.pws}{SC}')
    if c.qmode != 'narrow':
        for h in range(2):
            k(f'global_load_dwordx4 {c.qn[4 * h:4 * h + 4]}, {c.aQg}, {c.pws} offset:{16 * h}{SC}')
    v.put(c.aUg, c.aZ0, c.aZ1, c.aSP, c.aG, c.aQg, c.l, c.l16, c.n, c.g)


def p2_main(k, c):
    s, v = k.s, k.v
    o = c.o
    Zl, SP, Ul, G, qn, Ci = c.Zl, c.SP, c.Ul, c.G, c.qn, c.Ci
    uw = lambda n: f'ds_write_b128 {c.aUw}, {Ul[n]} offset:{L_U + 256 + 256 * n}'
    rd = lambda dst, q, r: f'ds_read_b128 {dst}, {c.aB} offset:{L_U + 16 + 256 * q + 16 * (15 - r)}'
    k(uw(0))
    k(uw(1))
    k('s_waitcnt lgkmcnt(0)')
    k('s_barrier')
    stamp(k, c, 'ubar')
    v.put(Ul[0], Ul[1])
    B0 = [v.get(4) for _ in range(16)]
    B1 = [v.get(4) for _ in range(16)]
    Di = [v.get(4) for _ in range(4)]
    acc = [v.get(4) for _ in range(2)]
    ya, ob, t = v.get(4), v.get(2), v.get(2)
    gq = c.Fa
    Bf = [Zl[0:4], Zl[4:8]]
    ring2 = [SP[0:4], SP[4:8], Ul[2], Ul[3]]
    ring3 = ring2 + Di[:o.get('r3', 2)]
    Y = Ci
    NPRE = o.get('npre', 6)
    for r in range(NPRE):
        k(rd(B0[r], 0, r))
    A = lambda p, r: R('a', 4 * (16 * p + r), 4)
    fr = [Zl[0:2], Zl[4:6], Zl[2:4], Zl[6:8]]
    mf = []
    seen = set()
    def add(cc, a, b, tag=None):
        d = acc[cc & 1]
        mf.append((cc, tag, f'v_mfma_f32_16x16x32_bf16 {d}, {a}, {b}, {d if cc in seen else 0}'))
        seen.add(cc)
    streams = []
    def addstream(cc, p, q, r, reg):
        streams.append((q, r, reg))
        add(cc, A(p, r), reg, ('s', len(streams) - 1))
        if r == 0 and p == 0:
            add(cc, c.AD, reg, ('s', len(streams) - 1))
    add(0, c.AD, B0[0])
    for r in range(16):
        add(0, A(0, r), B0[r])
    for r in range(16):
        add(1, A(1, r), B0[r])
    add(1, c.AD, B1[0])
    for r in range(16):
        add(1, A(0, r), B1[r])
    for r in range(16):
        add(2, A(2, r), B0[r])
        add(2, A(1, r), B1[r])
        addstream(2, 0, 2, r, ring2[r % 4])
    n3 = len(ring3)
    order3 = ring3[4:] + ring3[:4]
    for r in range(16):
        add(3, A(3, r), B0[r])
        addstream(3, 1, 2, r, order3[(2 * r) % n3])
        add(3, A(2, r), B1[r])
        addstream(3, 0, 3, r, order3[(2 * r + 1) % n3])
    sa = o.get('sa', 20)
    sta = []
    for jj in range(4):
        sta.append((-1, ('a', jj), f'v_mfma_f32_16x16x16_bf16 {Di[jj]}, {fr[jj]}, {c.Fai}, 0'))
        sta.append((-1, ('a', jj), f'v_mfma_f32_16x16x16_bf16 {Ci[jj]}, {fr[jj]}, {c.Far}, {Ci[jj]}'))
    mf[sa:sa] = sta
    sb = o.get('sb', [38, 49, 61, 74])
    for jj in range(4):
        mf.insert(sb[jj], (-1, ('b', jj), f'v_mfma_f32_16x16x32_bf16 {Y[jj]}, {c.Fb}, {Bf[jj & 1]}, 0'))
    st = Stream([m[2] for m in mf])
    pos = lambda tag: [i for i, m in enumerate(mf) if m[1] == tag]
    last = {cc: max(i for i, m in enumerate(mf) if m[0] == cc) for cc in range(4)}
    g = st.place(0, [rd(B0[r], 0, r) for r in range(NPRE, 16)])
    g = st.place(g + 1, [rd(B1[r], 1, r) for r in range(16)])
    yaw = lambda cc: f'ds_write_b128 {c.aYAw}, {acc[cc & 1]} offset:{L_YA + 4096 * cc}@ya{cc}'
    g = st.place(max(g + 1, last[0] + 4), [yaw(0)])
    g = st.place(g + 3, [uw(2)])
    g = st.place(g + 3, [uw(3) + '@uw'])
    gu = st.barrier_after(g + 4, 'uw')
    prev_use = {}
    for si, (q, r, reg) in enumerate(streams):
        p_ = pos(('s', si))
        lo = prev_use.get(str(reg), None)
        if lo is None:
            lo = max(gu, p_[0] - 12)
            if any(str(reg) == str(d) for d in Di):
                lo = max(lo, pos(('b', 3))[0])
        gg = st.place(lo, [rd(reg, q, r)])
        assert gg < p_[0] - 3, (si, gg, p_)
        prev_use[str(reg)] = p_[-1]
    g1 = st.place(last[1] + 4, [yaw(1)])
    pre_a = [f'v_perm_b32 {SP[i]}, {SP[i]}, {SP[i]}, {c.psel}' for i in range(8)]
    pre_a += [f'v_fma_f32 {Ci[jj][0]}, {SP[4 + jj]}, {c.sgn}, {SP[jj]}' for jj in range(4)]
    g = st.place(o.get('zs', 4), [f'v_swap_b32 {Zl[1]}, {Zl[4]}', f'v_swap_b32 {Zl[3]}, {Zl[6]}'], per_gap=1)
    g = st.place(g + 1, pre_a)
    assert g < sa - 1, (g, sa)
    g = sa + 4
    gw_ = 0
    for jj in range(4):
        a, b = Ci[jj], Di[jj]
        tw = []
        for h in (0, 2):
            for i in (h, h + 1):
                tw.append(f'v_mul_f32 {t[i & 1]}, {b[i]}, {c.tw2s[i]}')
                tw.append(f'v_mul_f32 {b[i]}, {b[i]}, {c.tw2c[i]}')
            for i in (h, h + 1):
                tw.append(f'v_fma_f32 {b[i]}, -{a[i]}, {c.tw2s[i]}, {b[i]}')
                tw.append(f'v_fma_f32 {a[i]}, {a[i]}, {c.tw2c[i]}, {t[i & 1]}')
        cv = [f'v_cvt_pk_bf16_f32 {Bf[jj & 1][2 + h]}, {b[2 * h]}, {b[2 * h + 1]}' for h in range(2)]
        cv += [f'v_cvt_pk_bf16_f32 {Bf[jj & 1][h]}, {a[2 * h]}, {a[2 * h + 1]}' for h in range(2)]
        g = st.place(max(g, pos(('a', jj))[-1] + 3), tw)
        g = st.place(max(g, sa + 7), cv)
        pb = pos(('b', jj))[0]
        assert g < pb - 1, ('stage b too early', jj, g, pb)
        sys.stderr.write(f'tw{jj} done at gap {g}, stage b at {pb}\n')
        gw_ = st.place(pb + 3, [f'ds_write_b128 {c.aYBw}, {Y[jj]} offset:{L_YB + 1088 * jj}' + ('@yb' if jj == 3 else '')])
    assert gw_ > g1
    gb = st.barrier_after(gw_ + 4, 'yb')
    gy = st.place(gb, [f'ds_read_b128 {Y[w]}, {c.aYBr} offset:{L_YB + 4 * 1088 * w}' for w in range(4)])

    def epi(cc):
        e2 = [f'ds_read2st64_b32 {ya[0:2]}, {c.aYAr} offset0:{16 * cc} offset1:{16 * cc + 4}',
              f'ds_read2st64_b32 {ya[2:4]}, {c.aYAr} offset0:{16 * cc + 8} offset1:{16 * cc + 12}']
        e3 = [f'v_fma_f32 {ya[w]}, {gq[w]}, {ya[w]}, {Y[w][cc]}' for w in range(4)]
        e3 += [f'v_cvt_pk_bf16_f32 {ob[h]}, {ya[2 * h]}, {ya[2 * h + 1]}' for h in range(2)]
        e4 = [f'global_store_dwordx2 {c.aO[cc]}, {ob}, {c.pout}']
        return e2, e3, e4

    def pre(cc):
        o1 = []
        for h in range(2):
            o1.append(f'v_lshlrev_b32 {gq[2 * h]}, 16, {qn[2 * cc + h]}')
            o1.append(f'v_and_b32 {gq[2 * h + 1]}, 0xffff0000, {qn[2 * cc + h]}')
        o1 += [f'v_mul_f32 {gq[w]}, {G[cc]}, {gq[w]}' for w in range(4)]
        o2 = [f'v_fma_f32 {Y[w][cc]}, -{G[cc]}, {Y[w][cc]}, {Y[w][cc]}' for w in range(4)]
        return o1, o2
    gp = g + 1
    gfree = gu
    for cc in range(4):
        o1, o2 = pre(cc)
        gp = st.place(gp, o1)
        if cc == 0:
            e2, e3, e4 = epi(0)
            g = st.place(gfree, e2)
            gp = st.place(max(g + 5, gp), [f'v_mul_f32 {ya[w]}, {gq[w]}, {ya[w]}' for w in range(4)] + [f'v_sub_f32 {G[0]}, 1.0, {G[0]}'])
            g = st.place(max(gp, gy + 3), [f'v_fmac_f32 {ya[w]}, {G[0]}, {Y[w][0]}' for w in range(4)] + e3[4:])
            gfree = g + 1
            g = st.place(g + 1, e4)
            sys.stderr.write(f'store {cc} at gap {g} of {len(mf)}\n')
            gp += 1
            continue
        gp = st.place(max(gp, gy + 4), o2)
        if cc < 3:
            e2, e3, e4 = epi(cc)
            if cc == 1:
                gfree = max(gfree, gb)
            if cc == 2:
                g2 = st.place(last[2] + 4, [yaw(2)])
                gfree = max(gfree, st.barrier_after(g2 + 4, 'ya2'))
            g = st.place(gfree, e2)
            g = st.place(max(g + 5, gp), e3)
            gfree = g + 1
            gp = g + 1
            g = st.place(g + 1, e4)
            sys.stderr.write(f'store {cc} at gap {g} of {len(mf)}\n')
    assert not st.tail
    for pat in c.drop:
        st.vec = [[x for x in g_ if not x.startswith(pat) or '@' in x] for g_ in st.vec]
        st.sca = [[x for x in g_ if not x.startswith(pat)] for g_ in st.sca]
    st.emit(k)
    stamp(k, c, 'conv')
    k(yaw(3).split('@')[0])
    k('s_waitcnt lgkmcnt(0)')
    k('s_barrier')
    e2, e3, e4 = epi(3)
    for ins in e2 + e3 + e4:
        k(ins)


def sync_go(k, c):
    s, v = k.s, k.v
    c.srdd = s.get(4, 4)
    c.ago = v.get()
    c.one = v.get()
    k(f's_mov_b32 {c.srdd[0]}, {c.pdbg[0]}')
    k(f's_and_b32 {c.srdd[1]}, {c.pdbg[1]}, 0xffff')
    k(f's_mov_b32 {c.srdd[2]}, 4')
    k(f's_mov_b32 {c.srdd[3]}, 0x00020000')
    k(f'v_lshl_add_u32 {c.ago}, {c.l}, 2, {c.lead}')
    k(f'v_mov_b32 {c.one}, 1')
    c.go_store = f'buffer_store_dword {c.one}, {c.ago}, {c.srdd}, 0 offen{SC}'


def sync_pre(k, c):
    s, v = k.s, k.v
    c.go, c.az, c.aat, c.apoll = (v.get() for _ in range(4))
    m = s.get(2)
    k(f'v_mov_b32 {c.az}, 0')
    k(f'global_load_dword {c.go}, {c.az}, {c.pdbg}{SC}')
    if c.hpos == 2:
        for x in c.Lh:
            k(x)
    v.put(*c.late_free, c.ago)
    k(f's_and_b32 {c.t0}, s2, 15')
    k(f's_lshl_b32 {c.t0}, {c.t0}, 8')
    k(f's_add_u32 {c.t0}, {c.t0}, {COFF}')
    k(f'v_cmp_gt_u32 {m}, {NREP}, v0')
    k(f'v_lshl_add_u32 {c.aat}, v0, 12, {c.t0}')
    k(f's_and_b32 {c.t0}, {c.x}, {NREP - 1}')
    k(f's_lshl_b32 {c.t0}, {c.t0}, 12')
    k(f's_add_u32 {c.t0}, {c.t0}, {COFF}')
    k(f'v_cndmask_b32 {c.aat}, 2.0, {c.aat}, {m}')
    k(f'v_lshl_add_u32 {c.apoll}, {c.n}, 8, {c.t0}')
    s.put(m)


def sync_arrive(k, c):
    s, v = k.s, k.v
    k.waitfor(c.go, vm='stores')
    stamp(k, c, 'ack')
    k(f'v_readfirstlane_b32 {c.t0}, {c.go}')
    k(f's_mov_b32 {c.t1}, 0')
    k(f's_or_b32 {c.t0}, {c.t0}, {c.w}')
    lab = k.begin_skip('s_cbranch_scc1', 'gook')
    lp = k.loop_label('gospin')
    k(f'global_load_dword {c.go}, {c.az}, {c.pdbg}{SC}')
    k(f's_add_u32 {c.t1}, {c.t1}, 1')
    k('s_waitcnt vmcnt(0)')
    k(f'v_readfirstlane_b32 {c.t0}, {c.go}')
    k(f's_lshr_b32 {c.t2}, {c.t1}, 20')
    k(f's_or_b32 {c.t0}, {c.t0}, {c.t2}')
    k(f's_cbranch_scc0 {lp}')
    k.end_skip(lab)
    k('s_barrier')
    k(f'buffer_atomic_add {c.one}, {c.aat}, {c.srdws}, 0 offen{SC}')
    v.put(c.az, c.aat, c.one)


def sync_wait(k, c):
    s, v = k.s, k.v
    d = c.go
    k(f's_cmp_lg_u32 {c.w}, 0')
    lab = k.begin_skip('s_cbranch_scc1', 'nopoll')
    k(f's_mov_b32 {c.t1}, 0')
    lp = k.loop_label('poll')
    k(f'global_load_dword {d}, {c.apoll}, {c.pws}{SC}')
    k(f's_add_u32 {c.t1}, {c.t1}, 1')
    k(f's_cmp_lt_u32 {c.t1}, 0x100000')
    k(f's_cselect_b32 {c.t2}, 16, 0')
    k('s_waitcnt vmcnt(0)')
    k(f'v_cmp_gt_u32 vcc, {c.t2}, {d}')
    k(f's_cbranch_vccnz {lp}')
    k.end_skip(lab)
    k('s_barrier')
    v.put(c.apoll, d)


def kern(opts):
    k = Kern(NAME + '_kernel')
    c = Ctx()
    c.stamps = opts.get('stamps', None)
    c.stretch = opts.get('stretch', None)
    c.clk = 's_memtime' if opts.get('cyc') else 's_memrealtime'
    c.prefetch = opts.get('prefetch', True)
    c.touch = opts.get('touch', True)
    c.ring = opts.get('ring', 6)
    c.drop = opts.get('drop', [])
    c.prestart = opts.get('prestart', 8)
    c.o = opts
    c.hpos = opts.get('hpos', 1)
    c.qmode = opts.get('qmode', 'late')
    nq = opts.get('nq', (0, 1, 2, 1))
    setup(k, c)
    k.hold()
    cb = k.capture(consts_b, k, c)
    k.interleave(cb, c.loads, opts.get('every', 3))
    k.release()
    k.v.put(*c.setup_free_v)
    k.s.put(*c.setup_free_s)
    stamp(k, c, 'cb')
    consts_a(k, c)
    sync_go(k, c)
    if c.hpos == 3:
        for x in c.Lh:
            k(x)
    extras(k, c)
    stamp(k, c, 'ca')
    early = opts.get('early', 0)
    if early >= 1:
        p2_addrs(k, c)
        narrow_q(k, c, nq[0])
    stamp(k, c, 'pre')
    p1_dft(k, c)
    stamp(k, c, 'dft1')
    p1_kv(k, c)
    stamp(k, c, 'kv')
    sync_pre(k, c)
    if early < 1:
        p2_addrs(k, c)
    narrow_q(k, c, nq[1])
    p2_consts(k, c)
    hs_first = opts.get('hsfirst', c.hpos != 2)
    if hs_first:
        p2_hstage(k, c)
    stamp(k, c, 'shadow')
    sync_arrive(k, c)
    narrow_q(k, c, nq[2])
    stamp(k, c, 'arr')
    if not hs_first:
        p2_hstage(k, c)
    k('s_waitcnt lgkmcnt(0)')
    n1 = opts.get('afr', 4)
    p2_afrags(k, c, range(0, n1))
    stamp(k, c, 'af')
    sync_wait(k, c)
    stamp(k, c, 'sync')
    p2_xloads(k, c)
    narrow_q(k, c, nq[3])
    p2_afrags(k, c, range(n1, 4))
    stamp(k, c, 'xiss')
    p2_main(k, c)
    stamp(k, c, 'epi')
    stamp(k, c, 'end', 's_waitcnt vmcnt(0)')
    stamps_out(k, c)
    k.raw(f'{c.end}:')
    k('s_endpgm')
    return k


HEADER = open('cdna_kernels/%s.s.ref' % NAME).read().split('; Override launch')[0]


def build(opts):
    k = kern(opts)
    body = k.finalize()
    sys.stderr.write(f'{k.stats} vhi={k.v.hi_water} shi={k.s.hi_water}\n')
    out = [HEADER.rstrip('\n'), f'; @launch grid=(256,1,1) block=(256,1,1) lds={LDS_BYTES}',
           '.amdgcn_target "amdgcn-amd-amdhsa--gfx950"', '.text',
           f'.globl {k.name}', '.p2align 8', f'.type {k.name},@function', f'{k.name}:', body,
           '.section .rodata,"a"', '.p2align 6', f'.amdhsa_kernel {k.name}',
           '  .amdhsa_next_free_vgpr 512', '  .amdhsa_next_free_sgpr 102', '  .amdhsa_accum_offset 256',
           '  .amdhsa_group_segment_fixed_size 0', '  .amdhsa_kernarg_size 120', '  .amdhsa_user_sgpr_count 2',
           '  .amdhsa_user_sgpr_kernarg_segment_ptr 1', '  .amdhsa_system_sgpr_workgroup_id_x 1',
           '  .amdhsa_float_denorm_mode_32 3', '.end_amdhsa_kernel']
    return '\n'.join(out) + '\n'


if __name__ == '__main__':
    opts = {}
    for a in sys.argv[2:]:
        kk, vv = a.split('=', 1)
        opts[kk] = eval(vv)
    open(sys.argv[1], 'w').write(build(opts))
```

```python
import sys, struct
from asmgen import Kern, R, I

NAME = 'gated_mix__ssm_conv_h3__spectral_fnet__prompt'
UOFF, ZOFF, QOFF, GOFF, COFF, SOFF = 0, 2 << 20, 4 << 20, 6 << 20, (6 << 20) + 65536, 8 << 20
L_X = 0
L_H = 10240
HC = 4224
HS = 2 * HC
PS, WS = 1280, 5152
L_U = 10240
L_YB = L_U + 4 * WS
L_YA = L_YB + 16 * 1088
L_G = L_YA + 4 * 4096
L_H = L_G + 2048
LDS_BYTES = L_H + 4 * HS
NREP = 8
NL = 16
SC = ' sc1'


def fl(x):
    return '0x%08x' % struct.unpack('<I', struct.pack('<f', x))[0]


class Ctx:
    pass


def stamp(k, c, name, pre=None):
    if c.stamps and name in c.stamps:
        if pre:
            k(pre)
        i = c.stamps.index(name)
        k(f'{c.clk} {c.st[2 * i:2 * i + 2]}')
        k('s_waitcnt lgkmcnt(0)')


def stamps_out(k, c):
    if not c.stamps:
        return
    if c.stretch is not None:
        k(f's_memrealtime {c.st[22:24]}')
        k(f's_sub_u32 {c.t0}, {c.st[2]}, {c.st[0]}')
        k(f's_mul_i32 {c.t0}, {c.t0}, {c.stretch}')
        k(f's_min_u32 {c.t0}, {c.t0}, 100000')
        k('s_waitcnt lgkmcnt(0)')
        k(f's_mov_b32 {c.t1}, {c.st[22]}')
        lp = k.loop_label('stretch')
        k(f's_memrealtime {c.st[22:24]}')
        k('s_waitcnt lgkmcnt(0)')
        k(f's_sub_u32 {c.t2}, {c.st[22]}, {c.t1}')
        k(f's_cmp_lt_u32 {c.t2}, {c.t0}')
        k(f's_cbranch_scc1 {lp}')
        return
    t = k.v.get(2)
    a = k.v.get()
    k(f's_lshl_b32 {c.t0}, s2, 2')
    k(f's_add_u32 {c.t0}, {c.t0}, {c.w}')
    k(f's_lshl_b32 {c.t0}, {c.t0}, 7')
    k(f's_add_u32 {c.t0}, {c.t0}, {SOFF}')
    k(f'v_mov_b32 {a}, {c.t0}')
    for i in range(len(c.stamps)):
        k(f'v_mov_b32 {t[0]}, {c.st[2 * i]}')
        k(f'v_mov_b32 {t[1]}, {c.st[2 * i + 1]}')
        k(f'global_store_dwordx2 {a}, {t}, {c.pws} offset:{8 * i}')
    k.v.put(t, a)


def sincos(k, base, step, mults, cs, sn, negsin=False):
    for i, m in enumerate(mults):
        if m:
            k(f'v_fmamk_f32 {sn[i]}, {step}, {fl(m)}, {base}')
    for i, m in enumerate(mults):
        src = base if m == 0 else sn[i]
        k(f'v_cos_f32 {cs[i]}, {src}')
        k(f'v_sin_f32 {sn[i]}, {"-" if negsin else ""}{src}')


def cmul_tw(k, a, b, cc, ss, t):
    for h in (0, 2):
        k(f'v_pk_mul_f32 {t[h:h + 2]}, {b[h:h + 2]}, {ss[h:h + 2]}')
        k(f'v_pk_mul_f32 {b[h:h + 2]}, {b[h:h + 2]}, {cc[h:h + 2]}')
    for h in (0, 2):
        k(f'v_pk_fma_f32 {b[h:h + 2]}, {a[h:h + 2]}, {ss[h:h + 2]}, {b[h:h + 2]} neg_lo:[1,0,0] neg_hi:[1,0,0]')
        k(f'v_pk_fma_f32 {a[h:h + 2]}, {a[h:h + 2]}, {cc[h:h + 2]}, {t[h:h + 2]}')


class Stream:
    def __init__(self, mfmas):
        self.m = list(mfmas)
        n = len(self.m)
        self.vec = [[] for _ in range(n)]
        self.sca = [[] for _ in range(n)]
        self.lgw = [None] * n
        self.tail = []

    def place(self, g, instrs, per_gap=2):
        last = g
        used = 0
        for ins in instrs:
            while g < len(self.m):
                mem = ins.startswith(('ds_', 'global_', 'buffer_'))
                ok = len(self.vec[g]) < 2 and used < per_gap
                if ok and mem and used and not self.vec[g][-1].startswith(('ds_', 'global_', 'buffer_')):
                    ok = False
                if ok and mem and any(x.startswith('ds_') for x in self.vec[g]) and ins.startswith('ds_'):
                    ok = False
                if ok:
                    break
                g += 1
                used = 0
            if g >= len(self.m):
                self.tail.append(ins)
                last = len(self.m)
                continue
            self.vec[g].append(ins)
            used += 1
            last = g
        return last

    def scalar(self, g, ins):
        self.sca[g].append(ins)

    def barrier_after(self, g, mark):
        self.lgw[g] = mark
        self.sca[g + 1].append('s_barrier')
        return g + 1

    def emit(self, k):
        isa = lambda x: x.split('@')[0]
        for i, m in enumerate(self.m):
            k(m)
            mem = [x for x in self.vec[i] if x.startswith(('ds_', 'global_', 'buffer_'))]
            alu = [x for x in self.vec[i] if x not in mem]
            look = [isa(x) for x in self.vec[i]]
            if i + 1 < len(self.m):
                look.append(self.m[i + 1])
                if self.sca[i + 1]:
                    look += [isa(x) for x in self.vec[i + 1]]
                    if i + 2 < len(self.m):
                        look.append(self.m[i + 2])
            k.waitfor(*look, lg=self.lgw[i])
            for x in self.sca[i]:
                k(x)
            for x in mem + alu:
                k(isa(x))
                if '@' in x:
                    k.mark(x.split('@')[1])
        for x in self.tail:
            k(isa(x))
            if '@' in x:
                k.mark(x.split('@')[1])


def setup(k, c):
    s, v = k.s, k.v
    c.end = k.label('end')
    k('s_cmp_ge_u32 s2, 256')
    k(f's_cbranch_scc1 {c.end}')
    a0 = s.get(8, 4); a1 = s.get(4, 4); a2 = s.get(8, 4)
    k(f's_load_dwordx8 {a0}, s[0:1], 0')
    k(f's_load_dwordx8 {a2}, s[0:1], 88')
    k(f's_load_dwordx4 {a1}, s[0:1], 32')
    c.pq, c.pk, c.pv, c.psk = a0[0:2], a0[2:4], a0[4:6], a0[6:8]
    c.ph, c.pD = a1[0:2], a1[2:4]
    c.pgw, c.pout, c.pdbg, c.pws = a2[0:2], a2[2:4], a2[4:6], a2[6:8]
    if c.stamps:
        c.st = s.get(24, 4)
        if 'start' in c.stamps:
            i = c.stamps.index('start')
            k(f'{c.clk} {c.st[2 * i:2 * i + 2]}')
    if c.prefetch == 'first':
        pc = s.get(2)
        c.dummy2, a = v.get(), v.get()
        k(f's_getpc_b64 {pc}')
        here = k.label('pc')
        k.raw(f'{here}:')
        k(f's_lshl_b32 s3, s2, 9')
        k(f's_and_b32 s3, s3, 0x3000')
        k(f'v_lshl_add_u32 {a}, v0, 4, s3')
        k(f'v_min_u32 {a}, {c.end}-{here}, {a}')
        k(f'global_load_dword {c.dummy2}, {a}, {pc}')
        s.put(pc)
        v.put(a)
    c.x, c.j, c.w, c.t0, c.t1, c.t2, c.s0, c.iA, c.E, c.tau, c.lead = (s.get() for _ in range(11))
    c.l, c.l16, c.n, c.g = (v.get() for _ in range(4))
    t0, t1 = c.t0, c.t1
    k(f'v_lshrrev_b32 {c.l}, 6, v0')
    k(f's_and_b32 {c.x}, s2, 7')
    k(f'v_readfirstlane_b32 {c.w}, {c.l}')
    k(f's_lshr_b32 {c.j}, s2, 3')
    k(f'v_and_b32 {c.l}, 63, v0')
    k(f'v_lshlrev_b32 {c.l16}, 4, {c.l}')
    k(f's_lshl_b32 {c.E}, {c.x}, 4')
    k(f's_and_b32 {t1}, {c.j}, 15')
    k(f's_add_u32 {t0}, {c.E}, {t1}')
    k(f's_sub_u32 {t1}, 256, {t0}')
    k(f's_cmp_eq_u32 {t0}, 0')
    k(f's_cselect_b32 {t1}, 128, {t1}')
    k(f's_cmp_lt_u32 {c.j}, 16')
    k(f's_cselect_b32 {c.s0}, {t0}, {t1}')
    k(f's_and_b32 {t0}, {c.w}, 2')
    k(f's_add_u32 {c.iA}, {c.w}, {t0}')
    k(f's_lshl_b32 {t0}, {c.iA}, 8')
    k(f's_add_u32 {t0}, {t0}, {c.s0}')
    k(f's_lshl_b32 {t0}, {t0}, 10')
    aq = v.get(4, 1)
    k(f'v_add_u32 {aq[0]}, {t0}, {c.l16}')
    k(f's_sub_u32 {t1}, {2048 * 1024 + 1008}, {t0}')
    k(f's_and_b32 {t1}, {t1}, {2048 * 1024 - 1}')
    k(f'v_sub_u32 {aq[1]}, {t1}, {c.l16}')
    k(f'v_add_u32 {aq[2]}, {512 * 1024}, {aq[0]}')
    k(f's_sub_u32 {t1}, {1536 * 1024 + 1008}, {t0}')
    k(f'v_sub_u32 {aq[3]}, {t1}, {c.l16}')
    k(f'v_and_b32 {c.n}, 15, v0')
    k(f'v_lshrrev_b32 {c.g}, 4, {c.l}')
    P, cb, akv, akh, ask, ah, aD, acl, zero = (v.get() for _ in range(9))
    ap = v.get(2, 1)
    k(f'v_and_b32 {P}, 31, v0')
    k(f'v_lshrrev_b32 {cb}, 5, {c.l}')
    k(f's_lshl_b32 {t0}, {c.j}, 3')
    k(f's_add_u32 {t0}, {t0}, {c.w}')
    k(f's_lshl_b32 {t0}, {t0}, 6')
    k(f's_add_u32 {t0}, {t0}, {c.x}')
    k(f's_add_u32 {t0}, {t0}, 32')
    k(f's_lshl_b32 {t0}, {t0}, 7')
    k(f'v_lshl_add_u32 {akv}, {cb}, 15, {t0}')
    k(f'v_lshl_add_u32 {akv}, {P}, 2, {akv}')
    k(f'v_subrev_u32 {akh}, 7168, {akv}')
    if c.qmode != 'narrow':
        k(f'v_and_b32 {ap[0]}, 1, {c.g}')
        k(f'v_lshl_add_u32 {ap[0]}, {ap[0]}, 2, {cb}')
        k(f's_lshl_b32 {t0}, {c.s0}, 3')
        k(f's_add_u32 {t0}, {t0}, {c.w}')
        k(f's_lshl_b32 {t0}, {t0}, 7')
        k(f'v_lshl_add_u32 {ap[0]}, {ap[0]}, 18, {t0}')
        k(f'v_lshl_add_u32 {ap[0]}, {c.n}, 3, {ap[0]}')
        k(f'v_add_u32 {ap[1]}, {512 * 1024}, {ap[0]}')
    srdk = s.get(4, 4)
    c.srdws = s.get(4, 4)
    k(f's_mov_b32 {srdk[2]}, {2 << 20}')
    k(f's_mov_b32 {srdk[3]}, 0x00020000')
    k(f's_mov_b32 {c.srdws[2]}, {1 << 28}')
    k(f's_mov_b32 {c.srdws[3]}, 0x00020000')
    c.qd = [v.get(4), v.get(4)]
    c.qm = [v.get(4), v.get(4)]
    k('s_waitcnt lgkmcnt(0)')
    stamp(k, c, 'karg')
    if c.prefetch == 'scalar':
        pc = s.get(2)
        c.sdummy = s.get()
        k(f's_getpc_b64 {pc}')
        here = k.label('pc')
        k.raw(f'{here}:')
        k(f's_lshl_b32 {t0}, {c.j}, 2')
        k(f's_add_u32 {t0}, {t0}, {c.w}')
        k(f's_lshl_b32 {t0}, {t0}, 7')
        k(f's_min_u32 {t0}, {t0}, {c.end}-{here}')
        k(f's_load_dword {c.sdummy}, {pc}, {t0}')
        s.put(pc)
    k(f'global_load_dwordx4 {c.qd[0]}, {aq[0]}, {c.pq}')
    k(f's_mov_b32 {srdk[0]}, {c.pk[0]}')
    k(f'global_load_dwordx4 {c.qm[0]}, {aq[1]}, {c.pq}')
    k(f's_and_b32 {srdk[1]}, {c.pk[1]}, 0xffff')
    k(f'global_load_dwordx4 {c.qd[1]}, {aq[2]}, {c.pq}')
    k(f's_mov_b32 {c.srdws[0]}, {c.pws[0]}')
    k(f'global_load_dwordx4 {c.qm[1]}, {aq[3]}, {c.pq}')
    k(f's_and_b32 {c.srdws[1]}, {c.pws[1]}, 0xffff')
    k(f's_lshr_b32 {t0}, {c.j}, 1')
    k(f's_add_u32 {c.E}, {c.E}, {t0}')
    k(f's_and_b32 {c.tau}, {c.j}, 1')
    k(f's_lshl_b32 {t1}, {c.x}, 9')
    k(f'v_lshl_add_u32 {ask}, {P}, 4, {t1}')
    k(f's_lshl_b32 {t0}, {c.E}, 2')
    k(f's_add_u32 {t0}, {t0}, {c.w}')
    k(f's_lshl_b32 {t1}, {t0}, 12')
    k(f'v_add_u32 {ah}, {t1}, {c.l16}')
    k(f's_lshl_b32 {t0}, {t0}, 1')
    k(f'v_mov_b32 {aD}, {t0}')
    k('s_cmp_lg_u32 s2, 0')
    lab = k.begin_skip('s_cbranch_scc1', 'noclear')
    z4 = v.get(4)
    k(f'v_lshlrev_b32 {acl}, 4, v0')
    k(f'v_pk_mov_b32 {z4[0:2]}, 0, 0')
    k(f'v_pk_mov_b32 {z4[2:4]}, 0, 0')
    k(f'v_add_u32 {acl}, {COFF + 4096}, {acl}')
    for i in range(c.nrep * NL * 128 // 4096):
        if i == 2:
            k(f'v_add_u32 {acl}, 8192, {acl}')
        k(f'global_store_dwordx4 {acl}, {z4}, {c.pws} offset:{-4096 + 4096 * (i & 1)}{SC} ; untracked')
    k('s_nop 1')
    v.put(z4)
    k.end_skip(lab)
    c.K, c.V = v.get(11, 1), v.get(8, 1)
    c.gw, c.skw = v.get(4), v.get(4)
    c.qp = [v.get(4), v.get(4)] if c.qmode != 'narrow' else []
    c.H = [v.get(4) for _ in range(4)]
    c.Dv = v.get()
    L = []
    c.Lq = [f'global_load_dwordx2 {c.qp[eh][2 * r:2 * r + 2]}, {ap[r]}, {c.pq} offset:{512 * eh}' for eh in range(len(c.qp)) for r in range(2)]
    if c.qmode == 'early':
        L += c.Lq
    L += [f'global_load_dwordx4 {c.gw}, {c.l16}, {c.pgw}']
    L += [f'buffer_load_dword {c.K[t]}, {akh}, {srdk}, 0 offen offset:{1024 * t}' for t in range(3)]
    L += [f'global_load_dword {c.K[3 + t]}, {akv}, {c.pk} offset:{1024 * (t - 4)}' for t in range(8)]
    L += [f'global_load_dwordx4 {c.skw}, {ask}, {c.psk}']
    L += [f'global_load_dword {c.V[t]}, {akv}, {c.pv} offset:{1024 * (t - 4)}' for t in range(8)]
    c.Lh = [f'global_load_dwordx4 {c.H[n]}, {ah}, {c.ph} offset:{1024 * n}' for n in range(4)]
    c.Lh += [f'global_load_ushort {c.Dv}, {aD}, {c.pD}']
    if c.hpos == 0:
        L += c.Lh
    c.late_free = [ah, aD, ap]
    c.loads = [('i', I(x)) for x in L]
    c.P, c.cb = P, cb
    c.setup_free_v = [aq, akv, akh, ask, acl, zero]
    c.setup_free_s = [srdk]


def extras(k, c):
    v, s = k.v, k.s
    c.dummy = v.get()
    a = v.get()
    if c.touch:
        if 'w' in c.touch:
            k(f'v_and_b32 {a}, 7, v0')
            k(f'v_lshlrev_b32 {a}, 20, {a}')
            k(f'v_add_u32 {a}, 0x80000, {a}')
            k(f'global_load_dword {c.dummy}, {a}, {c.pws}')
        if 'd' in c.touch:
            c.dummy4 = v.get()
            k(f'v_mov_b32 {a}, 128')
            k(f'global_load_dword {c.dummy4}, {a}, {c.pdbg}')
        if 'o' in c.touch:
            c.dummy3 = v.get()
            k(f's_lshl_b32 {c.t0}, {c.x}, 7')
            k(f'v_mov_b32 {a}, {c.t0}')
            k(f'global_load_dword {c.dummy3}, {a}, {c.pout}')
    if c.prefetch is True:
        pc = s.get(2)
        k(f's_getpc_b64 {pc}')
        here = k.label('pc')
        k.raw(f'{here}:')
        k(f's_and_b32 {c.t0}, {c.j}, 1')
        k(f's_lshl_b32 {c.t0}, {c.t0}, 2')
        k(f's_add_u32 {c.t0}, {c.t0}, {c.w}')
        k(f's_lshl_b32 {c.t0}, {c.t0}, 11')
        k(f'v_lshl_add_u32 {a}, {c.l}, 5, {c.t0}')
        k(f'v_min_u32 {a}, {c.end}-{here}, {a}')
        c.dummy2 = v.get()
        k(f'global_load_dword {c.dummy2}, {a}, {pc}')
        s.put(pc)
    v.put(a)


MULT = [0, 1, 2, 3, 16, 17, 18, 19]


def consts_b(k, c):
    s, v = k.s, k.v
    base, step, t = v.get(), v.get(), v.get()
    cs, sn = v.get(8), v.get(8)
    c.sg = s.get()
    k(f's_mov_b32 {c.sg}, 0x80008000')
    k(f'v_mul_u32_u24 {base}, {c.g}, {c.n}')
    k(f'v_cvt_f32_u32 {step}, {c.n}')
    k(f'v_cvt_f32_u32 {base}, {base}')
    k(f'v_mul_f32 {step}, {fl(1 / 32)}, {step}')
    k(f'v_mul_f32 {base}, {fl(1 / 8)}, {base}')
    sincos(k, base, step, MULT, cs, sn)
    c.CBc = [v.get(4), v.get(4)]
    c.CBs = [v.get(4), v.get(4)]
    c.CBn = [v.get(4), v.get(4)]
    c.a2, c.gea = v.get(), v.get()
    k(f's_lshl_b32 {c.t1}, {c.w}, 2')
    k(f'v_lshrrev_b32 {c.a2}, 2, {c.n}')
    k(f'v_add_u32 {t}, {c.t1}, {c.a2}')
    k(f'v_mul_u32_u24 {c.gea}, {c.g}, {t}')
    for m in range(4):
        k(f'v_cvt_pk_bf16_f32 {c.CBc[0][m]}, {cs[2 * m]}, {cs[2 * m + 1]}')
        k(f'v_cvt_pk_bf16_f32 {c.CBs[0][m]}, {sn[2 * m]}, {sn[2 * m + 1]}')
    for m in range(4):
        k(f'v_xor_b32 {c.CBn[0][m]}, {c.sg}, {c.CBs[0][m]}')
        k(f'v_xor_b32 {c.CBc[1][m]}, 0x80000000, {c.CBc[0][m]}')
        k(f'v_xor_b32 {c.CBs[1][m]}, 0x80000000, {c.CBs[0][m]}')
        k(f'v_xor_b32 {c.CBn[1][m]}, 0x00008000, {c.CBs[0][m]}')
    k(f'v_cvt_f32_u32 {base}, {c.gea}')
    k(f'v_cvt_f32_u32 {step}, {t}')
    k(f'v_mul_f32 {base}, {fl(1 / 128)}, {base}')
    k(f'v_mul_f32 {step}, {fl(1 / 512)}, {step}')
    sincos(k, base, step, MULT, cs, sn)
    c.tw1c, c.tw1s = cs, sn
    c.aXw, c.aXr, c.aZ, c.aQ, c.aU, c.aGs = v.get(), v.get(), v.get(2, 1), v.get(2, 1), v.get(), v.get()
    t0, t1 = c.t0, c.t1
    k(f's_mul_i32 {t0}, {c.iA}, 1280')
    k(f's_and_b32 {t1}, {c.iA}, 1')
    k(f's_lshl_b32 {t1}, {t1}, 5')
    k(f's_add_u32 {t0}, {t0}, {t1}')
    k(f'v_add_u32 {c.aXw}, {t0}, {c.l16}')
    k(f'v_bfe_u32 {t}, v0, 2, 1')
    k(f'v_mul_u32_u24 {c.aXr}, {1280 + 32}, {t}')
    k(f'v_bfe_u32 {t}, v0, 3, 1')
    k(f'v_mul_u32_u24 {t}, {2560 + 128}, {t}')
    k(f'v_lshl_add_u32 {c.aXr}, {c.g}, 6, {c.aXr}')
    k(f'v_and_b32 {base}, 3, v0')
    k(f'v_lshl_add_u32 {t}, {base}, 3, {t}')
    k(f'v_add_u32 {c.aXr}, {c.aXr}, {t}')
    k(f's_lshl_b32 {t0}, {c.w}, 8')
    k(f's_add_u32 {t0}, {t0}, {c.s0}')
    k(f's_lshl_b32 {t0}, {t0}, 6')
    k(f's_add_u32 {t0}, {t0}, {ZOFF}')
    k(f'v_lshl_add_u32 {t}, {c.g}, 4, {t0}')
    k(f'v_lshl_add_u32 {c.aZ[0]}, {c.n}, 16, {t}')
    k(f'v_add_u32 {c.aZ[1]}, {1 << 20}, {c.aZ[0]}')
    k(f's_and_b32 {t0}, {c.s0}, 1')
    k(f's_lshl_b32 {t0}, {t0}, 7')
    k(f's_lshr_b32 {t1}, {c.s0}, 1')
    k(f's_add_u32 {t0}, {t0}, {t1}')
    k(f's_lshl_b32 {c.t2}, {t0}, {c.gsh}')
    if c.qmode != 'narrow':
        k(f's_lshl_b32 {t1}, {c.w}, 12')
        k(f's_add_u32 {t0}, {t0}, {t1}')
        k(f's_lshl_b32 {t0}, {t0}, 6')
        k(f's_add_u32 {t0}, {t0}, {QOFF}')
        k(f'v_lshl_add_u32 {t}, {c.g}, 4, {t0}')
        k(f'v_lshl_add_u32 {c.aQ[0]}, {c.n}, 14, {t}')
        k(f'v_add_u32 {c.aQ[1]}, {1 << 20}, {c.aQ[0]}')
    m63 = s.get(2)
    k(f's_add_u32 {t0}, {c.t2}, {GOFF}')
    k(f'v_and_b32 {t}, {0xc7 if c.gsh == 5 else 0xc6}, v0')
    k(f'v_cmp_eq_u32 {m63}, 0, {t}')
    k(f'v_lshrrev_b32 {c.aGs}, 1, v0')
    if c.gsh == 6:
        k(f'v_and_b32 {t}, 1, v0')
        k(f'v_lshl_add_u32 {c.aGs}, {t}, 5, {c.aGs}')
    k(f'v_add_u32 {c.aGs}, {t0}, {c.aGs}')
    c.aGw, c.aGr = v.get(), v.get()
    k(f's_and_b32 {t0}, {c.w}, 1')
    k(f's_lshl_b32 {t0}, {t0}, 1')
    k(f's_lshr_b32 {t1}, {c.w}, 1')
    k(f's_add_u32 {t0}, {t0}, {t1}')
    k(f's_lshl_b32 {t0}, {t0}, 9')
    k(f's_add_u32 {t0}, {t0}, {L_G}')
    k(f'v_lshl_add_u32 {c.aGw}, {c.l}, 2, {t0}')
    k(f'v_lshlrev_b32 {c.aGr}, 5, {c.l}')
    k(f's_lshl_b32 {t0}, {c.x}, 9')
    k(f's_add_u32 {t0}, {t0}, {c.j}')
    k(f'v_cndmask_b32 {c.aGs}, 2.0, {c.aGs}, {m63}')
    k(f's_lshl_b32 {t0}, {t0}, 2')
    k(f's_add_u32 {t0}, {t0}, {c.w}')
    k(f's_lshl_b32 {t0}, {t0}, 7')
    k(f'v_lshl_add_u32 {c.aU}, {c.cb}, 5, {t0}')
    k(f'v_lshrrev_b32 {t}, 1, {c.P}')
    k(f'v_lshl_add_u32 {c.aU}, {t}, 14, {c.aU}')
    k(f'v_and_b32 {t}, 1, {c.P}')
    k(f'v_lshl_add_u32 {c.aU}, {t}, 4, {c.aU}')
    s.put(m63)
    v.put(base, step, t, c.P, c.cb)


def consts_a(k, c):
    s, v = k.s, k.v
    ip, base, step = (v.get() for _ in range(3))
    cs, sn = v.get(8), v.get(8)
    c.sel = s.get(4, 2)
    k(f's_mov_b32 {c.sel[0]}, 0x00003f80')
    k(f's_mov_b32 {c.sel[2]}, 0x00003f80')
    k(f's_lshr_b32 {c.t0}, {c.s0}, 6')
    k(f's_and_b32 {c.t0}, {c.t0}, 2')
    k(f's_mov_b32 {c.t2}, 0')
    k(f's_and_b32 {c.t1}, {c.s0}, 127')
    lab = k.begin_skip('s_cbranch_scc1', 'nospecial')
    k(f's_lshl_b32 {c.t0}, {c.iA}, 8')
    k(f's_add_u32 {c.t0}, {c.t0}, {c.s0}')
    k(f'v_cvt_f32_u32 {base}, {c.t0}')
    k(f'v_mul_f32 {base}, {fl(1 / 4096)}, {base}')
    k(f'v_sub_f32 {step}, {fl(1 / 8)}, {base}')
    k(f'v_cos_f32 {base}, {base}')
    k(f'v_cos_f32 {step}, {step}')
    k(f's_mov_b32 {c.t0}, 1')
    k(f'v_cvt_pk_bf16_f32 {base}, {step}, {base}')
    k(f's_movk_i32 {c.t2}, 3584')
    k(f'v_readfirstlane_b32 {c.sel[2]}, {base}')
    k(f's_and_b32 {c.sel[0]}, {c.sel[2]}, 0xffff')
    k(f's_lshr_b32 {c.sel[2]}, {c.sel[2]}, 16')
    k.end_skip(lab)
    k(f's_lshl_b32 {c.sel[1]}, {c.sel[0]}, 16')
    k(f's_lshl_b32 {c.sel[3]}, {c.sel[2]}, 16')
    k(f'v_and_b32 {ip}, 3, v0')
    k(f'v_lshl_add_u32 {ip}, {ip}, 2, {c.t0}')
    k(f'v_lshl_add_u32 {base}, {c.gea}, 8, {c.t2}')
    k(f'v_mad_u32_u24 {base}, {ip}, {c.s0}, {base}')
    k(f'v_cvt_f32_u32 {step}, {ip}')
    k(f'v_cvt_f32_u32 {base}, {base}')
    k(f'v_mul_f32 {step}, {fl(1 / 16)}, {step}')
    k(f'v_mul_f32 {base}, {fl(1 / 4096)}, {base}')
    sincos(k, base, step, range(8), cs, sn, negsin=True)
    c.CAr = [v.get(4) for _ in range(4)]
    c.CAi = [v.get(4) for _ in range(4)]
    mo, m2, m12 = ip, base, step
    odd = s.get(2)
    k(f'v_and_b32 {mo}, 1, {c.a2}')
    k(f'v_lshrrev_b32 {m2}, 1, {c.a2}')
    k(f'v_cmp_eq_u32 {odd}, 1, {mo}')
    k(f'v_mul_lo_u32 {mo}, {mo}, {c.sg}')
    k(f'v_mul_lo_u32 {m2}, {m2}, {c.sg}')
    k(f'v_xor_b32 {m12}, {mo}, {m2}')
    for m in range(4):
        k(f'v_cvt_pk_bf16_f32 {c.CAr[0][m]}, {cs[2 * m]}, {cs[2 * m + 1]}')
        k(f'v_cvt_pk_bf16_f32 {c.CAi[0][m]}, {sn[2 * m]}, {sn[2 * m + 1]}')
    for m in range(4):
        k(f'v_cndmask_b32 {c.CAr[3][m]}, {c.CAr[0][m]}, {c.CAi[0][m]}, {odd}')
        k(f'v_cndmask_b32 {c.CAi[3][m]}, {c.CAi[0][m]}, {c.CAr[0][m]}, {odd}')
        k(f'v_xor_b32 {c.CAr[2][m]}, {c.CAr[0][m]}, {mo}')
        k(f'v_xor_b32 {c.CAi[2][m]}, {c.CAi[0][m]}, {mo}')
    for m in range(4):
        k(f'v_xor_b32 {c.CAr[1][m]}, {c.CAr[3][m]}, {m2}')
        k(f'v_xor_b32 {c.CAi[1][m]}, {c.CAi[3][m]}, {m12}')
        k(f'v_xor_b32 {c.CAr[3][m]}, {c.CAr[3][m]}, {m12}')
        k(f'v_xor_b32 {c.CAi[3][m]}, {c.CAi[3][m]}, {m2}')
    s.put(odd, c.sg)
    v.put(ip, base, step, cs, sn, c.a2, c.gea)


def p1_dft(k, c):
    s, v = k.s, k.v
    f = v.get(8)
    o = v.get(4)
    X = v.get()
    if c.stamps and 'qarr' in c.stamps:
        k.waitfor(*c.qd, *c.qm)
        stamp(k, c, 'qarr')
    for r in range(2):
        A, M = c.qd[r], c.qm[r]
        lo, hi = c.sel[2 * r], c.sel[2 * r + 1]
        k(f'v_mov_b32_dpp {X}, {M[0]} wave_ror:1 row_mask:0xf bank_mask:0xf')
        for m in range(4):
            k(f'v_dot2_f32_bf16 {f[2 * m]}, {A[m]}, {lo}, 0')
            k(f'v_dot2_f32_bf16 {f[2 * m + 1]}, {A[m]}, {hi}, 0')
        src = [(X, 0), (M[3], 1), (M[3], 0), (M[2], 1), (M[2], 0), (M[1], 1), (M[1], 0), (M[0], 1)]
        for e in range(8):
            k(f'v_dot2c_f32_bf16 {f[e]}, {hi if src[e][1] else lo}, {src[e][0]}')
        dst = o if r == 0 else c.qm[0]
        for m in range(4):
            k(f'v_cvt_pk_bf16_f32 {dst[m]}, {f[2 * m]}, {f[2 * m + 1]}')
        k(f'ds_write_b128 {c.aXw}, {dst} offset:{L_X + r * (2560 + 128)}')
    z = f[0:2]
    for m in range(4):
        for r in range(2):
            k(f'v_dot2_f32_bf16 {z[r]}, {c.qd[r][m]}, {c.gw[m]}, {z[r] if m else 0}')
    k(f'ds_write2st64_b32 {c.aGw}, {z[0]}, {z[1]} offset0:0 offset1:1')
    k('s_waitcnt lgkmcnt(0)')
    stamp(k, c, 'xt')
    k('s_barrier')
    v.put(o, X, c.qm[0], c.qm[1], c.aXw, c.qd[0], c.qd[1], c.gw, c.aGw)
    s.put(c.sel)
    F = [[v.get(4) for _ in range(4)] for _ in range(2)]
    for T in range(2):
        for ks in range(4):
            for h in range(2):
                k(f'ds_read_b64_tr_b16 {F[T][ks][2 * h:2 * h + 2]}, {c.aXr} offset:{L_X + 5120 * h + 256 * ks + 32 * T}')
    sync_go(k, c)
    if c.qmode == 'late':
        for x in c.Lq:
            k(x)
    if c.qmode == 'early':
        for eh in range(2):
            k(f'global_store_dwordx4 {c.aQ[eh]}, {c.qp[eh]}, {c.pws}{SC}')
    if c.hpos == 4:
        for x in c.Lh:
            k(x)
    Dr = [v.get(4), v.get(4)]
    Di = [v.get(4), v.get(4)]
    mf = []
    for T in range(2):
        for ks in range(4):
            mf.append(f'v_mfma_f32_16x16x32_bf16 {Dr[T]}, {F[T][ks]}, {c.CAr[ks]}, {Dr[T] if ks else 0}')
            mf.append(f'v_mfma_f32_16x16x32_bf16 {Di[T]}, {F[T][ks]}, {c.CAi[ks]}, {Di[T] if ks else 0}')
    st = Stream(mf)
    for h in range(2):
        k(f'ds_read_b128 {f[4 * h:4 * h + 4]}, {c.aGr} offset:{L_G + 16 * h}')
    c.Kf = [v.get(2) for _ in range(11)]
    c.Wt = [v.get(2) for _ in range(4)]
    unp = lambda d, x: [f'v_lshlrev_b32 {d[0]}, 16, {x}', f'v_and_b32 {d[1]}, 0xffff0000, {x}']
    c.unpK = [i for t_ in range(11) for i in unp(c.Kf[t_], c.K[t_])]
    for ch in range(2):
        for jj in range(4):
            src = c.skw[2 * ch + (jj >> 1)]
            c.unpK.append(f'v_and_b32 {c.Wt[jj][ch]}, 0xffff0000, {src}' if jj & 1 else f'v_lshlrev_b32 {c.Wt[jj][ch]}, 16, {src}')
    c.unp = unp
    z = f[0]
    g = st.place(3, [f'v_add_f32 {f[i]}, {f[i]}, {f[i + 4]}' for i in range(4)] +
                 [f'v_add_f32 {f[i]}, {f[i]}, {f[i + 2]}' for i in range(2)])
    chain = [f'v_add_f32 {z}, {z}, {f[1]}']
    chain += [f'v_add_f32_dpp {z}, {z}, {z} {ctl} row_mask:0xf bank_mask:0xf' for ctl in
              ('quad_perm:[1,0,3,2]', 'quad_perm:[2,3,0,1]', 'row_half_mirror')]
    chain += [f'v_mul_f32 {z}, {fl(-1.4426950408889634)}, {z}', f'v_exp_f32 {z}, {z}', f'v_add_f32 {z}, 1.0, {z}',
              f'v_rcp_f32 {z}, {z}']
    g = st.place(g + 1, chain, per_gap=1)
    for gg in range(len(mf)):
        if any(x.startswith(('v_exp', 'v_rcp')) for x in st.vec[gg]):
            st.vec[gg].append('')
    if 'g' not in c.o.get('skip', ''):
        g = st.place(g + 1, [f'buffer_store_dword {z}, {c.aGs}, {c.srdws}, 0 offen{SC}'])
    ks0 = c.o.get('ks0', 6)
    if ks0 < 16:
        st.place(ks0, c.unpK)
        c.unpK, st.tail = st.tail, []
    st.vec = [[x for x in g_ if x] for g_ in st.vec]
    stamp(k, c, 'trd')
    st.emit(k)
    stamp(k, c, 'stA')
    Re, Im, t = v.get(4), v.get(4), v.get(4)
    for T in range(2):
        cmul_tw(k, Dr[T], Di[T], c.tw1c[4 * T:4 * T + 4], c.tw1s[4 * T:4 * T + 4], t)
        for h in range(2):
            k(f'v_cvt_pk_bf16_f32 {Im[2 * T + h]}, {Di[T][2 * h]}, {Di[T][2 * h + 1]}')
        for h in range(2):
            k(f'v_cvt_pk_bf16_f32 {Re[2 * T + h]}, {Dr[T][2 * h]}, {Dr[T][2 * h + 1]}')
    stamp(k, c, 'tw1')
    Hr, Hi = F[0][0:2], F[0][2:4]
    mf = []
    for Tb in range(2):
        mf.append(f'v_mfma_f32_16x16x32_bf16 {Hr[Tb]}, {Im}, {c.CBs[Tb]}, 0')
        mf.append(f'v_mfma_f32_16x16x32_bf16 {Hi[Tb]}, {Im}, {c.CBc[Tb]}, 0')
        mf.append(f'v_mfma_f32_16x16x32_bf16 {Hr[Tb]}, {Re}, {c.CBc[Tb]}, {Hr[Tb]}')
        mf.append(f'v_mfma_f32_16x16x32_bf16 {Hi[Tb]}, {Re}, {c.CBn[Tb]}, {Hi[Tb]}')
    st = Stream(mf)
    if c.hpos == 1:
        st.place(0, c.Lh, per_gap=1)
    if ks0 < 24:
        st.place(0, c.unpK)
        c.unpK, st.tail = st.tail, []
    st.emit(k)
    for Tb in range(2):
        o = F[1][Tb]
        if Tb == 1:
            for x in c.unpK[:4]:
                k(x)
            c.unpK = c.unpK[4:]
        for i in range(4):
            k(f'v_cvt_pk_bf16_f32 {o[i]}, {Hr[Tb][i]}, {Hi[Tb][i]}')
        if 'z' not in c.o.get('skip', ''):
            k(f'global_store_dwordx4 {c.aZ[Tb]}, {o}, {c.pws}{SC}')
    v.put(*F[0], *F[1], *Dr, *Di, Re, Im, t, c.aXr, c.aZ, c.tw1c, c.tw1s, f, c.aGs, c.aGr)
    v.put(*c.CAr, *c.CAi, *c.CBc, *c.CBs, *c.CBn)


def p1_kv(k, c):
    s, v = k.s, k.v
    Kf, Wt = c.Kf, c.Wt
    Vf = [v.get(2) for _ in range(8)]
    c.unpV = [i for t_ in range(8) for i in c.unp(Vf[7 - t_], c.V[7 - t_])]
    for x in c.unpK:
        k(x)
    S = [v.get(2) for _ in range(8)]
    for jj in range(4):
        for t in range(8):
            if jj == 0:
                k(f'v_pk_mul_f32 {S[t]}, {Kf[3 + t]}, {Wt[0]}')
            else:
                k(f'v_pk_fma_f32 {S[t]}, {Kf[3 + t - jj]}, {Wt[jj]}, {S[t]}')
    stamp(k, c, 'ks')
    if c.stamps and 'varr' in c.stamps:
        k.waitfor(c.V)
        stamp(k, c, 'varr')
    k.waitfor(c.V, *c.qp)
    stamp(k, c, 'qparr')
    if c.qmode == 'late':
        for eh in range(2):
            k(f'global_store_dwordx4 {c.aQ[eh]}, {c.qp[eh]}, {c.pws}{SC}')
    stamp(k, c, 'qst')
    for x in c.unpV:
        k(x)
    for t in range(8):
        k(f'v_pk_mul_f32 {S[7 - t]}, {S[7 - t]}, {Vf[7 - t]}')
    o = [v.get(4), v.get(4)]
    for p in range(2):
        for m in range(4):
            k(f'v_cvt_pk_bf16_f32 {o[p][m]}, {S[7 - 2 * m][p]}, {S[6 - 2 * m][p]}')
        if 'u' not in c.o.get('skip', ''):
            k(f'global_store_dwordx4 {c.aU}, {o[p]}, {c.pws} offset:{UOFF + 64 * p}{"" if "p" in c.o.get("skip", "") else SC}')
    k.mark('stores')
    v.put(*Wt, *Kf, *Vf, *S, *o, c.K, c.V, c.skw, c.aU, c.aQ, *c.qp)


def p2_consts(k, c):
    s, v = k.s, k.v
    t0, t1 = c.t0, c.t1
    k1, base, step, t = (v.get() for _ in range(4))
    m = s.get(2)
    k(f'v_lshrrev_b32 {t}, 2, {c.n}')
    k(f'v_and_b32 {k1}, 3, v0')
    k(f'v_lshl_add_u32 {k1}, {k1}, 2, {t}')
    c.sgn = v.get()
    c.psel = s.get()
    k(f's_cmp_eq_u32 {c.tau}, 0')
    k(f's_mov_b32 {t0}, 0x03020c0c')
    k(f's_cselect_b32 {c.psel}, 0x01000c0c, {t0}')
    k(f'v_lshlrev_b32 {t}, 31, {t}')
    k(f'v_xor_b32 {c.sgn}, 1.0, {t}')
    cs, sn = v.get(4), v.get(4)
    k(f's_lshl_b32 {t0}, {c.tau}, 3')
    k(f'v_lshl_add_u32 {t}, {c.g}, 1, {t0}')
    k(f'v_mul_u32_u24 {base}, {t}, {k1}')
    k(f'v_cvt_f32_u32 {step}, {k1}')
    k(f'v_cvt_f32_u32 {base}, {base}')
    k(f'v_mul_f32 {step}, {fl(1 / 16)}, {step}')
    k(f'v_mul_f32 {base}, {fl(1 / 16)}, {base}')
    sincos(k, base, step, [0, 1], cs, sn)
    c.Fa = v.get(4)
    c.Far, c.Fai = c.Fa[0:2], c.Fa[2:4]
    k(f'v_mul_u32_u24 {base}, {c.g}, {k1}')
    for jj in range(2):
        k(f'v_cvt_pk_bf16_f32 {c.Far[jj]}, {cs[jj]}, {sn[jj]}')
        k(f'v_cvt_pk_bf16_f32 {c.Fai[jj]}, -{sn[jj]}, {cs[jj]}')
    k(f'v_cvt_f32_u32 {base}, {base}')
    k(f'v_mul_f32 {base}, {fl(1 / 4)}, {base}')
    sincos(k, base, step, [0, 1, 2, 3], cs, sn)
    c.Fb = v.get(4)
    k(f'v_mul_f32 {base}, {fl(1 / 16)}, {base}')
    k(f'v_mul_f32 {step}, {fl(1 / 16)}, {step}')
    for h in range(2):
        k(f'v_cvt_pk_bf16_f32 {c.Fb[h]}, {cs[2 * h]}, {cs[2 * h + 1]}')
        k(f'v_cvt_pk_bf16_f32 {c.Fb[2 + h]}, {sn[2 * h]}, {sn[2 * h + 1]}')
    sincos(k, base, step, [0, 1, 2, 3], cs, sn)
    c.tw2c, c.tw2s = cs, sn
    c.Ci = [v.get(4) for _ in range(4)]
    c.SP = v.get(8)
    for jj in range(4):
        k(f'v_pk_mov_b32 {c.Ci[jj][0:2]}, 0, 0')
        k(f'v_pk_mov_b32 {c.Ci[jj][2:4]}, 0, 0')
        k(f'v_pk_mov_b32 {c.SP[2 * jj:2 * jj + 2]}, 0, 0')
    k(f's_mul_i32 {t0}, {c.w}, {WS}')
    k(f'v_mul_u32_u24 {t}, {PS}, {c.g}')
    k(f'v_lshl_add_u32 {t}, {c.n}, 4, {t}')
    c.aB = v.get()
    k(f'v_add_u32 {c.aB}, {t0}, {t}')
    k(f'ds_write_b128 {c.aB}, {c.Ci[0]} offset:{L_U}')
    c.aHw, c.aHr = v.get(), v.get()
    k(f's_mul_i32 {t0}, {c.w}, {HS}')
    k(f's_add_u32 {t0}, {t0}, {L_H}')
    k(f'v_lshl_add_u32 {t}, {c.n}, 2, {t0}')
    k(f'v_add_u32 {c.aHw}, {t0}, {c.l16}')
    k(f'ds_write_b32 {t}, {c.Ci[0][0]}')
    k(f'ds_write_b32 {t}, {c.Ci[0][0]} offset:{HC}')
    k(f's_add_u32 {t1}, {c.tau}, 1')
    k(f'v_lshl_add_u32 {t}, {c.g}, 2, {c.n}')
    k(f'v_add_u32 {t}, {t1}, {t}')
    k(f'v_and_b32 {base}, 1, {t}')
    k(f'v_mul_u32_u24 {base}, {HC - 4}, {base}')
    k(f'v_lshl_add_u32 {t}, {t}, 2, {t0}')
    k(f'v_add_u32 {c.aHr}, {base}, {t}')
    v.put(k1, base, step, t)
    s.put(m)


def out_addrs(k, c):
    if hasattr(c, 'xl'):
        return
    s, v = k.s, k.v
    t0 = c.t0
    c.xl, c.aO1, t = v.get(), v.get(), v.get()
    c.qn = v.get(8)
    c.qdone = 0
    k(f's_lshl_b32 {t0}, {c.w}, 2')
    k(f'v_and_b32 {t}, 60, v0')
    k(f'v_lshl_add_u32 {c.xl}, {t}, 2, {t0}')
    k(f'v_and_or_b32 {c.xl}, v0, 3, {c.xl}')
    k(f's_lshl_b32 {t0}, {c.tau}, 7')
    k(f's_add_u32 {t0}, {t0}, {c.E}')
    k(f's_lshl_b32 {t0}, {t0}, 3')
    k(f'v_lshl_add_u32 {c.aO1}, {c.xl}, 11, {t0}')
    v.put(t)
    c.srdq = s.get(4, 4)
    c.po = s.get(3, 1)
    k(f's_mov_b32 {c.srdq[0]}, {c.pq[0]}')
    k(f's_and_b32 {c.srdq[1]}, {c.pq[1]}, 0xffff')
    k(f's_mov_b32 {c.srdq[2]}, {2 << 20}')
    k(f's_mov_b32 {c.srdq[3]}, 0x00020000')
    for cc in range(1, 4):
        k(f's_mov_b32 {c.po[cc - 1]}, {cc << 19}')
    c.qld = lambda cc: f'buffer_load_dwordx2 {c.qn[2 * cc:2 * cc + 2]}, {c.aO1}, {c.srdq}, {c.po[cc - 1] if cc else 0} offen'


def p2_addrs(k, c):
    s, v = k.s, k.v
    t0, t1 = c.t0, c.t1
    out_addrs(k, c)
    t, u, xl = v.get(), v.get(), c.xl
    c.srdo = s.get(4, 4)
    k(f's_mov_b32 {c.srdo[0]}, {c.pout[0]}')
    k(f's_and_b32 {c.srdo[1]}, {c.pout[1]}, 0xffff')
    k(f's_mov_b32 {c.srdo[2]}, {2 << 20}')
    k(f's_mov_b32 {c.srdo[3]}, 0x00020000')
    m = s.get(2)
    c.aUg, c.aUw = v.get(2, 1), v.get()
    c.e14 = s.get()
    k(f's_lshl_b32 {c.e14}, {c.E}, 14')
    k(f's_add_u32 {t0}, {c.e14}, {UOFF + 4096}')
    k(f'v_lshl_add_u32 {c.aUg[0]}, v0, 4, {t0}')
    k(f'v_add_u32 {c.aUg[1]}, 8192, {c.aUg[0]}')
    k(f'v_and_b32 {t}, 1, v0')
    k(f'v_bfe_u32 {u}, v0, 2, 1')
    k(f'v_lshl_add_u32 {t}, {t}, 1, {u}')
    k(f'v_mul_u32_u24 {c.aUw}, {WS}, {t}')
    k(f'v_bfe_u32 {t}, v0, 3, 2')
    k(f'v_xor_b32 {t}, 3, {t}')
    k(f'v_mul_u32_u24 {t}, {PS}, {t}')
    k(f'v_and_b32 {u}, 0xe0, v0')
    k(f'v_add3_u32 {c.aUw}, {c.aUw}, {t}, {u}')
    k(f'v_and_b32 {t}, 2, v0')
    k(f'v_lshl_add_u32 {c.aUw}, {t}, 3, {c.aUw}')
    c.aZ0, c.aZ1, c.aG, c.aQg = (v.get() for _ in range(4))
    c.aSP = v.get(2, 1)
    k(f's_lshl_b32 {t1}, {c.w}, 4')
    k(f's_add_u32 {t0}, {c.e14}, {t1}')
    k(f's_add_u32 {t0}, {t0}, {ZOFF}')
    k(f'v_mov_b32 {c.aSP[0]}, {t0}')
    k(f'v_add_u32 {c.aSP[1]}, 8192, {c.aSP[0]}')
    k(f's_lshl_b32 {t1}, {c.tau}, 13')
    k(f's_add_u32 {t0}, {t0}, {t1}')
    k(f'v_cmp_eq_u32 {m}, 0, {c.l}')
    k(f'v_lshl_add_u32 {c.aZ1}, {c.n}, 6, {t0}')
    k(f'v_lshl_add_u32 {c.aZ1}, {c.g}, 11, {c.aZ1}')
    k(f'v_cndmask_b32 {c.aZ0}, {c.aZ1}, 2.0, {m}')
    k(f'v_and_b32 {t}, 3, v0')
    c.aYBw, c.aYBr, c.aYAw, c.aYAr = (v.get() for _ in range(4))
    k(f'v_mul_u32_u24 {c.aYBr}, 1088, {t}')
    k(f'v_and_b32 {u}, 12, v0')
    k(f'v_lshl_add_u32 {c.aYBr}, {u}, 2, {c.aYBr}')
    k(f's_lshl_b32 {t0}, {c.w}, 6')
    k(f'v_lshl_add_u32 {u}, {c.g}, 8, {t0}')
    k(f'v_add_u32 {c.aYBr}, {c.aYBr}, {u}')
    k(f'v_and_b32 {t}, 127, {xl}')
    k(f'v_lshrrev_b32 {u}, 7, {xl}')
    k(f's_lshl_b32 {t0}, {c.tau}, {7 + c.gsh}')
    k(f's_add_u32 {t0}, {t0}, {GOFF}')
    k(f'v_lshl_add_u32 {c.aG}, {t}, {c.gsh}, {t0}')
    k(f'v_lshl_add_u32 {c.aG}, {u}, 4, {c.aG}')
    if c.qmode != 'narrow':
        k(f'v_lshl_add_u32 {t}, {t}, 1, {u}')
        k(f's_add_u32 {t0}, {c.e14}, {t1}')
        k(f's_add_u32 {t0}, {t0}, {QOFF}')
        k(f'v_lshl_add_u32 {c.aQg}, {t}, 5, {t0}')
    k(f's_mul_i32 {t0}, {c.w}, {4 * 1088}')
    k(f'v_add_u32 {c.aYBw}, {t0}, {c.l16}')
    k(f'v_lshlrev_b32 {c.aYAw}, 4, v0')
    k(f'v_lshlrev_b32 {c.aYAr}, 2, v0')
    k(f'v_add_u32 {c.aYAr}, {L_YA}, {c.aYAr}')
    v.put(t, u, xl)
    s.put(m, c.e14)


def narrow_q(k, c, n):
    if c.qmode != 'narrow':
        return
    for cc in range(c.qdone, c.qdone + n):
        k(c.qld(cc))
    c.qdone += n


def p2_hstage(k, c):
    s, v = k.s, k.v
    H = c.H
    P = v.get(4, 1)
    U = [v.get(4) for _ in range(4)]
    sh = s.get()
    k(f's_lshl_b32 {sh}, {c.tau}, 4')
    k(f's_xor_b32 {sh}, {sh}, 16')
    k.waitfor(*H, c.Dv)
    k(f'v_mov_b32_dpp {P[0]}, {H[0][3]} wave_shr:1 row_mask:0xf bank_mask:0xf bound_ctrl:0')
    for n in range(1, 4):
        k(f'v_mov_b32_dpp {P[n]}, {H[n - 1][3]} wave_ror:1 row_mask:0xf bank_mask:0xf')
    for n in range(1, 4):
        k(f'v_mov_b32_dpp {P[n]}, {H[n][3]} wave_shr:1 row_mask:0xf bank_mask:0xf')
    for n in range(4):
        for m in (1, 2, 3):
            k(f'v_alignbit_b32 {U[n][m]}, {H[n][m]}, {H[n][m - 1]}, {sh}')
        k(f'v_alignbit_b32 {U[n][0]}, {H[n][0]}, {P[n]}, {sh}')
        k(f'ds_write_b128 {c.aHw}, {U[n]} offset:{64 + 1024 * n}')
    k(f'v_lshlrev_b32 {c.Dv}, {sh}, {c.Dv}')
    k(f's_cmp_eq_u32 {c.tau}, 1')
    lab = k.begin_skip('s_cbranch_scc1', 'noshift')
    for n in range(3):
        k(f'v_mov_b32_dpp {H[n][3]}, {U[n + 1][0]} wave_rol:1 row_mask:0xf bank_mask:0xf')
    for n in range(4):
        k(f'v_pk_mov_b32 {H[n][0:2]}, {U[n][0:2]}, {U[n][2:4]} op_sel:[1,0]')
        k(f'v_mov_b32 {H[n][2]}, {U[n][3]}')
    for n in range(4):
        k(f'v_mov_b32_dpp {H[n][3]}, {U[n][0]} wave_shl:1 row_mask:0xf bank_mask:0xf')
    k.end_skip(lab)
    k(f'ds_write_b32 {c.aHw}, {U[0][0]} offset:{HC + 60}')
    for n in range(4):
        k(f'ds_write_b128 {c.aHw}, {H[n]} offset:{HC + 64 + 1024 * n}')
    c.AD = v.get(4)
    t = P[0]
    ms = [s.get(2) for _ in range(4)]
    k(f'v_lshl_add_u32 {t}, {c.g}, 2, {c.n}')
    for m in range(4):
        k(f'v_cmp_eq_u32 {ms[m]}, {15 - m}, {t}')
    for m in range(4):
        k(f'v_cndmask_b32 {c.AD[m]}, 0, {c.Dv}, {ms[m]}')
    s.put(*ms, sh)
    v.put(P, *H, *U, c.Dv, c.aHw)


def p2_afrags(k, c, ps):
    for p in ps:
        for r in range(16):
            a = R('a', 4 * (16 * p + r), 4)
            for h in range(2):
                k(f'ds_read_b64 {a[2 * h:2 * h + 2]}, {c.aHr} offset:{64 * (16 * p + r) + 8 * h}')
        if p == 3:
            k.v.put(c.aHr)


def p2_xloads(k, c):
    s, v = k.s, k.v
    c.Ul = [v.get(4) for _ in range(4)]
    c.Zl = v.get(8)
    c.G = v.get(4)
    ul = lambda n: f'global_load_dwordx4 {c.Ul[n]}, {c.aUg[n >> 1]}, {c.pws} offset:{-4096 + 4096 * (n & 1)}{SC}'
    k(ul(0))
    k(ul(1))
    k(f'buffer_load_dwordx4 {c.Zl[0:4]}, {c.aZ0}, {c.srdws}, 0 offen{SC}')
    k(f'buffer_load_dwordx4 {c.Zl[4:8]}, {c.aZ1}, {c.srdws}, 0 offen offset:1024{SC}')
    k('s_mov_b64 exec, 0xffff')
    k(f'global_load_dwordx4 {c.SP[0:4]}, {c.aSP[0]}, {c.pws}{SC}')
    k(f'global_load_dwordx4 {c.SP[4:8]}, {c.aSP[1]}, {c.pws}{SC}')
    k('s_mov_b64 exec, -1')
    late = [ul(2), ul(3), f'global_load_dwordx4 {c.G}, {c.aG}, {c.pws}{SC}']
    if c.qmode != 'narrow':
        late += [f'global_load_dwordx4 {c.qn[4 * h:4 * h + 4]}, {c.aQg}, {c.pws} offset:{16 * h}{SC}' for h in range(2)]
    n = c.o.get('xl', 2)
    for x in late[:n]:
        k(x)
    c.late = late[n:]
    v.put(c.aUg[0], c.aZ0, c.aZ1, c.aSP, c.l, c.l16, c.n, c.g)
    if c.o.get('page', True):
        lab = k.label('page')
        k(f's_branch {lab}')
        k.raw('.p2align 12')
        k.raw(f'{lab}:')


def p2_main(k, c):
    s, v = k.s, k.v
    o = c.o
    Zl, SP, Ul, G, qn, Ci = c.Zl, c.SP, c.Ul, c.G, c.qn, c.Ci
    uw = lambda n: f'ds_write_b128 {c.aUw}, {Ul[n]} offset:{L_U + 256 + 256 * n}'
    rd = lambda dst, q, r: f'ds_read_b128 {dst}, {c.aB} offset:{L_U + 16 + 256 * q + 16 * (15 - r)}'
    k(uw(0))
    k(uw(1))
    for x in c.late:
        k(x)
    v.put(c.aUg[1], c.aG, c.aQg)
    k('s_waitcnt lgkmcnt(0)')
    k('s_barrier')
    stamp(k, c, 'ubar')
    v.put(Ul[0], Ul[1])
    B0 = [v.get(4) for _ in range(16)]
    B1 = [v.get(4) for _ in range(16)]
    Di = [v.get(4) for _ in range(4)]
    acc = [v.get(4) for _ in range(2)]
    ya, ob, t = v.get(4), v.get(2), v.get(2)
    gq = c.Fa
    Bf = [Zl[0:4], Zl[4:8]]
    ring2 = [SP[0:4], SP[4:8], Ul[2], Ul[3]]
    ring3 = ring2 + Di[:o.get('r3', 2)]
    Y = Ci
    NPRE = o.get('npre', 6)
    for r in range(NPRE):
        k(rd(B0[r], 0, r))
    A = lambda p, r: R('a', 4 * (16 * p + r), 4)
    fr = [Zl[0:2], Zl[4:6], Zl[2:4], Zl[6:8]]
    mf = []
    seen = set()
    def add(cc, a, b, tag=None):
        d = acc[cc & 1]
        mf.append((cc, tag, f'v_mfma_f32_16x16x32_bf16 {d}, {a}, {b}, {d if cc in seen else 0}'))
        seen.add(cc)
    streams = []
    def addstream(cc, p, q, r, reg):
        streams.append((q, r, reg))
        add(cc, A(p, r), reg, ('s', len(streams) - 1))
        if r == 0 and p == 0:
            add(cc, c.AD, reg, ('s', len(streams) - 1))
    add(0, c.AD, B0[0])
    for r in range(16):
        add(0, A(0, r), B0[r])
    for r in range(16):
        add(1, A(1, r), B0[r])
    add(1, c.AD, B1[0])
    for r in range(16):
        add(1, A(0, r), B1[r])
    for r in range(16):
        add(2, A(2, r), B0[r])
        add(2, A(1, r), B1[r])
        addstream(2, 0, 2, r, ring2[r % 4])
    n3 = len(ring3)
    order3 = ring3[4:] + ring3[:4]
    for r in range(16):
        add(3, A(3, r), B0[r])
        addstream(3, 1, 2, r, order3[(2 * r) % n3])
        add(3, A(2, r), B1[r])
        addstream(3, 0, 3, r, order3[(2 * r + 1) % n3])
    sa = o.get('sa', 20)
    sta = []
    for jj in range(4):
        sta.append((-1, ('a', jj), f'v_mfma_f32_16x16x16_bf16 {Di[jj]}, {fr[jj]}, {c.Fai}, 0'))
        sta.append((-1, ('a', jj), f'v_mfma_f32_16x16x16_bf16 {Ci[jj]}, {fr[jj]}, {c.Far}, {Ci[jj]}'))
    mf[sa:sa] = sta
    sb = o.get('sb', [x + sa - 20 for x in (38, 49, 61, 74)])
    for jj in range(4):
        mf.insert(sb[jj], (-1, ('b', jj), f'v_mfma_f32_16x16x32_bf16 {Y[jj]}, {c.Fb}, {Bf[jj & 1]}, 0'))
    st = Stream([m[2] for m in mf])
    pos = lambda tag: [i for i, m in enumerate(mf) if m[1] == tag]
    last = {cc: max(i for i, m in enumerate(mf) if m[0] == cc) for cc in range(4)}
    g = st.place(0, [rd(B0[r], 0, r) for r in range(NPRE, 16)])
    g = st.place(g + 1, [rd(B1[r], 1, r) for r in range(16)])
    yaw = lambda cc: f'ds_write_b128 {c.aYAw}, {acc[cc & 1]} offset:{L_YA + 4096 * cc}@ya{cc}'
    g = st.place(max(g + 1, last[0] + 4), [yaw(0)])
    g = st.place(g + 3, [uw(2)])
    g = st.place(g + 3, [uw(3) + '@uw'])
    gu = st.barrier_after(g + 4, 'uw')
    prev_use = {}
    for si, (q, r, reg) in enumerate(streams):
        p_ = pos(('s', si))
        lo = prev_use.get(str(reg), None)
        if lo is None:
            lo = max(gu, p_[0] - 12)
            if any(str(reg) == str(d) for d in Di):
                lo = max(lo, pos(('b', 3))[0])
        gg = st.place(lo, [rd(reg, q, r)])
        assert gg < p_[0] - 3, (si, gg, p_)
        prev_use[str(reg)] = p_[-1]
    g1 = st.place(last[1] + 4, [yaw(1)])
    if c.qmode == 'narrow':
        for n_, cc in enumerate(range(c.qdone, 4)):
            st.place(o.get('qg', [14, 44, 72, 90])[n_], [c.qld(cc)])
    pre_a = [f'v_perm_b32 {SP[i]}, {SP[i]}, {SP[i]}, {c.psel}' for i in range(8)]
    pre_a += [f'v_fma_f32 {Ci[jj][0]}, {SP[4 + jj]}, {c.sgn}, {SP[jj]}' for jj in range(4)]
    g = st.place(o.get('zs', 4), [f'v_swap_b32 {Zl[1]}, {Zl[4]}', f'v_swap_b32 {Zl[3]}, {Zl[6]}'], per_gap=1)
    g = st.place(g + 1, pre_a)
    assert g < sa - 1, (g, sa)
    g = sa + 4
    gw_ = 0
    for jj in range(4):
        a, b = Ci[jj], Di[jj]
        tw = []
        for h in (0, 2):
            for i in (h, h + 1):
                tw.append(f'v_mul_f32 {t[i & 1]}, {b[i]}, {c.tw2s[i]}')
                tw.append(f'v_mul_f32 {b[i]}, {b[i]}, {c.tw2c[i]}')
            for i in (h, h + 1):
                tw.append(f'v_fma_f32 {b[i]}, -{a[i]}, {c.tw2s[i]}, {b[i]}')
                tw.append(f'v_fma_f32 {a[i]}, {a[i]}, {c.tw2c[i]}, {t[i & 1]}')
        cv = [f'v_cvt_pk_bf16_f32 {Bf[jj & 1][2 + h]}, {b[2 * h]}, {b[2 * h + 1]}' for h in range(2)]
        cv += [f'v_cvt_pk_bf16_f32 {Bf[jj & 1][h]}, {a[2 * h]}, {a[2 * h + 1]}' for h in range(2)]
        g = st.place(max(g, pos(('a', jj))[-1] + 3), tw)
        g = st.place(max(g, sa + 7), cv)
        pb = pos(('b', jj))[0]
        assert g < pb - 1, ('stage b too early', jj, g, pb)
        sys.stderr.write(f'tw{jj} done at gap {g}, stage b at {pb}\n')
        gw_ = st.place(pb + 3, [f'ds_write_b128 {c.aYBw}, {Y[jj]} offset:{L_YB + 1088 * jj}' + ('@yb' if jj == 3 else '')])
    assert gw_ > g1
    gb = st.barrier_after(gw_ + 4, 'yb')
    gy = st.place(gb, [f'ds_read_b128 {Y[w]}, {c.aYBr} offset:{L_YB + 4 * 1088 * w}' for w in range(4)])

    def epi(cc):
        e2 = [f'ds_read2st64_b32 {ya[0:2]}, {c.aYAr} offset0:{16 * cc} offset1:{16 * cc + 4}',
              f'ds_read2st64_b32 {ya[2:4]}, {c.aYAr} offset0:{16 * cc + 8} offset1:{16 * cc + 12}']
        e3 = [f'v_fma_f32 {ya[w]}, {gq[w]}, {ya[w]}, {Y[w][cc]}' for w in range(4)]
        e3 += [f'v_cvt_pk_bf16_f32 {ob[h]}, {ya[2 * h]}, {ya[2 * h + 1]}' for h in range(2)]
        e4 = [f'buffer_store_dwordx2 {ob}, {c.aO1}, {c.srdo}, {c.po[cc - 1] if cc else 0} offen']
        return e2, e3, e4

    def pre(cc):
        o1 = []
        for h in range(2):
            o1.append(f'v_lshlrev_b32 {gq[2 * h]}, 16, {qn[2 * cc + h]}')
            o1.append(f'v_and_b32 {gq[2 * h + 1]}, 0xffff0000, {qn[2 * cc + h]}')
        o1 += [f'v_mul_f32 {gq[w]}, {G[cc]}, {gq[w]}' for w in range(4)]
        o2 = [f'v_fma_f32 {Y[w][cc]}, -{G[cc]}, {Y[w][cc]}, {Y[w][cc]}' for w in range(4)]
        return o1, o2
    gp = g + 1
    gfree = gu
    for cc in range(4):
        o1, o2 = pre(cc)
        gp = st.place(gp, o1)
        if cc == 0:
            e2, e3, e4 = epi(0)
            g = st.place(gfree, e2)
            gp = st.place(max(g + 5, gp), [f'v_mul_f32 {ya[w]}, {gq[w]}, {ya[w]}' for w in range(4)] + [f'v_sub_f32 {G[0]}, 1.0, {G[0]}'])
            g = st.place(max(gp, gy + 3), [f'v_fmac_f32 {ya[w]}, {G[0]}, {Y[w][0]}' for w in range(4)] + e3[4:])
            gfree = g + 1
            g = st.place(g + 1, e4)
            sys.stderr.write(f'store {cc} at gap {g} of {len(mf)}\n')
            gp += 1
            continue
        gp = st.place(max(gp, gy + 4), o2)
        if cc < 3:
            e2, e3, e4 = epi(cc)
            if cc == 1:
                gfree = max(gfree, gb)
            if cc == 2:
                g2 = st.place(last[2] + 4, [yaw(2)])
                gfree = max(gfree, st.barrier_after(g2 + 4, 'ya2'))
            g = st.place(gfree, e2)
            g = st.place(max(g + 5, gp), e3)
            gfree = g + 1
            gp = g + 1
            g = st.place(g + 1, e4)
            sys.stderr.write(f'store {cc} at gap {g} of {len(mf)}\n')
    assert not st.tail
    for pat in c.drop:
        st.vec = [[x for x in g_ if not x.startswith(pat) or '@' in x] for g_ in st.vec]
        st.sca = [[x for x in g_ if not x.startswith(pat)] for g_ in st.sca]
    st.emit(k)
    stamp(k, c, 'conv')
    k(yaw(3).split('@')[0])
    k('s_waitcnt lgkmcnt(0)')
    k('s_barrier')
    e2, e3, e4 = epi(3)
    for ins in e2 + e3 + e4:
        k(ins)


def sync_go(k, c):
    s, v = k.s, k.v
    k(f's_or_b32 {c.t0}, s2, {c.w}')
    lab = k.begin_skip('s_cbranch_scc1', 'nogo')
    a, o = v.get(), v.get()
    k(f'v_lshlrev_b32 {a}, 2, v0')
    k(f'v_mov_b32 {o}, 1')
    k(f'global_store_dword {a}, {o}, {c.pdbg}{SC} ; untracked')
    v.put(a, o)
    k.end_skip(lab)


def sync_pre(k, c):
    s, v = k.s, k.v
    c.go, c.az, c.aat, c.apoll, c.one = (v.get() for _ in range(5))
    m = s.get(2)
    k(f'v_mov_b32 {c.az}, 0')
    k(f'global_load_dword {c.go}, {c.az}, {c.pdbg}{SC}')
    if c.hpos == 2:
        for x in c.Lh:
            k(x)
    v.put(*c.late_free)
    for nm in ('dummy', 'dummy2', 'dummy3', 'dummy4'):
        if hasattr(c, nm):
            v.put(getattr(c, nm))
    k(f's_and_b32 {c.t0}, {c.j if c.o.get("mix", 1) else "s2"}, {NL - 1}')
    k(f's_lshl_b32 {c.t0}, {c.t0}, 7')
    k(f's_add_u32 {c.t0}, {c.t0}, {COFF}')
    k(f'v_cmp_gt_u32 {m}, {c.nrep}, v0')
    k(f'v_lshl_add_u32 {c.aat}, v0, 11, {c.t0}')
    k(f's_and_b32 {c.t0}, {c.x}, {c.nrep - 1}')
    k(f's_lshl_b32 {c.t0}, {c.t0}, 11')
    k(f's_add_u32 {c.t0}, {c.t0}, {COFF}')
    k(f'v_cndmask_b32 {c.aat}, 2.0, {c.aat}, {m}')
    k(f'v_lshl_add_u32 {c.apoll}, {c.n}, 7, {c.t0}')
    k(f'v_mov_b32 {c.one}, 1')
    s.put(m)


def sync_arrive(k, c):
    s, v = k.s, k.v
    if c.stamps and 'sack' in c.stamps:
        k.waitfor(vm='stores')
        stamp(k, c, 'sack')
    k.waitfor(c.go, vm='stores')
    stamp(k, c, 'ack')
    k(f'v_readfirstlane_b32 {c.t0}, {c.go}')
    k(f's_mov_b32 {c.t1}, 0')
    k(f's_or_b32 {c.t0}, {c.t0}, {c.w}')
    lab = k.begin_skip('s_cbranch_scc1', 'gook')
    lp = k.loop_label('gospin')
    k(f'global_load_dword {c.go}, {c.az}, {c.pdbg}{SC}')
    k(f's_add_u32 {c.t1}, {c.t1}, 1')
    k('s_waitcnt vmcnt(0)')
    k(f'v_readfirstlane_b32 {c.t0}, {c.go}')
    k(f's_lshr_b32 {c.t2}, {c.t1}, 20')
    k(f's_or_b32 {c.t0}, {c.t0}, {c.t2}')
    k(f's_cbranch_scc0 {lp}')
    k.end_skip(lab)
    k('s_barrier')
    k(f'buffer_atomic_add {c.one}, {c.aat}, {c.srdws}, 0 offen{SC}')
    v.put(c.az, c.aat, c.one)


def sync_poll(k, c):
    k(f's_cmp_lg_u32 {c.w}, 0')
    lab = k.begin_skip('s_cbranch_scc1', 'nopoll0')
    k('s_mov_b64 exec, 0xffff')
    k(f'global_load_dword {c.go}, {c.apoll}, {c.pws}{SC} ; untracked')
    k('s_mov_b64 exec, -1')
    k.end_skip(lab)


def sync_wait(k, c):
    s, v = k.s, k.v
    d = c.go
    k(f's_cmp_lg_u32 {c.w}, 0')
    lab0 = k.begin_skip('s_cbranch_scc1', 'nopoll')
    k('s_mov_b64 exec, 0xffff')
    k(f's_mov_b32 {c.t1}, 0')
    k(f's_mov_b32 {c.t2}, {256 // NL}')
    lp = k.loop_label('poll')
    k('s_waitcnt vmcnt(0)')
    k(f'v_cmp_gt_u32 vcc, {c.t2}, {d}')
    k('s_nop 1')
    k('s_and_b64 exec, exec, vcc')
    lab = k.begin_skip('s_cbranch_scc0', 'done')
    k(f'global_load_dword {d}, {c.apoll}, {c.pws}{SC} ; untracked')
    k(f's_add_u32 {c.t1}, {c.t1}, 1')
    k(f's_cmp_lt_u32 {c.t1}, 0x100000')
    k(f's_cselect_b32 {c.t2}, {256 // NL}, 0')
    k(f's_branch {lp}')
    k.end_skip(lab)
    k('s_mov_b64 exec, -1')
    k.end_skip(lab0)
    k('s_barrier')
    v.put(c.apoll, d)


def kern(opts):
    k = Kern(NAME + '_kernel')
    c = Ctx()
    c.stamps = opts.get('stamps', None)
    c.stretch = opts.get('stretch', None)
    c.clk = 's_memtime' if opts.get('cyc') else 's_memrealtime'
    c.prefetch = opts.get('prefetch', 'first')
    c.touch = opts.get('touch', False)
    c.ring = opts.get('ring', 6)
    c.drop = opts.get('drop', [])
    c.prestart = opts.get('prestart', 8)
    c.o = opts
    c.hpos = opts.get('hpos', 3)
    c.nrep = opts.get('nrep', NREP)
    c.pollall = opts.get('pollall', False)
    c.qmode = opts.get('qmode', 'narrow')
    c.gsh = opts.get('gsh', 6)
    nq = opts.get('nq', (2, 0, 0))
    setup(k, c)
    k.hold()
    cb = k.capture(consts_b, k, c)
    k.interleave(cb, c.loads, opts.get('every', 6))
    k.release()
    k.v.put(*c.setup_free_v)
    k.s.put(*c.setup_free_s)
    stamp(k, c, 'cb')
    consts_a(k, c)
    if opts.get('tfirst'):
        extras(k, c)
    if c.hpos == 3:
        for x in c.Lh:
            k(x)
    if not opts.get('tfirst'):
        extras(k, c)
    if nq[0]:
        out_addrs(k, c)
        narrow_q(k, c, nq[0])
    stamp(k, c, 'ca')
    early = opts.get('early', 0)
    if early >= 1:
        p2_addrs(k, c)
    stamp(k, c, 'pre')
    p1_dft(k, c)
    stamp(k, c, 'dft1')
    p1_kv(k, c)
    stamp(k, c, 'kv')
    sync_pre(k, c)
    if early < 1:
        p2_addrs(k, c)
    narrow_q(k, c, nq[1])
    p2_consts(k, c)
    hs_first = opts.get('hsfirst', False)
    if hs_first:
        p2_hstage(k, c)
    stamp(k, c, 'shadow')
    sync_arrive(k, c)
    narrow_q(k, c, nq[2])
    stamp(k, c, 'arr')
    if not hs_first:
        p2_hstage(k, c)
    k('s_waitcnt lgkmcnt(0)')
    n0, n1 = opts.get('afr', (2, 4))
    p2_afrags(k, c, range(0, n0))
    sync_poll(k, c)
    p2_afrags(k, c, range(n0, n1))
    stamp(k, c, 'af')
    sync_wait(k, c)
    stamp(k, c, 'sync')
    p2_xloads(k, c)
    p2_afrags(k, c, range(n1, 4))
    stamp(k, c, 'xiss')
    p2_main(k, c)
    stamp(k, c, 'epi')
    stamp(k, c, 'end', 's_waitcnt vmcnt(0)')
    stamps_out(k, c)
    k.raw(f'{c.end}:')
    k('s_endpgm')
    return k


HEADER = open('cdna_kernels/%s.s.ref' % NAME).read().split('; Override launch')[0]


def build(opts):
    k = kern(opts)
    body = k.finalize()
    sys.stderr.write(f'{k.stats} vhi={k.v.hi_water} shi={k.s.hi_water}\n')
    out = [HEADER.rstrip('\n'), f'; @launch grid=(256,1,1) block=(256,1,1) lds={LDS_BYTES}',
           '.amdgcn_target "amdgcn-amd-amdhsa--gfx950"', '.text',
           *(['.p2align 12', f'.fill {(4096 - 768) // 4}, 4, 0xbf800000'] if opts.get('page', True) else []),
           f'.globl {k.name}', '.p2align 8', f'.type {k.name},@function', f'{k.name}:', body,
           '.section .rodata,"a"', '.p2align 6', f'.amdhsa_kernel {k.name}',
           '  .amdhsa_next_free_vgpr 512', '  .amdhsa_next_free_sgpr 102', '  .amdhsa_accum_offset 256',
           '  .amdhsa_group_segment_fixed_size 0', '  .amdhsa_kernarg_size 120', '  .amdhsa_user_sgpr_count 2',
           '  .amdhsa_user_sgpr_kernarg_segment_ptr 1', '  .amdhsa_system_sgpr_workgroup_id_x 1',
           '  .amdhsa_float_denorm_mode_32 3', '.end_amdhsa_kernel']
    return '\n'.join(out) + '\n'


if __name__ == '__main__':
    opts = {}
    for a in sys.argv[2:]:
        kk, vv = a.split('=', 1)
        opts[kk] = eval(vv)
    open(sys.argv[1], 'w').write(build(opts))
```

```python
import sys, struct
from asmgen import Kern, R, I

NAME = 'gated_mix__ssm_conv_h3__spectral_fnet__prompt'
UOFF, ZOFF, QOFF, GOFF, COFF, SOFF = 0, 2 << 20, 4 << 20, 6 << 20, (6 << 20) + 65536, 8 << 20
L_X = 0
L_H = 10240
HC = 4224
HS = 2 * HC
PS, WS = 1280, 5152
L_U = 10240
L_YB = L_U + 4 * WS
L_YA = L_YB + 16 * 1088
L_G = L_YA + 4 * 4096
L_H = L_G + 2048
LDS_BYTES = L_H + 4 * HS
NREP = 8
NL = 16
SC = ' sc1'


def fl(x):
    return '0x%08x' % struct.unpack('<I', struct.pack('<f', x))[0]


class Ctx:
    pass


def stamp(k, c, name, pre=None):
    if c.stamps and name in c.stamps:
        if pre:
            k(pre)
        i = c.stamps.index(name)
        k(f'{c.clk} {c.st[2 * i:2 * i + 2]}')
        k('s_waitcnt lgkmcnt(0)')


def stamps_out(k, c):
    if not c.stamps:
        return
    if c.stretch is not None:
        k(f's_memrealtime {c.st[22:24]}')
        k(f's_sub_u32 {c.t0}, {c.st[2]}, {c.st[0]}')
        k(f's_mul_i32 {c.t0}, {c.t0}, {c.stretch}')
        k(f's_min_u32 {c.t0}, {c.t0}, 100000')
        k('s_waitcnt lgkmcnt(0)')
        k(f's_mov_b32 {c.t1}, {c.st[22]}')
        lp = k.loop_label('stretch')
        k(f's_memrealtime {c.st[22:24]}')
        k('s_waitcnt lgkmcnt(0)')
        k(f's_sub_u32 {c.t2}, {c.st[22]}, {c.t1}')
        k(f's_cmp_lt_u32 {c.t2}, {c.t0}')
        k(f's_cbranch_scc1 {lp}')
        return
    t = k.v.get(2)
    a = k.v.get()
    k(f's_lshl_b32 {c.t0}, s2, 2')
    k(f's_add_u32 {c.t0}, {c.t0}, {c.w}')
    k(f's_lshl_b32 {c.t0}, {c.t0}, 7')
    k(f's_add_u32 {c.t0}, {c.t0}, {SOFF}')
    k(f'v_mov_b32 {a}, {c.t0}')
    for i in range(len(c.stamps)):
        k(f'v_mov_b32 {t[0]}, {c.st[2 * i]}')
        k(f'v_mov_b32 {t[1]}, {c.st[2 * i + 1]}')
        k(f'global_store_dwordx2 {a}, {t}, {c.pws} offset:{8 * i}')
    k.v.put(t, a)


def sincos(k, base, step, mults, cs, sn, negsin=False):
    for i, m in enumerate(mults):
        if m:
            k(f'v_fmamk_f32 {sn[i]}, {step}, {fl(m)}, {base}')
    for i, m in enumerate(mults):
        src = base if m == 0 else sn[i]
        k(f'v_cos_f32 {cs[i]}, {src}')
        k(f'v_sin_f32 {sn[i]}, {"-" if negsin else ""}{src}')


def cmul_tw(k, a, b, cc, ss, t):
    for h in (0, 2):
        k(f'v_pk_mul_f32 {t[h:h + 2]}, {b[h:h + 2]}, {ss[h:h + 2]}')
        k(f'v_pk_mul_f32 {b[h:h + 2]}, {b[h:h + 2]}, {cc[h:h + 2]}')
    for h in (0, 2):
        k(f'v_pk_fma_f32 {b[h:h + 2]}, {a[h:h + 2]}, {ss[h:h + 2]}, {b[h:h + 2]} neg_lo:[1,0,0] neg_hi:[1,0,0]')
        k(f'v_pk_fma_f32 {a[h:h + 2]}, {a[h:h + 2]}, {cc[h:h + 2]}, {t[h:h + 2]}')


class Stream:
    def __init__(self, mfmas):
        self.m = list(mfmas)
        n = len(self.m)
        self.vec = [[] for _ in range(n)]
        self.sca = [[] for _ in range(n)]
        self.lgw = [None] * n
        self.tail = []

    def place(self, g, instrs, per_gap=2):
        last = g
        used = 0
        for ins in instrs:
            while g < len(self.m):
                mem = ins.startswith(('ds_', 'global_', 'buffer_'))
                ok = len(self.vec[g]) < 2 and used < per_gap
                if ok and mem and used and not self.vec[g][-1].startswith(('ds_', 'global_', 'buffer_')):
                    ok = False
                if ok and mem and any(x.startswith('ds_') for x in self.vec[g]) and ins.startswith('ds_'):
                    ok = False
                if ok:
                    break
                g += 1
                used = 0
            if g >= len(self.m):
                self.tail.append(ins)
                last = len(self.m)
                continue
            self.vec[g].append(ins)
            used += 1
            last = g
        return last

    def scalar(self, g, ins):
        self.sca[g].append(ins)

    def barrier_after(self, g, mark):
        self.lgw[g] = mark
        self.sca[g + 1].append('s_barrier')
        return g + 1

    def emit(self, k):
        isa = lambda x: x.split('@')[0]
        for i, m in enumerate(self.m):
            k(m)
            mem = [x for x in self.vec[i] if x.startswith(('ds_', 'global_', 'buffer_'))]
            alu = [x for x in self.vec[i] if x not in mem]
            look = [isa(x) for x in self.vec[i]]
            if i + 1 < len(self.m):
                look.append(self.m[i + 1])
                if self.sca[i + 1]:
                    look += [isa(x) for x in self.vec[i + 1]]
                    if i + 2 < len(self.m):
                        look.append(self.m[i + 2])
            k.waitfor(*look, lg=self.lgw[i])
            for x in self.sca[i]:
                k(x)
            for x in mem + alu:
                k(isa(x))
                if '@' in x:
                    k.mark(x.split('@')[1])
        for x in self.tail:
            k(isa(x))
            if '@' in x:
                k.mark(x.split('@')[1])


def setup(k, c):
    s, v = k.s, k.v
    c.end = k.label('end')
    k('s_cmp_ge_u32 s2, 256')
    k(f's_cbranch_scc1 {c.end}')
    a0 = s.get(8, 4); a1 = s.get(4, 4); a2 = s.get(8, 4)
    k(f's_load_dwordx8 {a0}, s[0:1], 0')
    k(f's_load_dwordx8 {a2}, s[0:1], 88')
    k(f's_load_dwordx4 {a1}, s[0:1], 32')
    c.pq, c.pk, c.pv, c.psk = a0[0:2], a0[2:4], a0[4:6], a0[6:8]
    c.ph, c.pD = a1[0:2], a1[2:4]
    c.pgw, c.pout, c.pdbg, c.pws = a2[0:2], a2[2:4], a2[4:6], a2[6:8]
    if c.stamps:
        c.st = s.get(24, 4)
        if 'start' in c.stamps:
            i = c.stamps.index('start')
            k(f'{c.clk} {c.st[2 * i:2 * i + 2]}')
    if c.prefetch == 'first':
        pc = s.get(2)
        c.dummy2, a = v.get(), v.get()
        k(f's_getpc_b64 {pc}')
        here = k.label('pc')
        k.raw(f'{here}:')
        k(f's_lshl_b32 s3, s2, 9')
        k(f's_and_b32 s3, s3, 0x3000')
        k(f'v_lshl_add_u32 {a}, v0, 4, s3')
        k(f'v_min_u32 {a}, {c.end}-{here}, {a}')
        k(f'global_load_dword {c.dummy2}, {a}, {pc}')
        s.put(pc)
        v.put(a)
    c.x, c.j, c.w, c.t0, c.t1, c.t2, c.s0, c.iA, c.E, c.tau, c.lead = (s.get() for _ in range(11))
    c.l, c.l16, c.n, c.g = (v.get() for _ in range(4))
    t0, t1 = c.t0, c.t1
    k(f'v_lshrrev_b32 {c.l}, 6, v0')
    k(f's_and_b32 {c.x}, s2, 7')
    k(f'v_readfirstlane_b32 {c.w}, {c.l}')
    k(f's_lshr_b32 {c.j}, s2, 3')
    k(f'v_and_b32 {c.l}, 63, v0')
    k(f'v_lshlrev_b32 {c.l16}, 4, {c.l}')
    k(f's_lshl_b32 {c.E}, {c.x}, 4')
    k(f's_and_b32 {t1}, {c.j}, 15')
    k(f's_add_u32 {t0}, {c.E}, {t1}')
    k(f's_sub_u32 {t1}, 256, {t0}')
    k(f's_cmp_eq_u32 {t0}, 0')
    k(f's_cselect_b32 {t1}, 128, {t1}')
    k(f's_cmp_lt_u32 {c.j}, 16')
    k(f's_cselect_b32 {c.s0}, {t0}, {t1}')
    k(f's_and_b32 {t0}, {c.w}, 2')
    k(f's_add_u32 {c.iA}, {c.w}, {t0}')
    k(f's_lshl_b32 {t0}, {c.iA}, 8')
    k(f's_add_u32 {t0}, {t0}, {c.s0}')
    k(f's_lshl_b32 {t0}, {t0}, 10')
    aq = v.get(4, 1)
    k(f'v_add_u32 {aq[0]}, {t0}, {c.l16}')
    k(f's_sub_u32 {t1}, {2048 * 1024 + 1008}, {t0}')
    k(f's_and_b32 {t1}, {t1}, {2048 * 1024 - 1}')
    k(f'v_sub_u32 {aq[1]}, {t1}, {c.l16}')
    k(f'v_add_u32 {aq[2]}, {512 * 1024}, {aq[0]}')
    k(f's_sub_u32 {t1}, {1536 * 1024 + 1008}, {t0}')
    k(f'v_sub_u32 {aq[3]}, {t1}, {c.l16}')
    k(f'v_and_b32 {c.n}, 15, v0')
    k(f'v_lshrrev_b32 {c.g}, 4, {c.l}')
    P, cb, akv, akh, ask, ah, aD, acl, zero = (v.get() for _ in range(9))
    ap = v.get(2, 1)
    k(f'v_and_b32 {P}, 31, v0')
    k(f'v_lshrrev_b32 {cb}, 5, {c.l}')
    k(f's_lshl_b32 {t0}, {c.j}, 3')
    k(f's_add_u32 {t0}, {t0}, {c.w}')
    k(f's_lshl_b32 {t0}, {t0}, 6')
    k(f's_add_u32 {t0}, {t0}, {c.x}')
    k(f's_add_u32 {t0}, {t0}, 32')
    k(f's_lshl_b32 {t0}, {t0}, 7')
    k(f'v_lshl_add_u32 {akv}, {cb}, 15, {t0}')
    k(f'v_lshl_add_u32 {akv}, {P}, 2, {akv}')
    k(f'v_subrev_u32 {akh}, 7168, {akv}')
    if c.qmode != 'narrow':
        k(f'v_and_b32 {ap[0]}, 1, {c.g}')
        k(f'v_lshl_add_u32 {ap[0]}, {ap[0]}, 2, {cb}')
        k(f's_lshl_b32 {t0}, {c.s0}, 3')
        k(f's_add_u32 {t0}, {t0}, {c.w}')
        k(f's_lshl_b32 {t0}, {t0}, 7')
        k(f'v_lshl_add_u32 {ap[0]}, {ap[0]}, 18, {t0}')
        k(f'v_lshl_add_u32 {ap[0]}, {c.n}, 3, {ap[0]}')
        k(f'v_add_u32 {ap[1]}, {512 * 1024}, {ap[0]}')
    srdk = s.get(4, 4)
    c.srdws = s.get(4, 4)
    k(f's_mov_b32 {srdk[2]}, {2 << 20}')
    k(f's_mov_b32 {srdk[3]}, 0x00020000')
    k(f's_mov_b32 {c.srdws[2]}, {1 << 28}')
    k(f's_mov_b32 {c.srdws[3]}, 0x00020000')
    c.qd = [v.get(4), v.get(4)]
    c.qm = [v.get(4), v.get(4)]
    k('s_waitcnt lgkmcnt(0)')
    stamp(k, c, 'karg')
    if c.prefetch == 'scalar':
        pc = s.get(2)
        c.sdummy = s.get()
        k(f's_getpc_b64 {pc}')
        here = k.label('pc')
        k.raw(f'{here}:')
        k(f's_lshl_b32 {t0}, {c.j}, 2')
        k(f's_add_u32 {t0}, {t0}, {c.w}')
        k(f's_lshl_b32 {t0}, {t0}, 7')
        k(f's_min_u32 {t0}, {t0}, {c.end}-{here}')
        k(f's_load_dword {c.sdummy}, {pc}, {t0}')
        s.put(pc)
    k(f'global_load_dwordx4 {c.qd[0]}, {aq[0]}, {c.pq}')
    k(f's_mov_b32 {srdk[0]}, {c.pk[0]}')
    k(f'global_load_dwordx4 {c.qm[0]}, {aq[1]}, {c.pq}')
    k(f's_and_b32 {srdk[1]}, {c.pk[1]}, 0xffff')
    k(f'global_load_dwordx4 {c.qd[1]}, {aq[2]}, {c.pq}')
    k(f's_mov_b32 {c.srdws[0]}, {c.pws[0]}')
    k(f'global_load_dwordx4 {c.qm[1]}, {aq[3]}, {c.pq}')
    k(f's_and_b32 {c.srdws[1]}, {c.pws[1]}, 0xffff')
    k(f's_lshr_b32 {t0}, {c.j}, 1')
    k(f's_add_u32 {c.E}, {c.E}, {t0}')
    k(f's_and_b32 {c.tau}, {c.j}, 1')
    k(f's_lshl_b32 {t1}, {c.x}, 9')
    k(f'v_lshl_add_u32 {ask}, {P}, 4, {t1}')
    k(f's_lshl_b32 {t0}, {c.E}, 2')
    k(f's_add_u32 {t0}, {t0}, {c.w}')
    k(f's_lshl_b32 {t1}, {t0}, 12')
    k(f'v_add_u32 {ah}, {t1}, {c.l16}')
    k(f's_lshl_b32 {t0}, {t0}, 1')
    k(f'v_mov_b32 {aD}, {t0}')
    k('s_cmp_lg_u32 s2, 0')
    lab = k.begin_skip('s_cbranch_scc1', 'noclear')
    z4 = v.get(4)
    k(f'v_lshlrev_b32 {acl}, 4, v0')
    k(f'v_pk_mov_b32 {z4[0:2]}, 0, 0')
    k(f'v_pk_mov_b32 {z4[2:4]}, 0, 0')
    k(f'v_add_u32 {acl}, {COFF + 4096}, {acl}')
    for i in range(c.nrep * NL * 128 // 4096):
        if i == 2:
            k(f'v_add_u32 {acl}, 8192, {acl}')
        k(f'global_store_dwordx4 {acl}, {z4}, {c.pws} offset:{-4096 + 4096 * (i & 1)}{SC} ; untracked')
    k('s_nop 1')
    v.put(z4)
    k.end_skip(lab)
    c.K, c.V = v.get(11, 1), v.get(8, 1)
    c.gw, c.skw = v.get(4), v.get(4)
    c.qp = [v.get(4), v.get(4)] if c.qmode != 'narrow' else []
    c.H = [v.get(4) for _ in range(4)]
    c.Dv = v.get()
    L = []
    c.Lq = [f'global_load_dwordx2 {c.qp[eh][2 * r:2 * r + 2]}, {ap[r]}, {c.pq} offset:{512 * eh}' for eh in range(len(c.qp)) for r in range(2)]
    if c.qmode == 'early':
        L += c.Lq
    L += [f'global_load_dwordx4 {c.gw}, {c.l16}, {c.pgw}']
    L += [f'buffer_load_dword {c.K[t]}, {akh}, {srdk}, 0 offen offset:{1024 * t}' for t in range(3)]
    L += [f'global_load_dword {c.K[3 + t]}, {akv}, {c.pk} offset:{1024 * (t - 4)}' for t in range(8)]
    L += [f'global_load_dwordx4 {c.skw}, {ask}, {c.psk}']
    L += [f'global_load_dword {c.V[t]}, {akv}, {c.pv} offset:{1024 * (t - 4)}' for t in range(8)]
    c.Lh = [f'global_load_dwordx4 {c.H[n]}, {ah}, {c.ph} offset:{1024 * n}' for n in range(4)]
    c.Lh += [f'global_load_ushort {c.Dv}, {aD}, {c.pD}']
    if c.hpos == 0:
        L += c.Lh
    c.late_free = [ah, aD, ap]
    c.loads = [('i', I(x)) for x in L]
    c.P, c.cb = P, cb
    c.setup_free_v = [aq, akv, akh, ask, acl, zero]
    c.setup_free_s = [srdk]


def extras(k, c):
    v, s = k.v, k.s
    c.dummy = v.get()
    a = v.get()
    if c.touch:
        if 'w' in c.touch:
            k(f'v_and_b32 {a}, 7, v0')
            k(f'v_lshlrev_b32 {a}, 20, {a}')
            k(f'v_add_u32 {a}, 0x80000, {a}')
            k(f'global_load_dword {c.dummy}, {a}, {c.pws}')
        if 'd' in c.touch:
            c.dummy4 = v.get()
            k(f'v_mov_b32 {a}, 128')
            k(f'global_load_dword {c.dummy4}, {a}, {c.pdbg}')
        if 'o' in c.touch:
            c.dummy3 = v.get()
            k(f's_lshl_b32 {c.t0}, {c.x}, 7')
            k(f'v_mov_b32 {a}, {c.t0}')
            k(f'global_load_dword {c.dummy3}, {a}, {c.pout}')
    if c.prefetch is True:
        pc = s.get(2)
        k(f's_getpc_b64 {pc}')
        here = k.label('pc')
        k.raw(f'{here}:')
        k(f's_and_b32 {c.t0}, {c.j}, 1')
        k(f's_lshl_b32 {c.t0}, {c.t0}, 2')
        k(f's_add_u32 {c.t0}, {c.t0}, {c.w}')
        k(f's_lshl_b32 {c.t0}, {c.t0}, 11')
        k(f'v_lshl_add_u32 {a}, {c.l}, 5, {c.t0}')
        k(f'v_min_u32 {a}, {c.end}-{here}, {a}')
        c.dummy2 = v.get()
        k(f'global_load_dword {c.dummy2}, {a}, {pc}')
        s.put(pc)
    v.put(a)


MULT = [0, 1, 2, 3, 16, 17, 18, 19]


def consts_b(k, c):
    s, v = k.s, k.v
    base, step, t = v.get(), v.get(), v.get()
    cs, sn = v.get(8), v.get(8)
    c.sg = s.get()
    k(f's_mov_b32 {c.sg}, 0x80008000')
    k(f'v_mul_u32_u24 {base}, {c.g}, {c.n}')
    k(f'v_cvt_f32_u32 {step}, {c.n}')
    k(f'v_cvt_f32_u32 {base}, {base}')
    k(f'v_mul_f32 {step}, {fl(1 / 32)}, {step}')
    k(f'v_mul_f32 {base}, {fl(1 / 8)}, {base}')
    sincos(k, base, step, MULT, cs, sn)
    c.CBc = [v.get(4), v.get(4)]
    c.CBs = [v.get(4), v.get(4)]
    c.CBn = [v.get(4), v.get(4)]
    c.a2, c.gea = v.get(), v.get()
    k(f's_lshl_b32 {c.t1}, {c.w}, 2')
    k(f'v_lshrrev_b32 {c.a2}, 2, {c.n}')
    k(f'v_add_u32 {t}, {c.t1}, {c.a2}')
    k(f'v_mul_u32_u24 {c.gea}, {c.g}, {t}')
    for m in range(4):
        k(f'v_cvt_pk_bf16_f32 {c.CBc[0][m]}, {cs[2 * m]}, {cs[2 * m + 1]}')
        k(f'v_cvt_pk_bf16_f32 {c.CBs[0][m]}, {sn[2 * m]}, {sn[2 * m + 1]}')
    for m in range(4):
        k(f'v_xor_b32 {c.CBn[0][m]}, {c.sg}, {c.CBs[0][m]}')
        k(f'v_xor_b32 {c.CBc[1][m]}, 0x80000000, {c.CBc[0][m]}')
        k(f'v_xor_b32 {c.CBs[1][m]}, 0x80000000, {c.CBs[0][m]}')
        k(f'v_xor_b32 {c.CBn[1][m]}, 0x00008000, {c.CBs[0][m]}')
    k(f'v_cvt_f32_u32 {base}, {c.gea}')
    k(f'v_cvt_f32_u32 {step}, {t}')
    k(f'v_mul_f32 {base}, {fl(1 / 128)}, {base}')
    k(f'v_mul_f32 {step}, {fl(1 / 512)}, {step}')
    sincos(k, base, step, MULT, cs, sn)
    c.tw1c, c.tw1s = cs, sn
    c.aXw, c.aXr, c.aZ, c.aQ, c.aU, c.aGs = v.get(), v.get(), v.get(2, 1), v.get(2, 1), v.get(), v.get()
    t0, t1 = c.t0, c.t1
    k(f's_mul_i32 {t0}, {c.iA}, 1280')
    k(f's_and_b32 {t1}, {c.iA}, 1')
    k(f's_lshl_b32 {t1}, {t1}, 5')
    k(f's_add_u32 {t0}, {t0}, {t1}')
    k(f'v_add_u32 {c.aXw}, {t0}, {c.l16}')
    k(f'v_bfe_u32 {t}, v0, 2, 1')
    k(f'v_mul_u32_u24 {c.aXr}, {1280 + 32}, {t}')
    k(f'v_bfe_u32 {t}, v0, 3, 1')
    k(f'v_mul_u32_u24 {t}, {2560 + 128}, {t}')
    k(f'v_lshl_add_u32 {c.aXr}, {c.g}, 6, {c.aXr}')
    k(f'v_and_b32 {base}, 3, v0')
    k(f'v_lshl_add_u32 {t}, {base}, 3, {t}')
    k(f'v_add_u32 {c.aXr}, {c.aXr}, {t}')
    k(f's_lshl_b32 {t0}, {c.w}, 8')
    k(f's_add_u32 {t0}, {t0}, {c.s0}')
    k(f's_lshl_b32 {t0}, {t0}, 6')
    k(f's_add_u32 {t0}, {t0}, {ZOFF}')
    k(f'v_lshl_add_u32 {t}, {c.g}, 4, {t0}')
    k(f'v_lshl_add_u32 {c.aZ[0]}, {c.n}, 16, {t}')
    k(f'v_add_u32 {c.aZ[1]}, {1 << 20}, {c.aZ[0]}')
    k(f's_and_b32 {t0}, {c.s0}, 1')
    k(f's_lshl_b32 {t0}, {t0}, 7')
    k(f's_lshr_b32 {t1}, {c.s0}, 1')
    k(f's_add_u32 {t0}, {t0}, {t1}')
    k(f's_lshl_b32 {c.t2}, {t0}, {c.gsh}')
    if c.qmode != 'narrow':
        k(f's_lshl_b32 {t1}, {c.w}, 12')
        k(f's_add_u32 {t0}, {t0}, {t1}')
        k(f's_lshl_b32 {t0}, {t0}, 6')
        k(f's_add_u32 {t0}, {t0}, {QOFF}')
        k(f'v_lshl_add_u32 {t}, {c.g}, 4, {t0}')
        k(f'v_lshl_add_u32 {c.aQ[0]}, {c.n}, 14, {t}')
        k(f'v_add_u32 {c.aQ[1]}, {1 << 20}, {c.aQ[0]}')
    m63 = s.get(2)
    k(f's_add_u32 {t0}, {c.t2}, {GOFF}')
    k(f'v_and_b32 {t}, {0xc7 if c.gsh == 5 else 0xc6}, v0')
    k(f'v_cmp_eq_u32 {m63}, 0, {t}')
    k(f'v_lshrrev_b32 {c.aGs}, 1, v0')
    if c.gsh == 6:
        k(f'v_and_b32 {t}, 1, v0')
        k(f'v_lshl_add_u32 {c.aGs}, {t}, 5, {c.aGs}')
    k(f'v_add_u32 {c.aGs}, {t0}, {c.aGs}')
    c.aGw, c.aGr = v.get(), v.get()
    k(f's_and_b32 {t0}, {c.w}, 1')
    k(f's_lshl_b32 {t0}, {t0}, 1')
    k(f's_lshr_b32 {t1}, {c.w}, 1')
    k(f's_add_u32 {t0}, {t0}, {t1}')
    k(f's_lshl_b32 {t0}, {t0}, 9')
    k(f's_add_u32 {t0}, {t0}, {L_G}')
    k(f'v_lshl_add_u32 {c.aGw}, {c.l}, 2, {t0}')
    k(f'v_lshlrev_b32 {c.aGr}, 5, {c.l}')
    k(f's_lshl_b32 {t0}, {c.x}, 9')
    k(f's_add_u32 {t0}, {t0}, {c.j}')
    k(f'v_cndmask_b32 {c.aGs}, 2.0, {c.aGs}, {m63}')
    k(f's_lshl_b32 {t0}, {t0}, 2')
    k(f's_add_u32 {t0}, {t0}, {c.w}')
    k(f's_lshl_b32 {t0}, {t0}, 7')
    k(f'v_lshl_add_u32 {c.aU}, {c.cb}, 5, {t0}')
    k(f'v_lshrrev_b32 {t}, 1, {c.P}')
    k(f'v_lshl_add_u32 {c.aU}, {t}, 14, {c.aU}')
    k(f'v_and_b32 {t}, 1, {c.P}')
    k(f'v_lshl_add_u32 {c.aU}, {t}, 4, {c.aU}')
    s.put(m63)
    v.put(base, step, t, c.P, c.cb)


def consts_a(k, c):
    s, v = k.s, k.v
    ip, base, step = (v.get() for _ in range(3))
    cs, sn = v.get(8), v.get(8)
    c.sel = s.get(4, 2)
    k(f's_mov_b32 {c.sel[0]}, 0x00003f80')
    k(f's_mov_b32 {c.sel[2]}, 0x00003f80')
    k(f's_lshr_b32 {c.t0}, {c.s0}, 6')
    k(f's_and_b32 {c.t0}, {c.t0}, 2')
    k(f's_mov_b32 {c.t2}, 0')
    k(f's_and_b32 {c.t1}, {c.s0}, 127')
    lab = k.begin_skip('s_cbranch_scc1', 'nospecial')
    k(f's_lshl_b32 {c.t0}, {c.iA}, 8')
    k(f's_add_u32 {c.t0}, {c.t0}, {c.s0}')
    k(f'v_cvt_f32_u32 {base}, {c.t0}')
    k(f'v_mul_f32 {base}, {fl(1 / 4096)}, {base}')
    k(f'v_sub_f32 {step}, {fl(1 / 8)}, {base}')
    k(f'v_cos_f32 {base}, {base}')
    k(f'v_cos_f32 {step}, {step}')
    k(f's_mov_b32 {c.t0}, 1')
    k(f'v_cvt_pk_bf16_f32 {base}, {step}, {base}')
    k(f's_movk_i32 {c.t2}, 3584')
    k(f'v_readfirstlane_b32 {c.sel[2]}, {base}')
    k(f's_and_b32 {c.sel[0]}, {c.sel[2]}, 0xffff')
    k(f's_lshr_b32 {c.sel[2]}, {c.sel[2]}, 16')
    k.end_skip(lab)
    k(f's_lshl_b32 {c.sel[1]}, {c.sel[0]}, 16')
    k(f's_lshl_b32 {c.sel[3]}, {c.sel[2]}, 16')
    k(f'v_and_b32 {ip}, 3, v0')
    k(f'v_lshl_add_u32 {ip}, {ip}, 2, {c.t0}')
    k(f'v_lshl_add_u32 {base}, {c.gea}, 8, {c.t2}')
    k(f'v_mad_u32_u24 {base}, {ip}, {c.s0}, {base}')
    k(f'v_cvt_f32_u32 {step}, {ip}')
    k(f'v_cvt_f32_u32 {base}, {base}')
    k(f'v_mul_f32 {step}, {fl(1 / 16)}, {step}')
    k(f'v_mul_f32 {base}, {fl(1 / 4096)}, {base}')
    sincos(k, base, step, range(8), cs, sn, negsin=True)
    c.CAr = [v.get(4) for _ in range(4)]
    c.CAi = [v.get(4) for _ in range(4)]
    mo, m2, m12 = ip, base, step
    odd = s.get(2)
    k(f'v_and_b32 {mo}, 1, {c.a2}')
    k(f'v_lshrrev_b32 {m2}, 1, {c.a2}')
    k(f'v_cmp_eq_u32 {odd}, 1, {mo}')
    k(f'v_mul_lo_u32 {mo}, {mo}, {c.sg}')
    k(f'v_mul_lo_u32 {m2}, {m2}, {c.sg}')
    k(f'v_xor_b32 {m12}, {mo}, {m2}')
    for m in range(4):
        k(f'v_cvt_pk_bf16_f32 {c.CAr[0][m]}, {cs[2 * m]}, {cs[2 * m + 1]}')
        k(f'v_cvt_pk_bf16_f32 {c.CAi[0][m]}, {sn[2 * m]}, {sn[2 * m + 1]}')
    for m in range(4):
        k(f'v_cndmask_b32 {c.CAr[3][m]}, {c.CAr[0][m]}, {c.CAi[0][m]}, {odd}')
        k(f'v_cndmask_b32 {c.CAi[3][m]}, {c.CAi[0][m]}, {c.CAr[0][m]}, {odd}')
        k(f'v_xor_b32 {c.CAr[2][m]}, {c.CAr[0][m]}, {mo}')
        k(f'v_xor_b32 {c.CAi[2][m]}, {c.CAi[0][m]}, {mo}')
    for m in range(4):
        k(f'v_xor_b32 {c.CAr[1][m]}, {c.CAr[3][m]}, {m2}')
        k(f'v_xor_b32 {c.CAi[1][m]}, {c.CAi[3][m]}, {m12}')
        k(f'v_xor_b32 {c.CAr[3][m]}, {c.CAr[3][m]}, {m12}')
        k(f'v_xor_b32 {c.CAi[3][m]}, {c.CAi[3][m]}, {m2}')
    s.put(odd, c.sg)
    v.put(ip, base, step, cs, sn, c.a2, c.gea)


def p1_dft(k, c):
    s, v = k.s, k.v
    f = v.get(8)
    o = v.get(4)
    X = v.get()
    if c.stamps and 'qarr' in c.stamps:
        k.waitfor(*c.qd, *c.qm)
        stamp(k, c, 'qarr')
    for r in range(2):
        A, M = c.qd[r], c.qm[r]
        lo, hi = c.sel[2 * r], c.sel[2 * r + 1]
        k(f'v_mov_b32_dpp {X}, {M[0]} wave_ror:1 row_mask:0xf bank_mask:0xf')
        for m in range(4):
            k(f'v_dot2_f32_bf16 {f[2 * m]}, {A[m]}, {lo}, 0')
            k(f'v_dot2_f32_bf16 {f[2 * m + 1]}, {A[m]}, {hi}, 0')
        src = [(X, 0), (M[3], 1), (M[3], 0), (M[2], 1), (M[2], 0), (M[1], 1), (M[1], 0), (M[0], 1)]
        for e in range(8):
            k(f'v_dot2c_f32_bf16 {f[e]}, {hi if src[e][1] else lo}, {src[e][0]}')
        dst = o if r == 0 else c.qm[0]
        for m in range(4):
            k(f'v_cvt_pk_bf16_f32 {dst[m]}, {f[2 * m]}, {f[2 * m + 1]}')
        k(f'ds_write_b128 {c.aXw}, {dst} offset:{L_X + r * (2560 + 128)}')
    z = f[0:2]
    for m in range(4):
        for r in range(2):
            k(f'v_dot2_f32_bf16 {z[r]}, {c.qd[r][m]}, {c.gw[m]}, {z[r] if m else 0}')
    k(f'ds_write2st64_b32 {c.aGw}, {z[0]}, {z[1]} offset0:0 offset1:1')
    k('s_waitcnt lgkmcnt(0)')
    stamp(k, c, 'xt')
    k('s_barrier')
    v.put(o, X, c.qm[0], c.qm[1], c.aXw, c.qd[0], c.qd[1], c.gw, c.aGw)
    s.put(c.sel)
    F = [[v.get(4) for _ in range(4)] for _ in range(2)]
    for T in range(2):
        for ks in range(4):
            for h in range(2):
                k(f'ds_read_b64_tr_b16 {F[T][ks][2 * h:2 * h + 2]}, {c.aXr} offset:{L_X + 5120 * h + 256 * ks + 32 * T}')
    sync_go(k, c)
    if c.qmode == 'late':
        for x in c.Lq:
            k(x)
    if c.qmode == 'early':
        for eh in range(2):
            k(f'global_store_dwordx4 {c.aQ[eh]}, {c.qp[eh]}, {c.pws}{SC}')
    if c.hpos == 4:
        for x in c.Lh:
            k(x)
    Dr = [v.get(4), v.get(4)]
    Di = [v.get(4), v.get(4)]
    mf = []
    for T in range(2):
        for ks in range(4):
            mf.append(f'v_mfma_f32_16x16x32_bf16 {Dr[T]}, {F[T][ks]}, {c.CAr[ks]}, {Dr[T] if ks else 0}')
            mf.append(f'v_mfma_f32_16x16x32_bf16 {Di[T]}, {F[T][ks]}, {c.CAi[ks]}, {Di[T] if ks else 0}')
    st = Stream(mf)
    for h in range(2):
        k(f'ds_read_b128 {f[4 * h:4 * h + 4]}, {c.aGr} offset:{L_G + 16 * h}')
    c.Kf = [v.get(2) for _ in range(11)]
    c.Wt = [v.get(2) for _ in range(4)]
    unp = lambda d, x: [f'v_lshlrev_b32 {d[0]}, 16, {x}', f'v_and_b32 {d[1]}, 0xffff0000, {x}']
    c.unpK = [i for t_ in range(11) for i in unp(c.Kf[t_], c.K[t_])]
    for ch in range(2):
        for jj in range(4):
            src = c.skw[2 * ch + (jj >> 1)]
            c.unpK.append(f'v_and_b32 {c.Wt[jj][ch]}, 0xffff0000, {src}' if jj & 1 else f'v_lshlrev_b32 {c.Wt[jj][ch]}, 16, {src}')
    c.unp = unp
    z = f[0]
    g = st.place(3, [f'v_add_f32 {f[i]}, {f[i]}, {f[i + 4]}' for i in range(4)] +
                 [f'v_add_f32 {f[i]}, {f[i]}, {f[i + 2]}' for i in range(2)])
    chain = [f'v_add_f32 {z}, {z}, {f[1]}']
    chain += [f'v_add_f32_dpp {z}, {z}, {z} {ctl} row_mask:0xf bank_mask:0xf' for ctl in
              ('quad_perm:[1,0,3,2]', 'quad_perm:[2,3,0,1]', 'row_half_mirror')]
    chain += [f'v_mul_f32 {z}, {fl(-1.4426950408889634)}, {z}', f'v_exp_f32 {z}, {z}', f'v_add_f32 {z}, 1.0, {z}',
              f'v_rcp_f32 {z}, {z}']
    g = st.place(g + 1, chain, per_gap=1)
    for gg in range(len(mf)):
        if any(x.startswith(('v_exp', 'v_rcp')) for x in st.vec[gg]):
            st.vec[gg].append('')
    if 'g' not in c.o.get('skip', ''):
        g = st.place(g + 1, [f'buffer_store_dword {z}, {c.aGs}, {c.srdws}, 0 offen{SC}'])
    ks0 = c.o.get('ks0', 6)
    if ks0 < 16:
        st.place(ks0, c.unpK)
        c.unpK, st.tail = st.tail, []
    st.vec = [[x for x in g_ if x] for g_ in st.vec]
    stamp(k, c, 'trd')
    st.emit(k)
    stamp(k, c, 'stA')
    Re, Im, t = v.get(4), v.get(4), v.get(4)
    for T in range(2):
        cmul_tw(k, Dr[T], Di[T], c.tw1c[4 * T:4 * T + 4], c.tw1s[4 * T:4 * T + 4], t)
        for h in range(2):
            k(f'v_cvt_pk_bf16_f32 {Im[2 * T + h]}, {Di[T][2 * h]}, {Di[T][2 * h + 1]}')
        for h in range(2):
            k(f'v_cvt_pk_bf16_f32 {Re[2 * T + h]}, {Dr[T][2 * h]}, {Dr[T][2 * h + 1]}')
    stamp(k, c, 'tw1')
    Hr, Hi = F[0][0:2], F[0][2:4]
    mf = []
    for Tb in range(2):
        mf.append(f'v_mfma_f32_16x16x32_bf16 {Hr[Tb]}, {Im}, {c.CBs[Tb]}, 0')
        mf.append(f'v_mfma_f32_16x16x32_bf16 {Hi[Tb]}, {Im}, {c.CBc[Tb]}, 0')
        mf.append(f'v_mfma_f32_16x16x32_bf16 {Hr[Tb]}, {Re}, {c.CBc[Tb]}, {Hr[Tb]}')
        mf.append(f'v_mfma_f32_16x16x32_bf16 {Hi[Tb]}, {Re}, {c.CBn[Tb]}, {Hi[Tb]}')
    st = Stream(mf)
    if c.hpos == 1:
        st.place(0, c.Lh, per_gap=1)
    if ks0 < 24:
        st.place(0, c.unpK)
        c.unpK, st.tail = st.tail, []
    st.emit(k)
    for Tb in range(2):
        o = F[1][Tb]
        if Tb == 1:
            for x in c.unpK[:4]:
                k(x)
            c.unpK = c.unpK[4:]
        for i in range(4):
            k(f'v_cvt_pk_bf16_f32 {o[i]}, {Hr[Tb][i]}, {Hi[Tb][i]}')
        if 'z' not in c.o.get('skip', ''):
            k(f'global_store_dwordx4 {c.aZ[Tb]}, {o}, {c.pws}{SC}')
    v.put(*F[0], *F[1], *Dr, *Di, Re, Im, t, c.aXr, c.aZ, c.tw1c, c.tw1s, f, c.aGs, c.aGr)
    v.put(*c.CAr, *c.CAi, *c.CBc, *c.CBs, *c.CBn)


def p1_kv(k, c):
    s, v = k.s, k.v
    Kf, Wt = c.Kf, c.Wt
    Vf = [v.get(2) for _ in range(8)]
    c.unpV = [i for t_ in range(8) for i in c.unp(Vf[7 - t_], c.V[7 - t_])]
    for x in c.unpK:
        k(x)
    S = [v.get(2) for _ in range(8)]
    for jj in range(4):
        for t in range(8):
            if jj == 0:
                k(f'v_pk_mul_f32 {S[t]}, {Kf[3 + t]}, {Wt[0]}')
            else:
                k(f'v_pk_fma_f32 {S[t]}, {Kf[3 + t - jj]}, {Wt[jj]}, {S[t]}')
    stamp(k, c, 'ks')
    if c.stamps and 'varr' in c.stamps:
        k.waitfor(c.V)
        stamp(k, c, 'varr')
    k.waitfor(c.V, *c.qp)
    stamp(k, c, 'qparr')
    if c.qmode == 'late':
        for eh in range(2):
            k(f'global_store_dwordx4 {c.aQ[eh]}, {c.qp[eh]}, {c.pws}{SC}')
    stamp(k, c, 'qst')
    for x in c.unpV:
        k(x)
    for t in range(8):
        k(f'v_pk_mul_f32 {S[7 - t]}, {S[7 - t]}, {Vf[7 - t]}')
    o = [v.get(4), v.get(4)]
    for p in range(2):
        for m in range(4):
            k(f'v_cvt_pk_bf16_f32 {o[p][m]}, {S[7 - 2 * m][p]}, {S[6 - 2 * m][p]}')
        if 'u' not in c.o.get('skip', ''):
            k(f'global_store_dwordx4 {c.aU}, {o[p]}, {c.pws} offset:{UOFF + 64 * p}{"" if "p" in c.o.get("skip", "") else SC}')
    k.mark('stores')
    v.put(*Wt, *Kf, *Vf, *S, *o, c.K, c.V, c.skw, c.aU, c.aQ, *c.qp)


def p2_consts(k, c):
    s, v = k.s, k.v
    t0, t1 = c.t0, c.t1
    k1, base, step, t = (v.get() for _ in range(4))
    m = s.get(2)
    k(f'v_lshrrev_b32 {t}, 2, {c.n}')
    k(f'v_and_b32 {k1}, 3, v0')
    k(f'v_lshl_add_u32 {k1}, {k1}, 2, {t}')
    c.sgn = v.get()
    c.psel = s.get()
    k(f's_cmp_eq_u32 {c.tau}, 0')
    k(f's_mov_b32 {t0}, 0x03020c0c')
    k(f's_cselect_b32 {c.psel}, 0x01000c0c, {t0}')
    k(f'v_lshlrev_b32 {t}, 31, {t}')
    k(f'v_xor_b32 {c.sgn}, 1.0, {t}')
    cs, sn = v.get(4), v.get(4)
    k(f's_lshl_b32 {t0}, {c.tau}, 3')
    k(f'v_lshl_add_u32 {t}, {c.g}, 1, {t0}')
    k(f'v_mul_u32_u24 {base}, {t}, {k1}')
    k(f'v_cvt_f32_u32 {step}, {k1}')
    k(f'v_cvt_f32_u32 {base}, {base}')
    k(f'v_mul_f32 {step}, {fl(1 / 16)}, {step}')
    k(f'v_mul_f32 {base}, {fl(1 / 16)}, {base}')
    sincos(k, base, step, [0, 1], cs, sn)
    c.Fa = v.get(4)
    c.Far, c.Fai = c.Fa[0:2], c.Fa[2:4]
    k(f'v_mul_u32_u24 {base}, {c.g}, {k1}')
    for jj in range(2):
        k(f'v_cvt_pk_bf16_f32 {c.Far[jj]}, {cs[jj]}, {sn[jj]}')
        k(f'v_cvt_pk_bf16_f32 {c.Fai[jj]}, -{sn[jj]}, {cs[jj]}')
    k(f'v_cvt_f32_u32 {base}, {base}')
    k(f'v_mul_f32 {base}, {fl(1 / 4)}, {base}')
    sincos(k, base, step, [0, 1, 2, 3], cs, sn)
    c.Fb = v.get(4)
    k(f'v_mul_f32 {base}, {fl(1 / 16)}, {base}')
    k(f'v_mul_f32 {step}, {fl(1 / 16)}, {step}')
    for h in range(2):
        k(f'v_cvt_pk_bf16_f32 {c.Fb[h]}, {cs[2 * h]}, {cs[2 * h + 1]}')
        k(f'v_cvt_pk_bf16_f32 {c.Fb[2 + h]}, {sn[2 * h]}, {sn[2 * h + 1]}')
    sincos(k, base, step, [0, 1, 2, 3], cs, sn)
    c.tw2c, c.tw2s = cs, sn
    c.Ci = [v.get(4) for _ in range(4)]
    c.SP = v.get(8)
    for jj in range(4):
        k(f'v_pk_mov_b32 {c.Ci[jj][0:2]}, 0, 0')
        k(f'v_pk_mov_b32 {c.Ci[jj][2:4]}, 0, 0')
        k(f'v_pk_mov_b32 {c.SP[2 * jj:2 * jj + 2]}, 0, 0')
    k(f's_mul_i32 {t0}, {c.w}, {WS}')
    k(f'v_mul_u32_u24 {t}, {PS}, {c.g}')
    k(f'v_lshl_add_u32 {t}, {c.n}, 4, {t}')
    c.aB = v.get()
    k(f'v_add_u32 {c.aB}, {t0}, {t}')
    k(f'ds_write_b128 {c.aB}, {c.Ci[0]} offset:{L_U}')
    c.aHw, c.aHr = v.get(), v.get()
    k(f's_mul_i32 {t0}, {c.w}, {HS}')
    k(f's_add_u32 {t0}, {t0}, {L_H}')
    k(f'v_lshl_add_u32 {t}, {c.n}, 2, {t0}')
    k(f'v_add_u32 {c.aHw}, {t0}, {c.l16}')
    k(f'ds_write_b32 {t}, {c.Ci[0][0]}')
    k(f'ds_write_b32 {t}, {c.Ci[0][0]} offset:{HC}')
    k(f's_add_u32 {t1}, {c.tau}, 1')
    k(f'v_lshl_add_u32 {t}, {c.g}, 2, {c.n}')
    k(f'v_add_u32 {t}, {t1}, {t}')
    k(f'v_and_b32 {base}, 1, {t}')
    k(f'v_mul_u32_u24 {base}, {HC - 4}, {base}')
    k(f'v_lshl_add_u32 {t}, {t}, 2, {t0}')
    k(f'v_add_u32 {c.aHr}, {base}, {t}')
    v.put(k1, base, step, t)
    s.put(m)


def out_addrs(k, c):
    if hasattr(c, 'xl'):
        return
    s, v = k.s, k.v
    t0 = c.t0
    c.xl, c.aO1, t = v.get(), v.get(), v.get()
    c.qn = v.get(8)
    c.qdone = 0
    k(f's_lshl_b32 {t0}, {c.w}, 2')
    k(f'v_and_b32 {t}, 60, v0')
    k(f'v_lshl_add_u32 {c.xl}, {t}, 2, {t0}')
    k(f'v_and_or_b32 {c.xl}, v0, 3, {c.xl}')
    k(f's_lshl_b32 {t0}, {c.tau}, 7')
    k(f's_add_u32 {t0}, {t0}, {c.E}')
    k(f's_lshl_b32 {t0}, {t0}, 3')
    k(f'v_lshl_add_u32 {c.aO1}, {c.xl}, 11, {t0}')
    v.put(t)
    c.srdq = s.get(4, 4)
    c.po = s.get(3, 1)
    k(f's_mov_b32 {c.srdq[0]}, {c.pq[0]}')
    k(f's_and_b32 {c.srdq[1]}, {c.pq[1]}, 0xffff')
    k(f's_mov_b32 {c.srdq[2]}, {2 << 20}')
    k(f's_mov_b32 {c.srdq[3]}, 0x00020000')
    for cc in range(1, 4):
        k(f's_mov_b32 {c.po[cc - 1]}, {cc << 19}')
    c.qld = lambda cc: f'buffer_load_dwordx2 {c.qn[2 * cc:2 * cc + 2]}, {c.aO1}, {c.srdq}, {c.po[cc - 1] if cc else 0} offen'


def p2_addrs(k, c):
    s, v = k.s, k.v
    t0, t1 = c.t0, c.t1
    out_addrs(k, c)
    t, u, xl = v.get(), v.get(), c.xl
    c.srdo = s.get(4, 4)
    k(f's_mov_b32 {c.srdo[0]}, {c.pout[0]}')
    k(f's_and_b32 {c.srdo[1]}, {c.pout[1]}, 0xffff')
    k(f's_mov_b32 {c.srdo[2]}, {2 << 20}')
    k(f's_mov_b32 {c.srdo[3]}, 0x00020000')
    m = s.get(2)
    c.aUg, c.aUw = v.get(2, 1), v.get()
    c.e14 = s.get()
    k(f's_lshl_b32 {c.e14}, {c.E}, 14')
    k(f's_add_u32 {t0}, {c.e14}, {UOFF + 4096}')
    k(f'v_lshl_add_u32 {c.aUg[0]}, v0, 4, {t0}')
    k(f'v_add_u32 {c.aUg[1]}, 8192, {c.aUg[0]}')
    k(f'v_and_b32 {t}, 1, v0')
    k(f'v_bfe_u32 {u}, v0, 2, 1')
    k(f'v_lshl_add_u32 {t}, {t}, 1, {u}')
    k(f'v_mul_u32_u24 {c.aUw}, {WS}, {t}')
    k(f'v_bfe_u32 {t}, v0, 3, 2')
    k(f'v_xor_b32 {t}, 3, {t}')
    k(f'v_mul_u32_u24 {t}, {PS}, {t}')
    k(f'v_and_b32 {u}, 0xe0, v0')
    k(f'v_add3_u32 {c.aUw}, {c.aUw}, {t}, {u}')
    k(f'v_and_b32 {t}, 2, v0')
    k(f'v_lshl_add_u32 {c.aUw}, {t}, 3, {c.aUw}')
    c.aZ0, c.aZ1, c.aG, c.aQg = (v.get() for _ in range(4))
    c.aSP = v.get(2, 1)
    k(f's_lshl_b32 {t1}, {c.w}, 4')
    k(f's_add_u32 {t0}, {c.e14}, {t1}')
    k(f's_add_u32 {t0}, {t0}, {ZOFF}')
    k(f'v_mov_b32 {c.aSP[0]}, {t0}')
    k(f'v_add_u32 {c.aSP[1]}, 8192, {c.aSP[0]}')
    k(f's_lshl_b32 {t1}, {c.tau}, 13')
    k(f's_add_u32 {t0}, {t0}, {t1}')
    k(f'v_cmp_eq_u32 {m}, 0, {c.l}')
    k(f'v_lshl_add_u32 {c.aZ1}, {c.n}, 6, {t0}')
    k(f'v_lshl_add_u32 {c.aZ1}, {c.g}, 11, {c.aZ1}')
    k(f'v_cndmask_b32 {c.aZ0}, {c.aZ1}, 2.0, {m}')
    k(f'v_and_b32 {t}, 3, v0')
    c.aYBw, c.aYBr, c.aYAw, c.aYAr = (v.get() for _ in range(4))
    k(f'v_mul_u32_u24 {c.aYBr}, 1088, {t}')
    k(f'v_and_b32 {u}, 12, v0')
    k(f'v_lshl_add_u32 {c.aYBr}, {u}, 2, {c.aYBr}')
    k(f's_lshl_b32 {t0}, {c.w}, 6')
    k(f'v_lshl_add_u32 {u}, {c.g}, 8, {t0}')
    k(f'v_add_u32 {c.aYBr}, {c.aYBr}, {u}')
    k(f'v_and_b32 {t}, 127, {xl}')
    k(f'v_lshrrev_b32 {u}, 7, {xl}')
    k(f's_lshl_b32 {t0}, {c.tau}, {7 + c.gsh}')
    k(f's_add_u32 {t0}, {t0}, {GOFF}')
    k(f'v_lshl_add_u32 {c.aG}, {t}, {c.gsh}, {t0}')
    k(f'v_lshl_add_u32 {c.aG}, {u}, 4, {c.aG}')
    if c.qmode != 'narrow':
        k(f'v_lshl_add_u32 {t}, {t}, 1, {u}')
        k(f's_add_u32 {t0}, {c.e14}, {t1}')
        k(f's_add_u32 {t0}, {t0}, {QOFF}')
        k(f'v_lshl_add_u32 {c.aQg}, {t}, 5, {t0}')
    k(f's_mul_i32 {t0}, {c.w}, {4 * 1088}')
    k(f'v_add_u32 {c.aYBw}, {t0}, {c.l16}')
    k(f'v_lshlrev_b32 {c.aYAw}, 4, v0')
    k(f'v_lshlrev_b32 {c.aYAr}, 2, v0')
    k(f'v_add_u32 {c.aYAr}, {L_YA}, {c.aYAr}')
    v.put(t, u, xl)
    s.put(m, c.e14)


def q_prefetch(k, c):
    v = k.v
    a = v.get()
    c.qpf = v.get()
    k(f's_lshl_b32 {c.t0}, {c.j}, 2')
    k(f's_add_u32 {c.t0}, {c.t0}, {c.w}')
    k(f's_lshl_b32 {c.t0}, {c.t0}, 7')
    k(f's_add_u32 {c.t0}, {c.t0}, {c.x}')
    k(f's_lshl_b32 {c.t0}, {c.t0}, 7')
    k(f'v_lshl_add_u32 {a}, {c.n}, 10, {c.t0}')
    k('s_mov_b64 exec, 0xffff')
    k(f'global_load_dword {c.qpf}, {a}, {c.pq}')
    k('s_mov_b64 exec, -1')
    v.put(a)


def narrow_q(k, c, n):
    if c.qmode != 'narrow':
        return
    for cc in range(c.qdone, c.qdone + n):
        k(c.qld(cc))
    c.qdone += n


def p2_hstage(k, c):
    s, v = k.s, k.v
    H = c.H
    P = v.get(4, 1)
    U = [v.get(4) for _ in range(4)]
    sh = s.get()
    k(f's_lshl_b32 {sh}, {c.tau}, 4')
    k(f's_xor_b32 {sh}, {sh}, 16')
    k.waitfor(*H, c.Dv)
    k(f'v_mov_b32_dpp {P[0]}, {H[0][3]} wave_shr:1 row_mask:0xf bank_mask:0xf bound_ctrl:0')
    for n in range(1, 4):
        k(f'v_mov_b32_dpp {P[n]}, {H[n - 1][3]} wave_ror:1 row_mask:0xf bank_mask:0xf')
    for n in range(1, 4):
        k(f'v_mov_b32_dpp {P[n]}, {H[n][3]} wave_shr:1 row_mask:0xf bank_mask:0xf')
    for n in range(4):
        for m in (1, 2, 3):
            k(f'v_alignbit_b32 {U[n][m]}, {H[n][m]}, {H[n][m - 1]}, {sh}')
        k(f'v_alignbit_b32 {U[n][0]}, {H[n][0]}, {P[n]}, {sh}')
        k(f'ds_write_b128 {c.aHw}, {U[n]} offset:{64 + 1024 * n}')
    k(f'v_lshlrev_b32 {c.Dv}, {sh}, {c.Dv}')
    k(f's_cmp_eq_u32 {c.tau}, 1')
    lab = k.begin_skip('s_cbranch_scc1', 'noshift')
    for n in range(3):
        k(f'v_mov_b32_dpp {H[n][3]}, {U[n + 1][0]} wave_rol:1 row_mask:0xf bank_mask:0xf')
    for n in range(4):
        k(f'v_pk_mov_b32 {H[n][0:2]}, {U[n][0:2]}, {U[n][2:4]} op_sel:[1,0]')
        k(f'v_mov_b32 {H[n][2]}, {U[n][3]}')
    for n in range(4):
        k(f'v_mov_b32_dpp {H[n][3]}, {U[n][0]} wave_shl:1 row_mask:0xf bank_mask:0xf')
    k.end_skip(lab)
    k(f'ds_write_b32 {c.aHw}, {U[0][0]} offset:{HC + 60}')
    for n in range(4):
        k(f'ds_write_b128 {c.aHw}, {H[n]} offset:{HC + 64 + 1024 * n}')
    c.AD = v.get(4)
    t = P[0]
    ms = [s.get(2) for _ in range(4)]
    k(f'v_lshl_add_u32 {t}, {c.g}, 2, {c.n}')
    for m in range(4):
        k(f'v_cmp_eq_u32 {ms[m]}, {15 - m}, {t}')
    for m in range(4):
        k(f'v_cndmask_b32 {c.AD[m]}, 0, {c.Dv}, {ms[m]}')
    s.put(*ms, sh)
    v.put(P, *H, *U, c.Dv, c.aHw)


def p2_afrags(k, c, ps):
    for p in ps:
        for r in range(16):
            a = R('a', 4 * (16 * p + r), 4)
            for h in range(2):
                k(f'ds_read_b64 {a[2 * h:2 * h + 2]}, {c.aHr} offset:{64 * (16 * p + r) + 8 * h}')
        if p == 3:
            k.v.put(c.aHr)


def p2_xloads(k, c):
    s, v = k.s, k.v
    c.Ul = [v.get(4) for _ in range(4)]
    c.Zl = v.get(8)
    c.G = v.get(4)
    ul = lambda n: f'global_load_dwordx4 {c.Ul[n]}, {c.aUg[n >> 1]}, {c.pws} offset:{-4096 + 4096 * (n & 1)}{SC}'
    k(ul(0))
    k(ul(1))
    k(f'buffer_load_dwordx4 {c.Zl[0:4]}, {c.aZ0}, {c.srdws}, 0 offen{SC}')
    k(f'buffer_load_dwordx4 {c.Zl[4:8]}, {c.aZ1}, {c.srdws}, 0 offen offset:1024{SC}')
    k('s_mov_b64 exec, 0xffff')
    k(f'global_load_dwordx4 {c.SP[0:4]}, {c.aSP[0]}, {c.pws}{SC}')
    k(f'global_load_dwordx4 {c.SP[4:8]}, {c.aSP[1]}, {c.pws}{SC}')
    k('s_mov_b64 exec, -1')
    late = [ul(2), ul(3), f'global_load_dwordx4 {c.G}, {c.aG}, {c.pws}{SC}']
    if c.qmode != 'narrow':
        late += [f'global_load_dwordx4 {c.qn[4 * h:4 * h + 4]}, {c.aQg}, {c.pws} offset:{16 * h}{SC}' for h in range(2)]
    n = c.o.get('xl', 2)
    for x in late[:n]:
        k(x)
    c.late = late[n:]
    v.put(c.aUg[0], c.aZ0, c.aZ1, c.aSP, c.l, c.l16, c.n, c.g)
    if c.o.get('page', True):
        lab = k.label('page')
        k(f's_branch {lab}')
        k.raw('.p2align 12')
        k.raw(f'{lab}:')


def p2_main(k, c):
    s, v = k.s, k.v
    o = c.o
    Zl, SP, Ul, G, qn, Ci = c.Zl, c.SP, c.Ul, c.G, c.qn, c.Ci
    uw = lambda n: f'ds_write_b128 {c.aUw}, {Ul[n]} offset:{L_U + 256 + 256 * n}'
    rd = lambda dst, q, r: f'ds_read_b128 {dst}, {c.aB} offset:{L_U + 16 + 256 * q + 16 * (15 - r)}'
    k(uw(0))
    k(uw(1))
    for x in c.late:
        k(x)
    v.put(c.aUg[1], c.aG, c.aQg)
    k('s_waitcnt lgkmcnt(0)')
    k('s_barrier')
    stamp(k, c, 'ubar')
    v.put(Ul[0], Ul[1])
    B0 = [v.get(4) for _ in range(16)]
    B1 = [v.get(4) for _ in range(16)]
    Di = [v.get(4) for _ in range(4)]
    acc = [v.get(4) for _ in range(2)]
    ya, ob, t = v.get(4), v.get(2), v.get(2)
    gq = c.Fa
    Bf = [Zl[0:4], Zl[4:8]]
    ring2 = [SP[0:4], SP[4:8], Ul[2], Ul[3]]
    ring3 = ring2 + Di[:o.get('r3', 2)]
    Y = Ci
    NPRE = o.get('npre', 6)
    for r in range(NPRE):
        k(rd(B0[r], 0, r))
    A = lambda p, r: R('a', 4 * (16 * p + r), 4)
    fr = [Zl[0:2], Zl[4:6], Zl[2:4], Zl[6:8]]
    mf = []
    seen = set()
    def add(cc, a, b, tag=None):
        d = acc[cc & 1]
        mf.append((cc, tag, f'v_mfma_f32_16x16x32_bf16 {d}, {a}, {b}, {d if cc in seen else 0}'))
        seen.add(cc)
    streams = []
    def addstream(cc, p, q, r, reg):
        streams.append((q, r, reg))
        add(cc, A(p, r), reg, ('s', len(streams) - 1))
        if r == 0 and p == 0:
            add(cc, c.AD, reg, ('s', len(streams) - 1))
    add(0, c.AD, B0[0])
    for r in range(16):
        add(0, A(0, r), B0[r])
    for r in range(16):
        add(1, A(1, r), B0[r])
    add(1, c.AD, B1[0])
    for r in range(16):
        add(1, A(0, r), B1[r])
    for r in range(16):
        add(2, A(2, r), B0[r])
        add(2, A(1, r), B1[r])
        addstream(2, 0, 2, r, ring2[r % 4])
    n3 = len(ring3)
    order3 = ring3[4:] + ring3[:4]
    for r in range(16):
        add(3, A(3, r), B0[r])
        addstream(3, 1, 2, r, order3[(2 * r) % n3])
        add(3, A(2, r), B1[r])
        addstream(3, 0, 3, r, order3[(2 * r + 1) % n3])
    sa = o.get('sa', 20)
    sta = []
    for jj in range(4):
        sta.append((-1, ('a', jj), f'v_mfma_f32_16x16x16_bf16 {Di[jj]}, {fr[jj]}, {c.Fai}, 0'))
        sta.append((-1, ('a', jj), f'v_mfma_f32_16x16x16_bf16 {Ci[jj]}, {fr[jj]}, {c.Far}, {Ci[jj]}'))
    mf[sa:sa] = sta
    sb = o.get('sb', [x + sa - 20 for x in (38, 49, 61, 74)])
    for jj in range(4):
        mf.insert(sb[jj], (-1, ('b', jj), f'v_mfma_f32_16x16x32_bf16 {Y[jj]}, {c.Fb}, {Bf[jj & 1]}, 0'))
    st = Stream([m[2] for m in mf])
    pos = lambda tag: [i for i, m in enumerate(mf) if m[1] == tag]
    last = {cc: max(i for i, m in enumerate(mf) if m[0] == cc) for cc in range(4)}
    g = st.place(0, [rd(B0[r], 0, r) for r in range(NPRE, 16)])
    g = st.place(g + 1, [rd(B1[r], 1, r) for r in range(16)])
    yaw = lambda cc: f'ds_write_b128 {c.aYAw}, {acc[cc & 1]} offset:{L_YA + 4096 * cc}@ya{cc}'
    g = st.place(max(g + 1, last[0] + 4), [yaw(0)])
    g = st.place(g + 3, [uw(2)])
    g = st.place(g + 3, [uw(3) + '@uw'])
    gu = st.barrier_after(g + 4, 'uw')
    prev_use = {}
    for si, (q, r, reg) in enumerate(streams):
        p_ = pos(('s', si))
        lo = prev_use.get(str(reg), None)
        if lo is None:
            lo = max(gu, p_[0] - 12)
            if any(str(reg) == str(d) for d in Di):
                lo = max(lo, pos(('b', 3))[0])
        gg = st.place(lo, [rd(reg, q, r)])
        assert gg < p_[0] - 3, (si, gg, p_)
        prev_use[str(reg)] = p_[-1]
    g1 = st.place(last[1] + 4, [yaw(1)])
    if c.qmode == 'narrow':
        for n_, cc in enumerate(range(c.qdone, 4)):
            st.place(o.get('qg', [14, 44, 72, 90])[n_], [c.qld(cc)])
    pre_a = [f'v_perm_b32 {SP[i]}, {SP[i]}, {SP[i]}, {c.psel}' for i in range(8)]
    pre_a += [f'v_fma_f32 {Ci[jj][0]}, {SP[4 + jj]}, {c.sgn}, {SP[jj]}' for jj in range(4)]
    g = st.place(o.get('zs', 4), [f'v_swap_b32 {Zl[1]}, {Zl[4]}', f'v_swap_b32 {Zl[3]}, {Zl[6]}'], per_gap=1)
    g = st.place(g + 1, pre_a)
    assert g < sa - 1, (g, sa)
    g = sa + 4
    gw_ = 0
    for jj in range(4):
        a, b = Ci[jj], Di[jj]
        tw = []
        for h in (0, 2):
            for i in (h, h + 1):
                tw.append(f'v_mul_f32 {t[i & 1]}, {b[i]}, {c.tw2s[i]}')
                tw.append(f'v_mul_f32 {b[i]}, {b[i]}, {c.tw2c[i]}')
            for i in (h, h + 1):
                tw.append(f'v_fma_f32 {b[i]}, -{a[i]}, {c.tw2s[i]}, {b[i]}')
                tw.append(f'v_fma_f32 {a[i]}, {a[i]}, {c.tw2c[i]}, {t[i & 1]}')
        cv = [f'v_cvt_pk_bf16_f32 {Bf[jj & 1][2 + h]}, {b[2 * h]}, {b[2 * h + 1]}' for h in range(2)]
        cv += [f'v_cvt_pk_bf16_f32 {Bf[jj & 1][h]}, {a[2 * h]}, {a[2 * h + 1]}' for h in range(2)]
        g = st.place(max(g, pos(('a', jj))[-1] + 3), tw)
        g = st.place(max(g, sa + 7), cv)
        pb = pos(('b', jj))[0]
        assert g < pb - 1, ('stage b too early', jj, g, pb)
        sys.stderr.write(f'tw{jj} done at gap {g}, stage b at {pb}\n')
        gw_ = st.place(pb + 3, [f'ds_write_b128 {c.aYBw}, {Y[jj]} offset:{L_YB + 1088 * jj}' + ('@yb' if jj == 3 else '')])
    assert gw_ > g1
    gb = st.barrier_after(gw_ + 4, 'yb')
    gy = st.place(gb, [f'ds_read_b128 {Y[w]}, {c.aYBr} offset:{L_YB + 4 * 1088 * w}' for w in range(4)])

    def epi(cc):
        e2 = [f'ds_read2st64_b32 {ya[0:2]}, {c.aYAr} offset0:{16 * cc} offset1:{16 * cc + 4}',
              f'ds_read2st64_b32 {ya[2:4]}, {c.aYAr} offset0:{16 * cc + 8} offset1:{16 * cc + 12}']
        e3 = [f'v_fma_f32 {ya[w]}, {gq[w]}, {ya[w]}, {Y[w][cc]}' for w in range(4)]
        e3 += [f'v_cvt_pk_bf16_f32 {ob[h]}, {ya[2 * h]}, {ya[2 * h + 1]}' for h in range(2)]
        e4 = [f'buffer_store_dwordx2 {ob}, {c.aO1}, {c.srdo}, {c.po[cc - 1] if cc else 0} offen']
        return e2, e3, e4

    def pre(cc):
        o1 = []
        for h in range(2):
            o1.append(f'v_lshlrev_b32 {gq[2 * h]}, 16, {qn[2 * cc + h]}')
            o1.append(f'v_and_b32 {gq[2 * h + 1]}, 0xffff0000, {qn[2 * cc + h]}')
        o1 += [f'v_mul_f32 {gq[w]}, {G[cc]}, {gq[w]}' for w in range(4)]
        o2 = [f'v_fma_f32 {Y[w][cc]}, -{G[cc]}, {Y[w][cc]}, {Y[w][cc]}' for w in range(4)]
        return o1, o2
    gp = g + 1
    gfree = gu
    for cc in range(4):
        o1, o2 = pre(cc)
        gp = st.place(gp, o1)
        if cc == 0:
            e2, e3, e4 = epi(0)
            g = st.place(gfree, e2)
            gp = st.place(max(g + 5, gp), [f'v_mul_f32 {ya[w]}, {gq[w]}, {ya[w]}' for w in range(4)] + [f'v_sub_f32 {G[0]}, 1.0, {G[0]}'])
            g = st.place(max(gp, gy + 3), [f'v_fmac_f32 {ya[w]}, {G[0]}, {Y[w][0]}' for w in range(4)] + e3[4:])
            gfree = g + 1
            g = st.place(g + 1, e4)
            sys.stderr.write(f'store {cc} at gap {g} of {len(mf)}\n')
            gp += 1
            continue
        gp = st.place(max(gp, gy + 4), o2)
        if cc < 3:
            e2, e3, e4 = epi(cc)
            if cc == 1:
                gfree = max(gfree, gb)
            if cc == 2:
                g2 = st.place(last[2] + 4, [yaw(2)])
                gfree = max(gfree, st.barrier_after(g2 + 4, 'ya2'))
            g = st.place(gfree, e2)
            g = st.place(max(g + 5, gp), e3)
            gfree = g + 1
            gp = g + 1
            g = st.place(g + 1, e4)
            sys.stderr.write(f'store {cc} at gap {g} of {len(mf)}\n')
    assert not st.tail
    for pat in c.drop:
        st.vec = [[x for x in g_ if not x.startswith(pat) or '@' in x] for g_ in st.vec]
        st.sca = [[x for x in g_ if not x.startswith(pat)] for g_ in st.sca]
    st.emit(k)
    stamp(k, c, 'conv')
    k(yaw(3).split('@')[0])
    k('s_waitcnt lgkmcnt(0)')
    k('s_barrier')
    e2, e3, e4 = epi(3)
    for ins in e2 + e3 + e4:
        k(ins)


def sync_go(k, c):
    s, v = k.s, k.v
    k(f's_or_b32 {c.t0}, s2, {c.w}')
    lab = k.begin_skip('s_cbranch_scc1', 'nogo')
    a, o = v.get(), v.get()
    k(f'v_lshlrev_b32 {a}, 2, v0')
    k(f'v_mov_b32 {o}, 1')
    k(f'global_store_dword {a}, {o}, {c.pdbg}{SC} ; untracked')
    v.put(a, o)
    k.end_skip(lab)


def sync_pre(k, c):
    s, v = k.s, k.v
    c.go, c.az, c.aat, c.apoll, c.one = (v.get() for _ in range(5))
    m = s.get(2)
    k(f'v_mov_b32 {c.az}, 0')
    k(f'global_load_dword {c.go}, {c.az}, {c.pdbg}{SC}')
    if c.hpos == 2:
        for x in c.Lh:
            k(x)
    v.put(*c.late_free)
    for nm in ('dummy', 'dummy2', 'dummy3', 'dummy4'):
        if hasattr(c, nm):
            v.put(getattr(c, nm))
    k(f's_and_b32 {c.t0}, {c.j if c.o.get("mix", 1) else "s2"}, {NL - 1}')
    k(f's_lshl_b32 {c.t0}, {c.t0}, 7')
    k(f's_add_u32 {c.t0}, {c.t0}, {COFF}')
    k(f'v_cmp_gt_u32 {m}, {c.nrep}, v0')
    k(f'v_lshl_add_u32 {c.aat}, v0, 11, {c.t0}')
    k(f's_and_b32 {c.t0}, {c.x}, {c.nrep - 1}')
    k(f's_lshl_b32 {c.t0}, {c.t0}, 11')
    k(f's_add_u32 {c.t0}, {c.t0}, {COFF}')
    k(f'v_cndmask_b32 {c.aat}, 2.0, {c.aat}, {m}')
    k(f'v_lshl_add_u32 {c.apoll}, {c.n}, 7, {c.t0}')
    k(f'v_mov_b32 {c.one}, 1')
    s.put(m)


def sync_arrive(k, c):
    s, v = k.s, k.v
    if c.stamps and 'sack' in c.stamps:
        k.waitfor(vm='stores')
        stamp(k, c, 'sack')
    k.waitfor(c.go, vm='stores')
    stamp(k, c, 'ack')
    k(f'v_readfirstlane_b32 {c.t0}, {c.go}')
    k(f's_mov_b32 {c.t1}, 0')
    k(f's_or_b32 {c.t0}, {c.t0}, {c.w}')
    lab = k.begin_skip('s_cbranch_scc1', 'gook')
    lp = k.loop_label('gospin')
    k(f'global_load_dword {c.go}, {c.az}, {c.pdbg}{SC}')
    k(f's_add_u32 {c.t1}, {c.t1}, 1')
    k('s_waitcnt vmcnt(0)')
    k(f'v_readfirstlane_b32 {c.t0}, {c.go}')
    k(f's_lshr_b32 {c.t2}, {c.t1}, 20')
    k(f's_or_b32 {c.t0}, {c.t0}, {c.t2}')
    k(f's_cbranch_scc0 {lp}')
    k.end_skip(lab)
    k('s_barrier')
    k(f'buffer_atomic_add {c.one}, {c.aat}, {c.srdws}, 0 offen{SC}')
    v.put(c.az, c.aat, c.one)


def sync_poll(k, c):
    k(f's_cmp_lg_u32 {c.w}, 0')
    lab = k.begin_skip('s_cbranch_scc1', 'nopoll0')
    k('s_mov_b64 exec, 0xffff')
    k(f'global_load_dword {c.go}, {c.apoll}, {c.pws}{SC} ; untracked')
    k('s_mov_b64 exec, -1')
    k.end_skip(lab)


def sync_wait(k, c):
    s, v = k.s, k.v
    d = c.go
    k(f's_cmp_lg_u32 {c.w}, 0')
    lab0 = k.begin_skip('s_cbranch_scc1', 'nopoll')
    k('s_mov_b64 exec, 0xffff')
    k(f's_mov_b32 {c.t1}, 0')
    k(f's_mov_b32 {c.t2}, {256 // NL}')
    lp = k.loop_label('poll')
    k('s_waitcnt vmcnt(0)')
    k(f'v_cmp_gt_u32 vcc, {c.t2}, {d}')
    k('s_nop 1')
    k('s_and_b64 exec, exec, vcc')
    lab = k.begin_skip('s_cbranch_scc0', 'done')
    k(f'global_load_dword {d}, {c.apoll}, {c.pws}{SC} ; untracked')
    k(f's_add_u32 {c.t1}, {c.t1}, 1')
    k(f's_cmp_lt_u32 {c.t1}, 0x100000')
    k(f's_cselect_b32 {c.t2}, {256 // NL}, 0')
    k(f's_branch {lp}')
    k.end_skip(lab)
    k('s_mov_b64 exec, -1')
    k.end_skip(lab0)
    k('s_barrier')
    v.put(c.apoll, d)


def kern(opts):
    k = Kern(NAME + '_kernel')
    c = Ctx()
    c.stamps = opts.get('stamps', None)
    c.stretch = opts.get('stretch', None)
    c.clk = 's_memtime' if opts.get('cyc') else 's_memrealtime'
    c.prefetch = opts.get('prefetch', 'first')
    c.touch = opts.get('touch', False)
    c.ring = opts.get('ring', 6)
    c.drop = opts.get('drop', [])
    c.prestart = opts.get('prestart', 8)
    c.o = opts
    c.hpos = opts.get('hpos', 3)
    c.nrep = opts.get('nrep', NREP)
    c.pollall = opts.get('pollall', False)
    c.qmode = opts.get('qmode', 'narrow')
    c.gsh = opts.get('gsh', 6)
    nq = opts.get('nq', (0, 0, 1))
    setup(k, c)
    k.hold()
    cb = k.capture(consts_b, k, c)
    k.interleave(cb, c.loads, opts.get('every', 6))
    k.release()
    k.v.put(*c.setup_free_v)
    k.s.put(*c.setup_free_s)
    stamp(k, c, 'cb')
    consts_a(k, c)
    if opts.get('tfirst'):
        extras(k, c)
    if c.hpos == 3:
        for x in c.Lh:
            k(x)
    if not opts.get('tfirst'):
        extras(k, c)
    if opts.get('qpf') == 0:
        q_prefetch(k, c)
    if nq[0]:
        out_addrs(k, c)
        narrow_q(k, c, nq[0])
    stamp(k, c, 'ca')
    early = opts.get('early', 0)
    if early >= 1:
        p2_addrs(k, c)
    stamp(k, c, 'pre')
    p1_dft(k, c)
    stamp(k, c, 'dft1')
    p1_kv(k, c)
    stamp(k, c, 'kv')
    sync_pre(k, c)
    if opts.get('qpf') == 1:
        q_prefetch(k, c)
    if early < 1:
        p2_addrs(k, c)
    narrow_q(k, c, nq[1])
    p2_consts(k, c)
    hs_first = opts.get('hsfirst', False)
    if hs_first:
        p2_hstage(k, c)
    stamp(k, c, 'shadow')
    sync_arrive(k, c)
    if opts.get('qpf') == 2:
        q_prefetch(k, c)
    narrow_q(k, c, nq[2])
    stamp(k, c, 'arr')
    if not hs_first:
        p2_hstage(k, c)
    k('s_waitcnt lgkmcnt(0)')
    n0, n1 = opts.get('afr', (3, 4))
    p2_afrags(k, c, range(0, n0))
    sync_poll(k, c)
    p2_afrags(k, c, range(n0, n1))
    narrow_q(k, c, nq[3] if len(nq) > 3 else 0)
    stamp(k, c, 'af')
    sync_wait(k, c)
    stamp(k, c, 'sync')
    p2_xloads(k, c)
    p2_afrags(k, c, range(n1, 4))
    stamp(k, c, 'xiss')
    p2_main(k, c)
    stamp(k, c, 'epi')
    stamp(k, c, 'end', 's_waitcnt vmcnt(0)')
    stamps_out(k, c)
    k.raw(f'{c.end}:')
    k('s_endpgm')
    return k


HEADER = open('cdna_kernels/%s.s.ref' % NAME).read().split('; Override launch')[0]


def build(opts):
    k = kern(opts)
    body = k.finalize()
    sys.stderr.write(f'{k.stats} vhi={k.v.hi_water} shi={k.s.hi_water}\n')
    out = [HEADER.rstrip('\n'), f'; @launch grid=(256,1,1) block=(256,1,1) lds={LDS_BYTES}',
           '.amdgcn_target "amdgcn-amd-amdhsa--gfx950"', '.text',
           *(['.p2align 12', f'.fill {(4096 - 768) // 4}, 4, 0xbf800000'] if opts.get('page', True) else []),
           f'.globl {k.name}', '.p2align 8', f'.type {k.name},@function', f'{k.name}:', body,
           '.section .rodata,"a"', '.p2align 6', f'.amdhsa_kernel {k.name}',
           '  .amdhsa_next_free_vgpr 512', '  .amdhsa_next_free_sgpr 102', '  .amdhsa_accum_offset 256',
           '  .amdhsa_group_segment_fixed_size 0', '  .amdhsa_kernarg_size 120', '  .amdhsa_user_sgpr_count 2',
           '  .amdhsa_user_sgpr_kernarg_segment_ptr 1', '  .amdhsa_system_sgpr_workgroup_id_x 1',
           '  .amdhsa_float_denorm_mode_32 3', '.end_amdhsa_kernel']
    return '\n'.join(out) + '\n'


if __name__ == '__main__':
    opts = {}
    for a in sys.argv[2:]:
        kk, vv = a.split('=', 1)
        opts[kk] = eval(vv)
    open(sys.argv[1], 'w').write(build(opts))
```

```python
import re

REG_RE = re.compile(r'(?<![\w.])(-?\|?)([vas])(?:(\d+)|\[(\d+):(\d+)\])(?![\w])')
TRANS = ('v_exp_f32', 'v_log_f32', 'v_rcp_f32', 'v_rsq_f32', 'v_sqrt_f32', 'v_sin_f32', 'v_cos_f32')


class R:
    def __init__(self, kind, base, n=1):
        self.kind, self.base, self.n = kind, base, n

    def __getitem__(self, i):
        if isinstance(i, slice):
            a = i.start or 0
            b = self.n if i.stop is None else i.stop
            assert 0 <= a < b <= self.n, (a, b, self.n)
            return R(self.kind, self.base + a, b - a)
        assert 0 <= i < self.n, (i, self.n)
        return R(self.kind, self.base + i, 1)

    def __str__(self):
        if self.n == 1:
            return f'{self.kind}{self.base}'
        return f'{self.kind}[{self.base}:{self.base + self.n - 1}]'
    __repr__ = __str__

    def __format__(self, spec):
        return str(self)


class Alloc:
    def __init__(self, kind, lo, hi):
        self.kind = kind
        self.free = set(range(lo, hi))
        self.hi_water = lo
        self.owner = {}

    def get(self, n=1, align=None, name=''):
        if align is None:
            align = 1 if n == 1 else (2 if self.kind != 's' else (2 if n == 2 else 4))
        b = 0
        mx = max(self.free) if self.free else -1
        while b + n - 1 <= mx:
            if all((b + i) in self.free for i in range(n)):
                for i in range(n):
                    self.free.discard(b + i)
                    self.owner[b + i] = name
                self.hi_water = max(self.hi_water, b + n)
                return R(self.kind, b, n)
            b += align
        raise RuntimeError(f'out of {self.kind} registers for {name} x{n}; free={len(self.free)}')

    def put(self, *rs):
        if getattr(self, 'held', None) is not None:
            self.held += list(rs)
            return
        for r in rs:
            for i in range(r.n):
                assert (r.base + i) not in self.free, f'double free {r}'
                self.free.add(r.base + i)


def regs_of(op):
    out = []
    for m in REG_RE.finditer(op):
        k = m.group(2)
        if m.group(3) is not None:
            out.append((k, int(m.group(3))))
        else:
            out += [(k, i) for i in range(int(m.group(4)), int(m.group(5)) + 1)]
    if re.search(r'\bvcc\b', op):
        out.append(('s', 'vcc'))
    if re.search(r'\bexec\b', op):
        out.append(('s', 'exec'))
    if re.search(r'\bm0\b', op):
        out.append(('s', 'm0'))
    return out


def split_ops(s):
    ops, cur, d = [], '', 0
    for ch in s:
        if ch in '[(':
            d += 1
        if ch in '])':
            d -= 1
        if ch == ',' and d == 0:
            ops.append(cur.strip())
            cur = ''
        else:
            cur += ch
    if cur.strip():
        ops.append(cur.strip())
    return ops


class I:
    def __init__(self, text):
        self.text = text
        t = text.split(';')[0].strip()
        parts = t.split(None, 1)
        self.mn = parts[0]
        rest = parts[1] if len(parts) > 1 else ''
        self.ops = split_ops(rest)
        mn = self.mn
        self.is_mfma = mn.startswith('v_mfma')
        self.is_valu = mn.startswith('v_') and not self.is_mfma
        self.is_salu = mn.startswith('s_')
        self.is_ds = mn.startswith('ds_')
        self.is_vm = mn.startswith(('global_', 'buffer_'))
        self.is_smem = mn.startswith(('s_load', 's_memtime', 's_memrealtime'))
        self.is_trans = mn.replace('_e32', '').replace('_e64', '') in TRANS
        self.is_dot = mn.startswith('v_dot')
        self.is_dpp = '_dpp' in mn
        self.lds_dma = self.is_vm and (' lds' in t or 'load_lds' in mn)
        rl = [regs_of(o) for o in self.ops]
        flat = lambda L: [r for x in L for r in x]
        nodef = (mn.startswith(('ds_write', 'global_store', 'buffer_store', 's_cmp', 's_bitcmp', 's_waitcnt',
                                's_barrier', 's_cbranch', 's_branch', 's_nop', 's_endpgm', 's_sleep', 's_setprio',
                                'buffer_inv', 'buffer_wbl2'))
                 or self.lds_dma or ('atomic' in mn and ' sc0' not in t))
        if nodef:
            self.defs, self.uses = [], flat(rl)
        elif mn.startswith(('v_swap', 'v_permlane')):
            self.defs, self.uses = flat(rl), flat(rl)
        elif mn.startswith(('v_add_co', 'v_addc_co', 'v_sub_co')):
            self.defs, self.uses = flat(rl[:2]), flat(rl[2:])
        else:
            self.defs = rl[0] if rl else []
            self.uses = flat(rl[1:])
            if mn.startswith(('v_fmac', 'v_dot2c', 'v_pk_fmac', 's_addk', 's_mulk', 'v_writelane')) or self.is_dpp \
                    or 'd16' in mn:
                self.uses = self.uses + self.defs
            if 'saveexec' in mn:
                self.defs = self.defs + [('s', 'exec')]
        if self.is_mfma:
            self.srcA, self.srcB, self.srcC = rl[1], rl[2], rl[3]
            self.passes = 8 if '32x32' in mn else 4
        self.wide_store = self.is_vm and 'store' in mn and ('x3' in mn or 'x4' in mn)
        if self.wide_store:
            self.sdata = rl[1] if mn.startswith('global') else rl[0]
        self.states = 1
        if mn == 's_nop':
            self.states = int(self.ops[0], 0) + 1


def need_states(p, c):
    n = 0
    pd, cu, cd = set(p.defs), set(c.uses), set(c.defs)
    vg = lambda S: {r for r in S if r[0] in 'va'}
    sg = lambda S: {r for r in S if r[0] == 's'}
    if p.is_valu:
        raw = vg(pd) & cu
        if raw:
            if c.is_mfma:
                n = max(n, 2)
            if c.is_dpp or c.mn.startswith('v_permlane'):
                n = max(n, 2)
            if c.mn.startswith(('v_readlane', 'v_readfirstlane')):
                n = max(n, 1)
            if p.is_trans and not c.is_trans:
                n = max(n, 1)
        if p.is_dot and (vg(pd) & (cu | cd)):
            same_c = False
            if c.mn == p.mn:
                ab = set(regs_of(c.ops[1]) + regs_of(c.ops[2]))
                same_c = not (ab & pd)
            if not same_c:
                n = max(n, 3)
        sraw = sg(pd) & cu
        if sraw:
            if c.is_vm:
                n = max(n, 5)
            elif c.mn.startswith(('v_readlane', 'v_writelane')):
                n = max(n, 4)
            elif c.is_valu or c.is_mfma:
                n = max(n, 2)
            else:
                n = max(n, 2)
    if p.is_mfma:
        big = p.passes == 8
        if c.is_mfma:
            if pd & (set(c.srcA) | set(c.srcB)):
                n = max(n, 12 if big else 8)
            if pd & set(c.srcC):
                if not (list(p.defs) == list(c.srcC) and p.mn == c.mn):
                    n = max(n, 10 if big else 6)
            elif pd & cd:
                n = max(n, 12 if big else 8)
        elif pd & (cu | cd):
            n = max(n, 12 if big else 8)
        if c.is_valu and (set(p.srcC) & cd):
            n = max(n, 7 if big else 3)
        if (c.is_ds or c.is_vm) and (set(p.srcC) & cd):
            n = max(n, 7 if big else 3)
    if p.wide_store and (set(p.sdata) & cd):
        n = max(n, 2)
    if p.is_salu and ('s', 'm0') in pd and c.lds_dma:
        n = max(n, 1)
    return n


class Kern:
    def __init__(self, name):
        self.name = name
        self.items = []
        self.v = Alloc('v', 1, 256)
        self.s = Alloc('s', 4, 100)
        self.nlab = 0

    def __call__(self, text):
        for ln in text.strip().split('\n'):
            ln = ln.strip()
            if ln:
                self.items.append(('i', I(ln)))

    def capture(self, fn, *a, **kw):
        sv, self.items = self.items, []
        fn(*a, **kw)
        got, self.items = self.items, sv
        return got

    def hold(self):
        self.v.held, self.s.held = [], []

    def release(self):
        hv, hs = self.v.held, self.s.held
        self.v.held = self.s.held = None
        self.v.put(*hv)
        self.s.put(*hs)

    def interleave(self, main, side, every):
        side = list(side)
        depth, cnt = 0, every
        for it in main:
            if it[0] == 'if':
                depth += 1
            if side and depth == 0 and cnt >= every and it[0] == 'i':
                self.items.append(side.pop(0))
                cnt = 0
            self.items.append(it)
            if it[0] == 'endif':
                depth -= 1
            if it[0] == 'i' and depth == 0:
                cnt += 1
        self.items += side

    def waitfor(self, *texts, lg=None, vm=None):
        regs = set()
        for t in texts:
            regs |= set(regs_of(str(t)))
        self.items.append(('waitfor', (regs, lg, vm)))

    def mark(self, name):
        self.items.append(('mark', name))

    def raw(self, text):
        self.items.append(('raw', text))

    def comment(self, text):
        self.items.append(('raw', '    ; ' + text))

    def label(self, base):
        self.nlab += 1
        return f'L_{self.name[:6]}_{base}_{self.nlab}'

    def begin_skip(self, branch, base):
        lab = self.label(base)
        self(f'{branch} {lab}')
        self.items.append(('if', lab))
        return lab

    def end_skip(self, lab):
        self.items.append(('endif', lab))

    def loop_label(self, base):
        lab = self.label(base)
        self.items.append(('loop', lab))
        return lab

    def finalize(self):
        out = []
        vmq, lgq = [], []
        hists = [[]]
        stack = []
        marks = {}
        stats = dict(n=0, nop=0, wait=0, mfma=0)

        def push(ins):
            out.append('    ' + ins.text)
            stats['n'] += 1
            for h in hists:
                h.append(ins)
                if len(h) > 24:
                    del h[0]

        def apply_wait(ins):
            nonlocal vmq, lgq
            m = re.search(r'vmcnt\((\d+)\)', ins.text)
            if m:
                n = int(m.group(1))
                vmq = vmq[len(vmq) - n:] if n < len(vmq) else vmq
                if n == 0:
                    vmq = []
            m = re.search(r'lgkmcnt\((\d+)\)', ins.text)
            if m:
                n = int(m.group(1))
                if n == 0:
                    lgq = []
                else:
                    assert not any(x[1] for x in lgq), 'counted lgkmcnt with SMEM outstanding'
                    lgq = lgq[len(lgq) - n:] if n < len(lgq) else lgq

        for kind, it in self.items:
            if kind == 'raw':
                out.append(it)
                continue
            if kind == 'if':
                stack.append((list(vmq), list(lgq), [list(h) for h in hists]))
                continue
            if kind == 'endif':
                svm, slg, sh = stack.pop()
                assert len(vmq) == 0 or vmq == svm[len(svm) - len(vmq):], f'vm ops leak from block {it}'
                assert len(lgq) == 0 or lgq == slg[len(slg) - len(lgq):], f'lgkm ops leak from block {it}'
                vmq, lgq = svm, slg
                hists = hists + sh
                out.append(f'{it}:')
                continue
            if kind == 'loop':
                out.append(f'{it}:')
                continue
            if kind == 'mark':
                marks[it] = (vmq[-1] if vmq else None, lgq[-1] if lgq else None)
                continue
            if kind == 'waitfor':
                touched, lgm, vmm = it
                wv = wl = None
                for idx, d in enumerate(vmq):
                    if (d & touched) or (vmm is not None and d is marks[vmm][0]):
                        wv = len(vmq) - 1 - idx
                for idx, d in enumerate(lgq):
                    if (d[0] & touched) or (lgm is not None and d is marks[lgm][1]):
                        wl = len(lgq) - 1 - idx
                if wl is not None and any(x[1] for x in lgq):
                    wl = 0
                if wv is not None or wl is not None:
                    parts = []
                    if wv is not None:
                        parts.append(f'vmcnt({min(wv, 63)})')
                    if wl is not None:
                        parts.append(f'lgkmcnt({min(wl, 15)})')
                    w = I('s_waitcnt ' + ' '.join(parts))
                    apply_wait(w)
                    push(w)
                    stats['wait'] += 1
                continue
            ins = it
            if ins.mn == 's_waitcnt':
                apply_wait(ins)
                push(ins)
                stats['wait'] += 1
                continue
            touched = set(ins.uses) | set(ins.defs)
            wv = wl = None
            for idx, d in enumerate(vmq):
                if d & touched:
                    wv = len(vmq) - 1 - idx
            for idx, d in enumerate(lgq):
                if d[0] & touched:
                    wl = len(lgq) - 1 - idx
            if wl is not None and any(x[1] for x in lgq):
                wl = 0
            if wv is not None or wl is not None:
                parts = []
                if wv is not None:
                    parts.append(f'vmcnt({min(wv, 63)})')
                if wl is not None:
                    parts.append(f'lgkmcnt({min(wl, 15)})')
                w = I('s_waitcnt ' + ' '.join(parts))
                apply_wait(w)
                push(w)
                stats['wait'] += 1
            need = 0
            for h in hists:
                dist = 0
                for p in reversed(h):
                    r = need_states(p, ins)
                    if r > dist:
                        need = max(need, r - dist)
                    dist += p.states
                    if dist >= 20:
                        break
            if need:
                push(I(f's_nop {need - 1}'))
                stats['nop'] += 1
            push(ins)
            if ins.is_mfma:
                stats['mfma'] += 1
            if ins.is_vm and 'untracked' not in ins.text:
                vmq.append(set(ins.defs))
                assert len(vmq) <= 63, 'vmcnt overflow'
            if ins.is_ds or ins.is_smem:
                lgq.append((set(ins.defs), ins.is_smem))
            if len(hists) > 1:
                uniq = []
                for h in hists:
                    if not any(h[-20:] == u[-20:] for u in uniq):
                        uniq.append(h)
                hists = uniq
        self.stats = stats
        return '\n'.join(out)
```

```python
import sys, struct
from asmgen import Kern, R, I

NAME = 'gated_mix__ssm_conv_h3__spectral_fnet__prompt'
UOFF, ZOFF, QOFF, GOFF, COFF, SOFF = 0, 2 << 20, 4 << 20, 6 << 20, (6 << 20) + 65536, 8 << 20
STM = ' sc1'
L_X = 0
L_H = 10240
HC = 4224
HS = 2 * HC
PS, WS = 1280, 5152
L_U = 10240
L_YB = L_U + 4 * WS
L_YA = L_YB + 16 * 1088
YAP, YAW, YAI = 5120, 1280, 288
L_G = L_YA + 4 * YAP
L_H = L_G + 2048
LDS_BYTES = L_H + 4 * HS
NREP = 8
NL = 16
SC = ' sc1'


def fl(x):
    return '0x%08x' % struct.unpack('<I', struct.pack('<f', x))[0]


class Ctx:
    pass


def stamp(k, c, name, pre=None):
    if c.stamps and name in c.stamps:
        if pre:
            k(pre)
        i = c.stamps.index(name)
        k(f'{c.clk} {c.st[2 * i:2 * i + 2]}')
        k('s_waitcnt lgkmcnt(0)')


def stamps_out(k, c):
    if not c.stamps:
        return
    if c.stretch is not None:
        k(f's_memrealtime {c.st[22:24]}')
        k(f's_sub_u32 {c.t0}, {c.st[2]}, {c.st[0]}')
        k(f's_mul_i32 {c.t0}, {c.t0}, {c.stretch}')
        k(f's_min_u32 {c.t0}, {c.t0}, 100000')
        k('s_waitcnt lgkmcnt(0)')
        k(f's_mov_b32 {c.t1}, {c.st[22]}')
        lp = k.loop_label('stretch')
        k(f's_memrealtime {c.st[22:24]}')
        k('s_waitcnt lgkmcnt(0)')
        k(f's_sub_u32 {c.t2}, {c.st[22]}, {c.t1}')
        k(f's_cmp_lt_u32 {c.t2}, {c.t0}')
        k(f's_cbranch_scc1 {lp}')
        return
    t = k.v.get(2)
    a = k.v.get()
    k(f's_lshl_b32 {c.t0}, s2, 2')
    k(f's_add_u32 {c.t0}, {c.t0}, {c.w}')
    k(f's_lshl_b32 {c.t0}, {c.t0}, 7')
    k(f's_add_u32 {c.t0}, {c.t0}, {SOFF}')
    k(f'v_mov_b32 {a}, {c.t0}')
    for i in range(len(c.stamps)):
        k(f'v_mov_b32 {t[0]}, {c.st[2 * i]}')
        k(f'v_mov_b32 {t[1]}, {c.st[2 * i + 1]}')
        k(f'global_store_dwordx2 {a}, {t}, {c.pws} offset:{8 * i}')
    k.v.put(t, a)


def sincos(k, base, step, mults, cs, sn, negsin=False):
    for i, m in enumerate(mults):
        if m and mults[i - 1] == m - 1:
            k(f'v_add_f32 {sn[i]}, {step}, {sn[i - 1] if mults[i - 1] else base}')
        elif m:
            k(f'v_fmamk_f32 {sn[i]}, {step}, {fl(m)}, {base}')
    for i, m in enumerate(mults):
        src = base if m == 0 else sn[i]
        k(f'v_cos_f32 {cs[i]}, {src}')
        k(f'v_sin_f32 {sn[i]}, {"-" if negsin else ""}{src}')


def cmul_tw(k, a, b, cc, ss, t):
    for h in (0, 2):
        k(f'v_pk_mul_f32 {t[h:h + 2]}, {b[h:h + 2]}, {ss[h:h + 2]}')
        k(f'v_pk_mul_f32 {b[h:h + 2]}, {b[h:h + 2]}, {cc[h:h + 2]}')
    for h in (0, 2):
        k(f'v_pk_fma_f32 {b[h:h + 2]}, {a[h:h + 2]}, {ss[h:h + 2]}, {b[h:h + 2]} neg_lo:[1,0,0] neg_hi:[1,0,0]')
        k(f'v_pk_fma_f32 {a[h:h + 2]}, {a[h:h + 2]}, {cc[h:h + 2]}, {t[h:h + 2]}')


WIDE = ('ds_write_b128', 'v_exp', 'v_rcp')


class Stream:
    def __init__(self, mfmas):
        self.m = list(mfmas)
        n = len(self.m)
        self.vec = [[] for _ in range(n)]
        self.sca = [[] for _ in range(n)]
        self.lgw = [None] * n
        self.tail = []
        self.nods = set()
        self.blk = [[] for _ in range(n)]

    def place(self, g, instrs, per_gap=2):
        last = g
        used = 0
        for ins in instrs:
            while g < len(self.m):
                mem = ins.startswith(('ds_', 'global_', 'buffer_'))
                ok = len(self.vec[g]) < 2 and used < per_gap
                if ok and mem and used and not self.vec[g][-1].startswith(('ds_', 'global_', 'buffer_')):
                    ok = False
                if ok and mem and any(x.startswith('ds_') for x in self.vec[g]) and ins.startswith('ds_'):
                    ok = False
                if ok and ins.startswith('ds_') and g in self.nods:
                    ok = False
                if ok and ins.startswith('ds_write_b128') and (self.vec[g] or any(
                        x.startswith('ds_') for gg in (g + 1, g + 2) if gg < len(self.m) for x in self.vec[gg])):
                    ok = False
                if ok and (ins.startswith(WIDE) and self.vec[g] or any(x.startswith(WIDE) for x in self.vec[g])):
                    ok = False
                if ok:
                    break
                g += 1
                used = 0
            if g >= len(self.m):
                self.tail.append(ins)
                last = len(self.m)
                continue
            self.vec[g].append(ins)
            if ins.startswith('ds_write_b128'):
                self.nods |= {g + 1, g + 2}
            used += 1
            last = g
        return last

    def scalar(self, g, ins):
        self.sca[g].append(ins)

    def barrier_after(self, g, mark):
        self.lgw[g] = mark
        self.sca[g + 1].append('s_barrier')
        return g + 1

    def emit(self, k):
        isa = lambda x: x.split('@')[0]
        for i, m in enumerate(self.m):
            k(m)
            mem = [x for x in self.vec[i] if x.startswith(('ds_', 'global_', 'buffer_'))]
            alu = [x for x in self.vec[i] if x not in mem]
            look = [isa(x) for x in self.vec[i]]
            if i + 1 < len(self.m):
                look.append(self.m[i + 1])
                if self.sca[i + 1]:
                    look += [isa(x) for x in self.vec[i + 1]]
                    if i + 2 < len(self.m):
                        look.append(self.m[i + 2])
            k.waitfor(*look, lg=self.lgw[i])
            for x in self.sca[i]:
                k(x)
            for x in mem + alu:
                k(isa(x))
                if '@' in x:
                    k.mark(x.split('@')[1])
            for x in self.blk[i]:
                if x.startswith('RAW '):
                    k.raw(x[4:])
                else:
                    k(x)
        for x in self.tail:
            k(isa(x))
            if '@' in x:
                k.mark(x.split('@')[1])


def setup(k, c):
    s, v = k.s, k.v
    c.end = k.label('end')
    k('s_cmp_ge_u32 s2, 256')
    k(f's_cbranch_scc1 {c.end}')
    a0 = s.get(8, 4); a1 = s.get(4, 4); a2 = s.get(8, 4)
    k(f's_load_dwordx8 {a0}, s[0:1], 0')
    k(f's_load_dwordx8 {a2}, s[0:1], 88')
    k(f's_load_dwordx4 {a1}, s[0:1], 32')
    c.pq, c.pk, c.pv, c.psk = a0[0:2], a0[2:4], a0[4:6], a0[6:8]
    c.ph, c.pD = a1[0:2], a1[2:4]
    c.pgw, c.pout, c.pdbg, c.pws = a2[0:2], a2[2:4], a2[4:6], a2[6:8]
    if c.stamps:
        c.st = s.get(24, 4)
        if 'start' in c.stamps:
            i = c.stamps.index('start')
            k(f'{c.clk} {c.st[2 * i:2 * i + 2]}')
    pc = s.get(2)
    c.dummy, a = v.get(), v.get()
    k(f's_getpc_b64 {pc}')
    here = k.label('pc')
    k.raw(f'{here}:')
    k(f's_lshl_b32 s3, s2, 9')
    k(f's_and_b32 s3, s3, 0x3000')
    k(f'v_lshl_add_u32 {a}, v0, 4, s3')
    k(f'v_min_u32 {a}, {c.end}-{here}, {a}')
    k(f'global_load_dword {c.dummy}, {a}, {pc}')
    s.put(pc)
    v.put(a)
    c.x, c.j, c.w, c.t0, c.t1, c.t2, c.s0, c.iA, c.E, c.tau = (s.get() for _ in range(10))
    c.l, c.l16, c.n, c.g = (v.get() for _ in range(4))
    t0, t1 = c.t0, c.t1
    k(f'v_lshrrev_b32 {c.l}, 6, v0')
    k(f's_and_b32 {c.x}, s2, 7')
    k(f'v_readfirstlane_b32 {c.w}, {c.l}')
    k(f's_bfe_u32 {t1}, s2, 0x40003')
    k(f'v_and_b32 {c.l}, 63, v0')
    k(f'v_lshlrev_b32 {c.l16}, 4, {c.l}')
    k(f's_lshl4_add_u32 {t0}, {c.x}, {t1}')
    k(f's_sub_u32 {t1}, 256, {t0}')
    k(f's_cmp_eq_u32 {t0}, 0')
    k(f's_cselect_b32 {t1}, 128, {t1}')
    k(f's_cmp_lt_u32 s2, 128')
    k(f's_cselect_b32 {c.s0}, {t0}, {t1}')
    k(f's_and_b32 {t0}, {c.w}, 2')
    k(f's_add_u32 {c.iA}, {c.w}, {t0}')
    k(f's_lshl_b32 {t0}, {c.iA}, 8')
    k(f's_add_u32 {t0}, {t0}, {c.s0}')
    k(f's_lshl_b32 {t0}, {t0}, 10')
    c.aq = aq = v.get(4, 1)
    k(f'v_add_u32 {aq[0]}, {t0}, {c.l16}')
    k(f's_sub_u32 {t1}, {2048 * 1024 + 1008}, {t0}')
    k(f's_bitset0_b32 {t1}, 21')
    k(f'v_sub_u32 {aq[1]}, {t1}, {c.l16}')
    k(f'v_add_u32 {aq[2]}, {512 * 1024}, {aq[0]}')
    k(f'v_sub_u32 {aq[3]}, {1536 * 1024 + 1008}, {aq[0]}')
    c.qd = [v.get(4), v.get(4)]
    c.qm = [v.get(4), v.get(4)]
    c.K, c.V = v.get(11, 1), v.get(8, 1)
    c.gw, c.skw = v.get(4), v.get(4)
    c.H = [v.get(4) for _ in range(4)]
    c.Dv = v.get()
    c.srdk, c.srdws = s.get(4, 4), s.get(4, 4)


def load_addrs(k, c):
    s, v = k.s, k.v
    t0, t1 = c.t0, c.t1
    c.P, c.cb, akv, akh, ask, c.ah, aD = (v.get() for _ in range(7))
    k(f's_lshr_b32 {c.j}, s2, 3')
    k(f'v_and_b32 {c.n}, 15, v0')
    k(f'v_lshrrev_b32 {c.g}, 4, {c.l}')
    k(f'v_and_b32 {c.P}, 31, v0')
    k(f'v_lshrrev_b32 {c.cb}, 5, {c.l}')
    k(f's_lshl3_add_u32 {t0}, {c.j}, {c.w}')
    k(f's_lshl4_add_u32 {t0}, {t0}, 8')
    k(f's_lshl2_add_u32 {t0}, {t0}, {c.x}')
    k(f's_lshl_b32 {t0}, {t0}, 7')
    k(f'v_lshl_add_u32 {akv}, {c.cb}, 15, {t0}')
    k(f'v_lshl_add_u32 {akv}, {c.P}, 2, {akv}')
    k(f'v_subrev_u32 {akh}, 7168, {akv}')
    k(f's_mov_b32 {c.srdk[2]}, {2 << 20}')
    k(f's_mov_b32 {c.srdk[3]}, 0x00020000')
    k(f's_mov_b32 {c.srdws[2]}, {1 << 28}')
    k(f's_mov_b32 {c.srdws[3]}, 0x00020000')
    k(f's_lshr_b32 {t0}, s2, 4')
    k(f's_lshl4_add_u32 {c.E}, {c.x}, {t0}')
    k(f's_and_b32 {c.tau}, {c.j}, 1')
    k(f's_lshl_b32 {t1}, {c.x}, 9')
    k(f'v_lshl_add_u32 {ask}, {c.P}, 4, {t1}')
    k(f's_lshl2_add_u32 {t0}, {c.E}, {c.w}')
    k(f's_lshl_b32 {t1}, {t0}, 12')
    k(f'v_add_u32 {c.ah}, {t1}, {c.l16}')
    k(f'v_lshrrev_b32 {aD}, 11, {c.ah}')
    L = [f'buffer_load_dword {c.K[t]}, {akh}, {c.srdk}, 0 offen offset:{1024 * t}' for t in range(3)]
    L += [f'global_load_dword {c.K[3 + t]}, {akv}, {c.pk} offset:{1024 * (t - 4)}' for t in range(8)]
    L += [f'global_load_dwordx4 {c.skw}, {ask}, {c.psk}']
    L += [f'global_load_dword {c.V[t]}, {akv}, {c.pv} offset:{1024 * (t - 4)}' for t in range(8)]
    Lh = [f'global_load_dwordx4 {c.H[n]}, {c.ah}, {c.ph} offset:{1024 * n}' for n in range(4)]
    c.Lh, c.Lh2 = Lh[:c.ne] + [f'global_load_ushort {c.Dv}, {aD}, {c.pD}'], Lh[c.ne:]
    c.loads = [('i', I(x)) for x in L]
    v.put(akv, akh, ask, aD)


def first_loads(k, c):
    s, v = k.s, k.v
    aq = c.aq
    k('s_waitcnt lgkmcnt(0)')
    stamp(k, c, 'karg')
    k(f'global_load_dwordx4 {c.qd[0]}, {aq[0]}, {c.pq}')
    k(f's_mov_b32 {c.srdk[0]}, {c.pk[0]}')
    k(f'global_load_dwordx4 {c.qm[0]}, {aq[1]}, {c.pq}')
    k(f's_and_b32 {c.srdk[1]}, {c.pk[1]}, 0xffff')
    k(f'global_load_dwordx4 {c.qd[1]}, {aq[2]}, {c.pq}')
    k(f's_mov_b32 {c.srdws[0]}, {c.pws[0]}')
    k(f'global_load_dwordx4 {c.qm[1]}, {aq[3]}, {c.pq}')
    k(f's_and_b32 {c.srdws[1]}, {c.pws[1]}, 0xffff')
    k('s_cmp_ge_u32 s2, 4')
    lab = k.begin_skip('s_cbranch_scc1', 'noclear')
    z4 = c.H[3]
    k(f's_lshl_b32 s3, s2, 12')
    k(f's_add_u32 s3, s3, {COFF}')
    k(f'v_lshl_add_u32 {aq[0]}, v0, 4, s3')
    k(f'v_pk_mov_b32 {z4[0:2]}, 0, 0')
    k(f'v_pk_mov_b32 {z4[2:4]}, 0, 0')
    k(f'global_store_dwordx4 {aq[0]}, {z4}, {c.pws}{SC} ; untracked')
    k.end_skip(lab)
    k(f'global_load_dwordx4 {c.gw}, {c.l16}, {c.pgw}')
    v.put(aq)


def consts_b(k, c):
    s, v = k.s, k.v
    base, step, t = v.get(), v.get(), v.get()
    cs, sn = v.get(8), v.get(8)
    c.sg, s1, s2_ = s.get(), s.get(), s.get()
    c.CBc = [v.get(4), v.get(4)]
    c.CBs = [v.get(4), v.get(4)]
    c.CBn = [v.get(4), v.get(4)]
    c.a2, c.gea = v.get(), v.get()
    k(f'v_mul_u32_u24 {base}, {c.g}, {c.n}')
    k(f'v_cvt_f32_u32 {step}, {c.n}')
    k(f'v_cvt_f32_u32 {base}, {base}')
    k(f'v_mul_f32 {step}, {fl(1 / 32)}, {step}')
    k(f'v_mul_f32 {base}, {fl(1 / 8)}, {base}')
    k(f's_mov_b32 {c.sg}, 0x80008000')
    sincos(k, base, step, [0, 1, 2, 3], cs, sn)
    k(f'v_bfe_i32 {t}, v0, 0, 1')
    k(f's_brev_b32 {s1}, 1')
    k(f's_mov_b32 {s2_}, 0x8000')
    k(f'v_and_b32 {t}, {c.sg}, {t}')
    for m in range(2):
        k(f'v_cvt_pk_bf16_f32 {c.CBc[0][m]}, {cs[2 * m]}, {cs[2 * m + 1]}')
        k(f'v_cvt_pk_bf16_f32 {c.CBs[0][m]}, {sn[2 * m]}, {sn[2 * m + 1]}')
    for m in range(2):
        k(f'v_xor_b32 {c.CBc[0][2 + m]}, {t}, {c.CBc[0][m]}')
        k(f'v_xor_b32 {c.CBs[0][2 + m]}, {t}, {c.CBs[0][m]}')
    k(f'v_lshrrev_b32 {c.a2}, 2, {c.n}')
    k(f'v_lshl_add_u32 {t}, {c.w}, 2, {c.a2}')
    k(f'v_mul_u32_u24 {c.gea}, {c.g}, {t}')
    k(f'v_cvt_f32_u32 {step}, {t}')
    k(f'v_cvt_f32_u32 {base}, {c.gea}')
    k(f'v_mul_f32 {step}, {fl(1 / 512)}, {step}')
    k(f'v_mul_f32 {base}, {fl(1 / 128)}, {base}')
    sincos(k, base, step, [0, 1, 2, 3, 16, 17, 18, 19], cs, sn)
    c.tw1c, c.tw1s = cs, sn
    c.cbx = []
    for m in range(4):
        c.cbx.append(f'v_xor_b32 {c.CBn[0][m]}, {c.sg}, {c.CBs[0][m]}')
    for m in range(4):
        c.cbx.append(f'v_xor_b32 {c.CBs[1][m]}, {s1}, {c.CBs[0][m]}')
        c.cbx.append(f'v_xor_b32 {c.CBc[1][m]}, {s1}, {c.CBc[0][m]}')
        c.cbx.append(f'v_xor_b32 {c.CBn[1][m]}, {s2_}, {c.CBs[0][m]}')
    c.cbx_s = [s1, s2_, c.sg]
    n = c.o.get('cbx', 0)
    for x in c.cbx[n:]:
        k(x)
    c.cbx = c.cbx[:n]
    v.put(base, step, t)


def x_addrs(k, c):
    s, v = k.s, k.v
    t0, t1 = c.t0, c.t1
    t, u = v.get(), v.get()
    c.aXw, c.aXr, c.aGw, c.aGr = (v.get() for _ in range(4))
    k(f's_and_b32 {t1}, {c.w}, 1')
    k(f's_mul_i32 {t0}, {c.iA}, 40')
    k(f's_add_u32 {t0}, {t0}, {t1}')
    k(f'v_lshl_add_u32 {c.aXw}, {t0}, 5, {c.l16}')
    k(f'v_bfe_u32 {t}, v0, 2, 2')
    k(f'v_and_b32 {u}, 8, v0')
    k(f'v_mul_u32_u24 {c.aXr}, {1280 + 32}, {t}')
    k(f'v_and_or_b32 {u}, v0, 3, {u}')
    k(f'v_lshl_add_u32 {u}, {c.g}, 3, {u}')
    k(f'v_lshl_add_u32 {c.aXr}, {u}, 3, {c.aXr}')
    k(f's_lshr_b32 {t0}, {c.w}, 1')
    k(f's_lshl1_add_u32 {t0}, {t1}, {t0}')
    k(f's_lshl_b32 {t0}, {t0}, 9')
    k(f's_add_u32 {t0}, {t0}, {L_G}')
    k(f'v_lshl_add_u32 {c.aGw}, {c.l}, 2, {t0}')
    k(f's_mov_b32 {t1}, {L_G}')
    k(f'v_lshl_add_u32 {c.aGr}, {c.l}, 5, {t1}')
    v.put(t, u)


def store_addrs(k, c):
    s, v = k.s, k.v
    t0, t1 = c.t0, c.t1
    t = v.get()
    c.aZ, c.aU, c.aGs = v.get(2, 1), v.get(), v.get()
    m = s.get(2)
    k(f's_lshl4_add_u32 {t0}, {c.w}, {ZOFF >> 10}')
    k(f's_lshl4_add_u32 {t0}, {t0}, {c.s0}')
    k(f's_lshl_b32 {t0}, {t0}, 6')
    k(f'v_lshl_add_u32 {t}, {c.g}, 4, {t0}')
    k(f'v_lshl_add_u32 {c.aZ[0]}, {c.n}, 16, {t}')
    k(f'v_add_u32 {c.aZ[1]}, {1 << 20}, {c.aZ[0]}')
    k(f's_and_b32 {t0}, {c.s0}, 1')
    k(f's_mul_i32 {t0}, {t0}, 255')
    k(f's_add_u32 {t0}, {t0}, {c.s0}')
    k(f's_lshl4_add_u32 {t0}, {t0}, {GOFF >> 1}')
    k(f'v_and_b32 {t}, 0xc6, v0')
    k(f'v_cmp_eq_u32 {m}, 0, {t}')
    k(f'v_and_b32 {t}, 1, v0')
    k(f'v_lshl_add_u32 {c.aGs}, {t}, 4, {t0}')
    k(f'v_lshrrev_b32 {c.aU}, 2, v0')
    k(f'v_add_lshl_u32 {c.aGs}, {c.aGs}, {c.aU}, 1')
    k(f'v_cndmask_b32 {c.aGs}, 2.0, {c.aGs}, {m}')
    k(f's_lshl_b32 {t0}, {c.x}, 9')
    k(f's_add_u32 {t0}, {t0}, {c.j}')
    k(f's_lshl2_add_u32 {t0}, {t0}, {c.w}')
    k(f's_lshl_b32 {t0}, {t0}, 7')
    k(f'v_lshl_add_u32 {t}, {c.cb}, 1, {t}')
    k(f'v_lshl_add_u32 {t}, {t}, 4, {t0}')
    k(f'v_lshrrev_b32 {c.aU}, 1, {c.P}')
    k(f'v_lshl_add_u32 {c.aU}, {c.aU}, 14, {t}')
    s.put(m)
    v.put(t, c.P, c.cb)


def consts_a(k, c):
    s, v = k.s, k.v
    ip, base, step = (v.get() for _ in range(3))
    cs, sn = v.get(4), v.get(4)
    c.sel = s.get(4, 2)
    sp, sig = s.get(), s.get()
    k(f's_movk_i32 {c.sel[0]}, 0x3f80')
    k(f's_movk_i32 {c.sel[2]}, 0x3f80')
    k(f's_lshr_b32 {c.t0}, {c.s0}, 7')
    k(f's_mul_i32 {sig}, {c.t0}, {c.sg}')
    k(f's_lshl_b32 {c.t0}, {c.t0}, 1')
    k(f's_mov_b32 {c.t2}, 0')
    k(f's_and_b32 {sp}, {c.s0}, 127')
    lab = k.begin_skip('s_cbranch_scc1', 'nospecial')
    k(f's_lshl_b32 {c.t0}, {c.iA}, 8')
    k(f's_add_u32 {c.t0}, {c.t0}, {c.s0}')
    k(f'v_cvt_f32_u32 {base}, {c.t0}')
    k(f'v_mul_f32 {base}, {fl(1 / 4096)}, {base}')
    k(f'v_sub_f32 {step}, {fl(1 / 8)}, {base}')
    k(f'v_cos_f32 {base}, {base}')
    k(f'v_cos_f32 {step}, {step}')
    k(f's_mov_b32 {c.t0}, 1')
    k(f'v_cvt_pk_bf16_f32 {base}, {step}, {base}')
    k(f's_movk_i32 {c.t2}, 3584')
    k(f'v_readfirstlane_b32 {c.sel[2]}, {base}')
    k(f's_and_b32 {c.sel[0]}, {c.sel[2]}, 0xffff')
    k(f's_lshr_b32 {c.sel[2]}, {c.sel[2]}, 16')
    k.end_skip(lab)
    k(f's_lshl_b32 {c.sel[1]}, {c.sel[0]}, 16')
    k(f's_lshl_b32 {c.sel[3]}, {c.sel[2]}, 16')
    k(f'v_and_b32 {ip}, 3, v0')
    k(f'v_lshl_add_u32 {ip}, {ip}, 2, {c.t0}')
    k(f'v_lshl_add_u32 {base}, {c.gea}, 8, {c.t2}')
    k(f'v_mad_u32_u24 {base}, {ip}, {c.s0}, {base}')
    k(f'v_cvt_f32_u32 {step}, {ip}')
    k(f'v_cvt_f32_u32 {base}, {base}')
    k(f'v_mul_f32 {step}, {fl(-1 / 16)}, {step}')
    k(f'v_mul_f32 {base}, {fl(-1 / 4096)}, {base}')
    sincos(k, base, step, [0, 1, 2, 3], cs, sn)
    c.CAr = [v.get(4) for _ in range(4)]
    c.CAi = [v.get(4) for _ in range(4)]
    C, S = c.CAr[0], c.CAi[0]
    mo, m2, m12 = ip, base, step
    odd = s.get(2)
    k(f'v_bfe_i32 {mo}, v0, 2, 1')
    k(f'v_bfe_i32 {m2}, v0, 3, 1')
    for m in range(2):
        k(f'v_cvt_pk_bf16_f32 {C[m]}, {cs[2 * m]}, {cs[2 * m + 1]}')
        k(f'v_cvt_pk_bf16_f32 {S[m]}, {sn[2 * m]}, {sn[2 * m + 1]}')
    k(f's_mov_b32 {odd[0]}, 0xf0f0f0f0')
    k(f's_mov_b32 {odd[1]}, {odd[0]}')
    k(f'v_and_b32 {mo}, {c.sg}, {mo}')
    k(f'v_and_b32 {m2}, {c.sg}, {m2}')
    k(f'v_xor_b32 {m12}, {mo}, {m2}')
    for m in range(2):
        k(f'v_xor_b32 {C[2 + m]}, {sig}, {C[m]}')
        k(f'v_xor_b32 {S[2 + m]}, {sig}, {S[m]}')
    k(f's_cmp_lg_u32 {sp}, 0')
    lab = k.begin_skip('s_cbranch_scc1', 'nospecial')
    for m in range(2):
        k(f'v_mov_b32 {C[2 + m]}, {S[m]}')
        k(f'v_xor_b32 {S[2 + m]}, {c.sg}, {C[m]}')
    k.end_skip(lab)
    for m in range(4):
        k(f'v_cndmask_b32 {c.CAr[3][m]}, {C[m]}, {S[m]}, {odd}')
        k(f'v_cndmask_b32 {c.CAi[3][m]}, {S[m]}, {C[m]}, {odd}')
        k(f'v_xor_b32 {c.CAr[2][m]}, {C[m]}, {mo}')
        k(f'v_xor_b32 {c.CAi[2][m]}, {S[m]}, {mo}')
    for m in range(4):
        k(f'v_xor_b32 {c.CAr[1][m]}, {c.CAr[3][m]}, {m2}')
        k(f'v_xor_b32 {c.CAi[1][m]}, {c.CAi[3][m]}, {m12}')
        k(f'v_xor_b32 {c.CAr[3][m]}, {c.CAr[3][m]}, {m12}')
        k(f'v_xor_b32 {c.CAi[3][m]}, {c.CAi[3][m]}, {m2}')
    s.put(odd, sp, sig)
    v.put(ip, base, step, cs, sn, c.a2, c.gea)


def p1_dft(k, c):
    s, v = k.s, k.v
    f = v.get(8)
    o = v.get(4)
    X = v.get()
    if c.stamps and 'qarr' in c.stamps:
        k.waitfor(*c.qd, *c.qm)
        stamp(k, c, 'qarr')
    for r in range(2):
        A, M = c.qd[r], c.qm[r]
        lo, hi = c.sel[2 * r], c.sel[2 * r + 1]
        for m in range(4):
            k(f'v_dot2_f32_bf16 {f[2 * m]}, {A[m]}, {lo}, 0')
            k(f'v_dot2_f32_bf16 {f[2 * m + 1]}, {A[m]}, {hi}, 0')
        k(f'v_mov_b32_dpp {X}, {M[0]} wave_ror:1 row_mask:0xf bank_mask:0xf')
        src = [(X, 0), (M[3], 1), (M[3], 0), (M[2], 1), (M[2], 0), (M[1], 1), (M[1], 0), (M[0], 1)]
        for e in range(8):
            k(f'v_dot2c_f32_bf16 {f[e]}, {hi if src[e][1] else lo}, {src[e][0]}')
        dst = o if r == 0 else c.qm[0]
        for m in range(4):
            k(f'v_cvt_pk_bf16_f32 {dst[m]}, {f[2 * m]}, {f[2 * m + 1]}')
        k(f'ds_write_b128 {c.aXw}, {dst} offset:{L_X + r * (2560 + 128)}')
    z = f[0:2]
    for m in range(4):
        for r in range(2):
            k(f'v_dot2_f32_bf16 {z[r]}, {c.qd[r][m]}, {c.gw[m]}, {z[r] if m else 0}')
    k('s_waitcnt lgkmcnt(0)')
    stamp(k, c, 'xt')
    k('s_barrier')
    v.put(o, X, c.qm[0], c.qm[1], c.aXw, c.qd[0], c.qd[1], c.gw)
    s.put(c.sel)
    F = [[v.get(4) for _ in range(4)] for _ in range(2)]
    tr = [f'ds_read_b64_tr_b16 {F[T][ks][2 * h:2 * h + 2]}, {c.aXr} offset:{L_X + 5120 * h + 256 * ks + 32 * T}'
          for T in range(2) for ks in range(4) for h in range(2)]
    ntr = c.o.get('ntr', 8)
    for x in tr[:ntr]:
        k(x)
    k(f'ds_write2st64_b32 {c.aGw}, {z[0]}, {z[1]} offset0:0 offset1:1')
    k.mark('gp')
    sync_go(k, c)
    Dr = [v.get(4), v.get(4)]
    Di = [v.get(4), v.get(4)]
    Re, Im, t = v.get(4), v.get(4), v.get(4)
    Hr, Hi = F[0][0:2], F[0][2:4]
    mf = []
    for T in range(2):
        for ks in range(4):
            mf.append(f'v_mfma_f32_16x16x32_bf16 {Dr[T]}, {F[T][ks]}, {c.CAr[ks]}, {Dr[T] if ks else 0}')
            mf.append(f'v_mfma_f32_16x16x32_bf16 {Di[T]}, {F[T][ks]}, {c.CAi[ks]}, {Di[T] if ks else 0}')
    for Tb in range(2):
        mf.append(f'v_mfma_f32_16x16x32_bf16 {Hr[Tb]}, {Im}, {c.CBs[Tb]}, 0')
        mf.append(f'v_mfma_f32_16x16x32_bf16 {Hi[Tb]}, {Im}, {c.CBc[Tb]}, 0')
        mf.append(f'v_mfma_f32_16x16x32_bf16 {Hr[Tb]}, {Re}, {c.CBc[Tb]}, {Hr[Tb]}')
        mf.append(f'v_mfma_f32_16x16x32_bf16 {Hi[Tb]}, {Re}, {c.CBn[Tb]}, {Hi[Tb]}')
    st = Stream(mf)

    def twid():
        for T in range(2):
            cmul_tw(k, Dr[T], Di[T], c.tw1c[4 * T:4 * T + 4], c.tw1s[4 * T:4 * T + 4], t)
            for h in range(2):
                k(f'v_cvt_pk_bf16_f32 {Im[2 * T + h]}, {Di[T][2 * h]}, {Di[T][2 * h + 1]}')
            for h in range(2):
                k(f'v_cvt_pk_bf16_f32 {Re[2 * T + h]}, {Dr[T][2 * h]}, {Dr[T][2 * h + 1]}')
    st.blk[15] = [x[1].text for x in k.capture(twid)]
    g = st.place(0, tr[ntr:])
    gb = st.barrier_after(c.o.get('gbar', 5), 'gp')
    g = st.place(max(g + 1, gb), [f'ds_read_b128 {f[4 * h:4 * h + 4]}, {c.aGr} offset:{16 * h}' for h in range(2)])
    z = f[0]
    g = st.place(g + 4, [f'v_add_f32 {f[i]}, {f[i]}, {f[i + 4]}' for i in range(4)] +
                 [f'v_add_f32 {f[i]}, {f[i]}, {f[i + 2]}' for i in range(2)])
    chain = [f'v_add_f32 {z}, {z}, {f[1]}']
    chain += [f'v_add_f32_dpp {z}, {z}, {z} {ctl} row_mask:0xf bank_mask:0xf' for ctl in
              ('quad_perm:[1,0,3,2]', 'quad_perm:[2,3,0,1]', 'row_half_mirror')]
    chain += [f'v_mul_f32 {z}, {fl(-1.4426950408889634)}, {z}', f'v_exp_f32 {z}, {z}', f'v_add_f32 {z}, 1.0, {z}',
              f'v_rcp_f32 {z}, {z}']
    g = st.place(g + 1, chain, per_gap=1)
    rest, st.tail = st.tail, []
    assert st.place(0, c.cbx) < 15
    c.Kf = [v.get(2) for _ in range(11)]
    c.Wt = [v.get(2) for _ in range(4)]
    c.unp = unp = lambda d, x: [f'v_lshlrev_b32 {d[0]}, 16, {x}', f'v_and_b32 {d[1]}, {c.mhi}, {x}']
    c.unpK = [i for t_ in range(11) for i in unp(c.Kf[t_], c.K[t_])]
    for ch in range(2):
        for jj in range(4):
            src = c.skw[2 * ch + (jj >> 1)]
            c.unpK.append(f'v_and_b32 {c.Wt[jj][ch]}, {c.mhi}, {src}' if jj & 1 else f'v_lshlrev_b32 {c.Wt[jj][ch]}, 16, {src}')
    st.place(c.o.get('ks0', 10), c.unpK)
    c.unpK, st.tail = rest + st.tail, []
    st.emit(k)
    stamp(k, c, 'stB')
    c.zst = []
    for Tb in range(2):
        o = F[1][Tb]
        if Tb == 1:
            for x in c.unpK[:4]:
                k(x)
            c.unpK = c.unpK[4:]
        for i in range(4):
            k(f'v_cvt_pk_bf16_f32 {o[i]}, {Hr[Tb][i]}, {Hi[Tb][i]}')
        c.zst.append(f'global_store_dwordx4 {c.aZ[Tb]}, {o}, {c.pws}{SC}')
        if c.zlate == 0:
            k(c.zst.pop())
    c.zst.append(f'buffer_store_dword {z}, {c.aGs}, {c.srdws}, 0 offen{SC}')
    v.put(*F[0], *F[1][2:], *Dr, *Di, Re, Im, t, c.aXr, c.tw1c, c.tw1s, c.aGr, c.aGw)
    c.zfree = [*F[1][:2], c.aZ, f, c.aGs]
    v.put(*c.CAr, *c.CAi, *c.CBc, *c.CBs, *c.CBn)
    s.put(*c.cbx_s)


def p1_kv(k, c):
    s, v = k.s, k.v
    Kf, Wt = c.Kf, c.Wt
    Vf = [v.get(2) for _ in range(8)]
    for x in c.unpK:
        k(x)
    S = [v.get(2) for _ in range(8)]
    for jj in range(4):
        for t in range(8):
            if jj == 0:
                k(f'v_pk_mul_f32 {S[t]}, {Kf[3 + t]}, {Wt[0]}')
            else:
                k(f'v_pk_fma_f32 {S[t]}, {Kf[3 + t - jj]}, {Wt[jj]}, {S[t]}')
    stamp(k, c, 'ks')
    k.waitfor(c.V)
    stamp(k, c, 'varr')
    unpV = [i for t_ in range(8) for i in c.unp(Vf[7 - t_], c.V[7 - t_])]
    side = [('i', I(x)) for x in c.zst] if c.zlate <= 1 else []
    k.interleave([('i', I(x)) for x in unpV], side, c.o.get('zev', 6))
    for t in range(8):
        k(f'v_pk_mul_f32 {S[7 - t]}, {S[7 - t]}, {Vf[7 - t]}')
    o = [v.get(4), v.get(4)]
    for p in range(2):
        for m in range(4):
            k(f'v_cvt_pk_bf16_f32 {o[p][m]}, {S[7 - 2 * m][p]}, {S[6 - 2 * m][p]}')
        k(f'global_store_dwordx4 {c.aU}, {o[p]}, {c.pws} offset:{UOFF + 64 * p}{SC}')
    if c.zlate == 2:
        for x in c.zst:
            k(x)
    k.mark('stores')
    v.put(*c.zfree, *Wt, *Kf, *Vf, *S, *o, c.K, c.V, c.skw, c.aU, c.dummy)


def p2_consts(k, c):
    s, v = k.s, k.v
    t0, t1 = c.t0, c.t1
    k1, base, step, t = (v.get() for _ in range(4))
    m = s.get(2)
    k(f'v_lshrrev_b32 {t}, 2, {c.n}')
    k(f'v_and_b32 {k1}, 3, v0')
    k(f'v_lshl_add_u32 {k1}, {k1}, 2, {t}')
    c.sgn = v.get()
    c.psel = s.get()
    k(f's_mul_i32 {t0}, {c.tau}, 0x02020000')
    k(f's_add_u32 {c.psel}, {t0}, 0x01000c0c')
    k(f'v_lshlrev_b32 {t}, 31, {t}')
    k(f'v_xor_b32 {c.sgn}, 1.0, {t}')
    cs, sn = v.get(4), v.get(4)
    k(f's_lshl_b32 {t0}, {c.tau}, 3')
    k(f'v_lshl_add_u32 {t}, {c.g}, 1, {t0}')
    k(f'v_mul_u32_u24 {base}, {t}, {k1}')
    k(f'v_cvt_f32_u32 {step}, {k1}')
    k(f'v_cvt_f32_u32 {base}, {base}')
    k(f'v_mul_f32 {step}, {fl(1 / 16)}, {step}')
    k(f'v_mul_f32 {base}, {fl(1 / 16)}, {base}')
    sincos(k, base, step, [0, 1], cs, sn)
    c.Fa = v.get(4)
    c.Far, c.Fai = c.Fa[0:2], c.Fa[2:4]
    k(f'v_mul_u32_u24 {base}, {c.g}, {k1}')
    for jj in range(2):
        k(f'v_cvt_pk_bf16_f32 {c.Far[jj]}, {cs[jj]}, {sn[jj]}')
        k(f'v_cvt_pk_bf16_f32 {c.Fai[jj]}, -{sn[jj]}, {cs[jj]}')
    k(f'v_cvt_f32_u32 {base}, {base}')
    k(f'v_mul_f32 {base}, {fl(1 / 4)}, {base}')
    sincos(k, base, step, [0, 1, 2, 3], cs, sn)
    c.Fb = v.get(4)
    k(f'v_mul_f32 {base}, {fl(1 / 16)}, {base}')
    k(f'v_mul_f32 {step}, {fl(1 / 16)}, {step}')
    for h in range(2):
        k(f'v_cvt_pk_bf16_f32 {c.Fb[h]}, {cs[2 * h]}, {cs[2 * h + 1]}')
        k(f'v_cvt_pk_bf16_f32 {c.Fb[2 + h]}, {sn[2 * h]}, {sn[2 * h + 1]}')
    sincos(k, base, step, [0, 1, 2, 3], cs, sn)
    c.tw2c, c.tw2s = cs, sn
    c.Ci = [v.get(4) for _ in range(4)]
    c.SP = v.get(8)
    for jj in range(4):
        k(f'v_pk_mov_b32 {c.Ci[jj][0:2]}, 0, 0')
        k(f'v_pk_mov_b32 {c.Ci[jj][2:4]}, 0, 0')
        k(f'v_pk_mov_b32 {c.SP[2 * jj:2 * jj + 2]}, 0, 0')
    k(f's_mul_i32 {t0}, {c.w}, {WS}')
    k(f'v_mul_u32_u24 {t}, {PS}, {c.g}')
    k(f'v_lshl_add_u32 {t}, {c.n}, 4, {t}')
    c.aB = v.get()
    k(f'v_add_u32 {c.aB}, {t0}, {t}')
    k(f'ds_write_b128 {c.aB}, {c.Ci[0]} offset:{L_U}')
    v.put(k1, base, step, t)
    s.put(m)


def p2_hpre(k, c):
    s, v = k.s, k.v
    t0, t1 = c.t0, c.t1
    t, base = v.get(), v.get()
    c.aHw, c.aHr = v.get(), v.get()
    k(f's_mul_i32 {t0}, {c.w}, {HS}')
    k(f's_add_u32 {t0}, {t0}, {L_H}')
    k(f'v_lshl_add_u32 {t}, {c.n}, 2, {t0}')
    k(f'v_add_u32 {c.aHw}, {t0}, {c.l16}')
    k(f'ds_write_b32 {t}, {c.az}')
    k(f'ds_write_b32 {t}, {c.az} offset:{HC}')
    k(f's_add_u32 {t1}, {c.tau}, 1')
    k(f'v_lshl_add_u32 {t}, {c.g}, 2, {c.n}')
    k(f'v_add_u32 {t}, {t1}, {t}')
    k(f'v_and_b32 {base}, 1, {t}')
    k(f'v_mul_u32_u24 {base}, {HC - 4}, {base}')
    k(f'v_lshl_add_u32 {t}, {t}, 2, {t0}')
    k(f'v_add_u32 {c.aHr}, {base}, {t}')
    v.put(t, base)


def p2_dfrag(k, c):
    s, v = k.s, k.v
    c.AD = v.get(4)
    t = v.get()
    ms = [s.get(2) for _ in range(4)]
    k(f'v_lshl_add_u32 {t}, {c.g}, 2, {c.n}')
    for m in range(4):
        k(f'v_cmp_eq_u32 {ms[m]}, {15 - m}, {t}')
    k(f'v_lshlrev_b32 {c.Dv}, {c.sh}, {c.Dv}')
    for m in range(4):
        k(f'v_cndmask_b32 {c.AD[m]}, 0, {c.Dv}, {ms[m]}')
    s.put(*ms)
    v.put(c.Dv, t)


def out_addrs(k, c):
    if hasattr(c, 'xl'):
        return
    s, v = k.s, k.v
    t0 = c.t0
    c.xl, c.aO1, t = v.get(), v.get(), v.get()
    c.qn = v.get(8)
    c.qdone = 0
    k(f's_lshl_b32 {t0}, {c.w}, 2')
    k(f'v_and_b32 {t}, 60, v0')
    k(f'v_lshl_add_u32 {c.xl}, {t}, 2, {t0}')
    k(f'v_and_or_b32 {c.xl}, v0, 3, {c.xl}')
    k(f's_lshl_b32 {t0}, {c.tau}, 7')
    k(f's_add_u32 {t0}, {t0}, {c.E}')
    k(f's_lshl_b32 {t0}, {t0}, 3')
    k(f'v_lshl_add_u32 {c.aO1}, {c.xl}, 11, {t0}')
    v.put(t)
    c.srdq = s.get(4, 4)
    c.po = s.get(3, 1)
    k(f's_mov_b32 {c.srdq[0]}, {c.pq[0]}')
    k(f's_and_b32 {c.srdq[1]}, {c.pq[1]}, 0xffff')
    k(f's_mov_b32 {c.srdq[2]}, {2 << 20}')
    k(f's_mov_b32 {c.srdq[3]}, 0x00020000')
    for cc in range(1, 4):
        k(f's_mov_b32 {c.po[cc - 1]}, {cc << 19}')
    c.qld = lambda cc: f'buffer_load_dwordx2 {c.qn[2 * cc:2 * cc + 2]}, {c.aO1}, {c.srdq}, {c.po[cc - 1] if cc else 0} offen{c.o.get("qm", "")}'


def p2_addrs(k, c):
    s, v = k.s, k.v
    t0, t1 = c.t0, c.t1
    out_addrs(k, c)
    t, u, xl = v.get(), v.get(), c.xl
    c.srdo = s.get(4, 4)
    k(f's_mov_b32 {c.srdo[0]}, {c.pout[0]}')
    k(f's_and_b32 {c.srdo[1]}, {c.pout[1]}, 0xffff')
    k(f's_mov_b32 {c.srdo[2]}, {2 << 20}')
    k(f's_mov_b32 {c.srdo[3]}, 0x00020000')
    m = s.get(2)
    c.aUg, c.aUw = v.get(2, 1), v.get()
    c.e14 = s.get()
    k(f's_lshl_b32 {c.e14}, {c.E}, 14')
    k(f's_add_u32 {t0}, {c.e14}, {UOFF + 4096}')
    k(f'v_lshl_add_u32 {c.aUg[0]}, v0, 4, {t0}')
    k(f'v_add_u32 {c.aUg[1]}, 8192, {c.aUg[0]}')
    k(f'v_and_b32 {t}, 1, v0')
    k(f'v_bfe_u32 {u}, v0, 2, 1')
    k(f'v_lshl_add_u32 {t}, {t}, 1, {u}')
    k(f'v_mul_u32_u24 {c.aUw}, {WS}, {t}')
    k(f'v_bfe_u32 {t}, v0, 3, 2')
    k(f'v_xor_b32 {t}, 3, {t}')
    k(f'v_mul_u32_u24 {t}, {PS}, {t}')
    k(f'v_and_b32 {u}, 0xe0, v0')
    k(f'v_add3_u32 {c.aUw}, {c.aUw}, {t}, {u}')
    k(f'v_and_b32 {t}, 2, v0')
    k(f'v_lshl_add_u32 {c.aUw}, {t}, 3, {c.aUw}')
    c.aZ0, c.aZ1, c.aG = (v.get() for _ in range(3))
    c.aSP = v.get(2, 1)
    k(f's_lshl_b32 {t1}, {c.w}, 4')
    k(f's_add_u32 {t0}, {c.e14}, {t1}')
    k(f's_add_u32 {t0}, {t0}, {ZOFF}')
    k(f'v_mov_b32 {c.aSP[0]}, {t0}')
    k(f'v_add_u32 {c.aSP[1]}, 8192, {c.aSP[0]}')
    k(f's_lshl_b32 {t1}, {c.tau}, 13')
    k(f's_add_u32 {t0}, {t0}, {t1}')
    k(f'v_cmp_eq_u32 {m}, 0, {c.l}')
    k(f'v_lshl_add_u32 {c.aZ1}, {c.n}, 6, {t0}')
    k(f'v_lshl_add_u32 {c.aZ1}, {c.g}, 11, {c.aZ1}')
    k(f'v_cndmask_b32 {c.aZ0}, {c.aZ1}, 2.0, {m}')
    k(f'v_and_b32 {t}, 3, v0')
    c.aYBw, c.aYBr, c.aYAw, c.aYAr = (v.get() for _ in range(4))
    k(f'v_mul_u32_u24 {c.aYBr}, 1088, {t}')
    k(f'v_and_b32 {u}, 12, v0')
    k(f'v_lshl_add_u32 {c.aYBr}, {u}, 2, {c.aYBr}')
    k(f's_lshl_b32 {t0}, {c.w}, 6')
    k(f'v_lshl_add_u32 {u}, {c.g}, 8, {t0}')
    k(f'v_add_u32 {c.aYBr}, {c.aYBr}, {u}')
    k(f'v_and_b32 {t}, 127, {xl}')
    k(f'v_lshrrev_b32 {u}, 7, {xl}')
    k(f's_lshl_b32 {t0}, {c.tau}, 13')
    k(f's_add_u32 {t0}, {t0}, {GOFF}')
    k(f'v_lshl_add_u32 {c.aG}, {t}, 6, {t0}')
    k(f'v_lshl_add_u32 {c.aG}, {u}, 4, {c.aG}')
    k(f's_mul_i32 {t0}, {c.w}, {4 * 1088}')
    k(f'v_add_u32 {c.aYBw}, {t0}, {c.l16}')
    k(f's_mul_i32 {t0}, {c.w}, {YAW}')
    k(f'v_lshl_add_u32 {c.aYAw}, {c.l}, 2, {t0}')
    k(f'v_and_b32 {t}, 3, v0')
    k(f'v_mul_u32_u24 {t}, {YAI - 1}, {t}')
    k(f's_mov_b32 {t0}, {L_YA}')
    k(f'v_add3_u32 {c.aYAr}, {t}, v0, {t0}')
    v.put(t, u, xl)
    s.put(m, c.e14)


def q_prefetch(k, c):
    v = k.v
    a = v.get()
    c.qpf = v.get()
    k(f's_lshl_b32 {c.t0}, {c.j}, 2')
    k(f's_add_u32 {c.t0}, {c.t0}, {c.w}')
    k(f's_lshl_b32 {c.t0}, {c.t0}, 7')
    k(f's_add_u32 {c.t0}, {c.t0}, {c.x}')
    k(f's_lshl_b32 {c.t0}, {c.t0}, 7')
    k(f'v_lshl_add_u32 {a}, {c.n}, 10, {c.t0}')
    k('s_mov_b64 exec, 0xffff')
    k(f'global_load_dword {c.qpf}, {a}, {c.pq}')
    k('s_mov_b64 exec, -1')
    v.put(a)


def narrow_q(k, c, n):
    for cc in range(c.qdone, c.qdone + n):
        k(c.qld(cc))
    c.qdone += n


def p2_hstage(k, c, n0, n1):
    s, v = k.s, k.v
    H = c.H
    if n0 == n1:
        return
    P, sh = c.Pv, c.sh
    U = {n: v.get(4) for n in range(n0, n1)}
    k.waitfor(*H[n0:n1])
    for n in range(n0 + 1, min(n1 + 1, 4)):
        k(f'v_mov_b32_dpp {P[n]}, {H[n - 1][3]} wave_ror:1 row_mask:0xf bank_mask:0xf')
    for n in range(n0, n1):
        k(f'v_mov_b32_dpp {P[n]}, {H[n][3]} wave_shr:1 row_mask:0xf bank_mask:0xf' + (' bound_ctrl:0' if n == 0 else ''))
    for n in range(n0, n1):
        for m in (1, 2, 3):
            k(f'v_alignbit_b32 {U[n][m]}, {H[n][m]}, {H[n][m - 1]}, {sh}')
        k(f'v_alignbit_b32 {U[n][0]}, {H[n][0]}, {P[n]}, {sh}')
        k(f'ds_write_b128 {c.aHw}, {U[n]} offset:{64 + 1024 * n}')
    k(f's_cmp_eq_u32 {c.tau}, 1')
    lab = k.begin_skip('s_cbranch_scc1', 'noshift')
    for n in range(n0, n1 - 1):
        k(f'v_mov_b32_dpp {H[n][3]}, {U[n + 1][0]} wave_rol:1 row_mask:0xf bank_mask:0xf')
    for n in range(n0, n1):
        k(f'v_pk_mov_b32 {H[n][0:2]}, {U[n][0:2]}, {U[n][2:4]} op_sel:[1,0]')
        k(f'v_mov_b32 {H[n][2]}, {U[n][3]}')
    for n in range(n0, n1):
        k(f'v_mov_b32_dpp {H[n][3]}, {U[n][0]} wave_shl:1 row_mask:0xf bank_mask:0xf')
    k.end_skip(lab)
    k(f'ds_write_b32 {c.aHw}, {U[n0][0]} offset:{HC + 60 + 1024 * n0}')
    for n in range(n0, n1):
        k(f'ds_write_b128 {c.aHw}, {H[n]} offset:{HC + 64 + 1024 * n}')
    v.put(*U.values(), *H[n0:n1])
    if n1 == 4:
        v.put(P, c.aHw)


def p2_afrags(k, c, p, nfill):
    for r in range(16):
        a = R('a', 4 * (16 * p + r), 4)
        for h in range(2):
            k(f'ds_read_b64 {a[2 * h:2 * h + 2]}, {c.aHr} offset:{64 * (16 * p + r) + 8 * h}')
        if r % 4 == 3:
            fill(k, c, nfill)


def fill(k, c, n):
    while c.fill and n > 0:
        it = c.fill.pop(0)
        k.items.append(it)
        if it[0] == 'i':
            n -= 2 if it[1].is_trans else 1


def p2_xloads(k, c):
    s, v = k.s, k.v
    c.Ul = [v.get(4) for _ in range(4)]
    c.Zl = v.get(8)
    c.G = v.get(4)
    ul = lambda n: f'global_load_dwordx4 {c.Ul[n]}, {c.aUg[n >> 1]}, {c.pws} offset:{-4096 + 4096 * (n & 1)}{SC}'
    k(ul(0))
    k(ul(1))
    k('s_mov_b64 exec, 0xffff')
    k(f'global_load_dwordx4 {c.SP[0:4]}, {c.aSP[0]}, {c.pws}{SC}')
    k(f'global_load_dwordx4 {c.SP[4:8]}, {c.aSP[1]}, {c.pws}{SC}')
    k('s_mov_b64 exec, -1')
    k(f'buffer_load_dwordx4 {c.Zl[0:4]}, {c.aZ0}, {c.srdws}, 0 offen{SC}')
    k(f'buffer_load_dwordx4 {c.Zl[4:8]}, {c.aZ1}, {c.srdws}, 0 offen offset:1024{SC}')
    late = [ul(2), ul(3), f'global_load_dwordx4 {c.G}, {c.aG}, {c.pws}{SC}']
    n = c.o.get('xl', 2)
    for x in late[:n]:
        k(x)
    c.late = late[n:]
    v.put(c.aUg[0], c.aZ0, c.aZ1, c.aSP)


def page_jump(k, c):
    if c.o.get('page', True):
        lab = k.label('page')
        k(f's_branch {lab}')
        k.raw('.p2align 12')
        k.raw(f'{lab}:')


def p2_main(k, c):
    s, v = k.s, k.v
    o = c.o
    Zl, SP, Ul, G, qn, Ci = c.Zl, c.SP, c.Ul, c.G, c.qn, c.Ci
    uw = lambda n: f'ds_write_b128 {c.aUw}, {Ul[n]} offset:{L_U + 256 + 256 * n}'
    rd = lambda dst, q, r: f'ds_read_b128 {dst}, {c.aB} offset:{L_U + 16 + 256 * q + 16 * (15 - r)}'
    k(uw(0))
    k(uw(1))
    for x in c.late:
        k(x)
    v.put(c.aUg[1], c.aG)
    k('s_waitcnt lgkmcnt(0)')
    k('s_barrier')
    stamp(k, c, 'ubar')
    v.put(Ul[0], Ul[1])
    B0 = [v.get(4) for _ in range(16)]
    B1 = [v.get(4) for _ in range(16)]
    Di = [v.get(4) for _ in range(4)]
    acc = [v.get(4) for _ in range(2)]
    ya, ob = v.get(4), v.get(2)
    t = ya
    gq = c.Fa
    Bf = [Zl[0:4], Zl[4:8]]
    ring2 = [Ul[2], Ul[3], Zl[0:4], Zl[4:8]]
    ring3 = ring2 + Di[:o.get('r3', 2)]
    Y = Ci
    NPRE = o.get('npre', 6)
    for r in range(NPRE):
        k(rd(B0[r], 0, r))
    A = lambda p, r: R('a', 4 * (16 * p + r), 4)
    fr = [Zl[0:2], Zl[4:6], Zl[2:4], Zl[6:8]]
    mf = []
    seen = set()
    def add(cc, a, b, tag=None):
        d = acc[cc & 1]
        mf.append((cc, tag, f'v_mfma_f32_16x16x32_bf16 {d}, {a}, {b}, {d if cc in seen else 0}'))
        seen.add(cc)
    streams = []
    def addstream(cc, p, q, r, reg):
        streams.append((q, r, reg))
        add(cc, A(p, r), reg, ('s', len(streams) - 1))
        if r == 0 and p == 0:
            add(cc, c.AD, reg, ('s', len(streams) - 1))
    add(0, c.AD, B0[0])
    for r in range(16):
        add(0, A(0, r), B0[r])
    for r in range(16):
        add(1, A(1, r), B0[r])
    add(1, c.AD, B1[0])
    for r in range(16):
        add(1, A(0, r), B1[r])
    d2 = o.get('d2', 6)
    res2 = [(p, r) for r in range(16) for p in (2, 1)]
    for p, r in res2[:d2]:
        add(2, A(p, r), (B0 if p == 2 else B1)[r])
    res2 = res2[d2:]
    for r in range(16):
        for p, r_ in res2[2 * r:2 * r + 2]:
            add(2, A(p, r_), (B0 if p == 2 else B1)[r_])
        addstream(2, 0, 2, r, ring2[r % 4])
    n3 = len(ring3)
    order3 = ring3[4:] + ring3[:4]
    for r in range(16):
        add(3, A(3, r), B0[r])
        addstream(3, 1, 2, r, order3[(2 * r) % n3])
        add(3, A(2, r), B1[r])
        addstream(3, 0, 3, r, order3[(2 * r + 1) % n3])
    def epi(cc):
        e2 = [f'ds_read2st64_b32 {ya[0:2]}, {c.aYAr} offset0:{20 * cc} offset1:{20 * cc + 5}',
              f'ds_read2st64_b32 {ya[2:4]}, {c.aYAr} offset0:{20 * cc + 10} offset1:{20 * cc + 15}']
        e3 = [f'v_fma_f32 {ya[w]}, {gq[w]}, {ya[w]}, {Y[w][cc]}' for w in range(4)]
        e3 += [f'v_cvt_pk_bf16_f32 {ob[h]}, {ya[2 * h]}, {ya[2 * h + 1]}' for h in range(2)]
        e4 = [f'buffer_store_dwordx2 {ob}, {c.aO1}, {c.srdo}, {c.po[cc - 1] if cc else 0} offen{o.get("om", "")}']
        return e2, e3, e4

    def pre(cc):
        o1 = []
        for h in range(2):
            o1.append(f'v_lshlrev_b32 {gq[2 * h]}, 16, {qn[2 * cc + h]}')
            o1.append(f'v_and_b32 {gq[2 * h + 1]}, {c.mhi}, {qn[2 * cc + h]}')
        o1 += [f'v_mul_f32 {gq[w]}, {G[cc]}, {gq[w]}' for w in range(4)]
        o2 = [f'v_fma_f32 {Y[w][cc]}, -{G[cc]}, {Y[w][cc]}, {Y[w][cc]}' for w in range(4)]
        return o1, o2
    zs = o.get('zs', 12)
    sa = zs + 3
    npk = o.get('npk', 4)
    sta = []
    for jj in range(4):
        sta.append((-1, ('a', jj), f'v_mfma_f32_16x16x16_bf16 {Di[jj]}, {fr[jj]}, {c.Fai}, 0'))
        sta.append((-1, ('a', jj), f'v_mfma_f32_16x16x16_bf16 {Ci[jj]}, {fr[jj]}, {c.Far}, {Ci[jj]}'))
    mf[sa:sa] = sta
    base_mf = list(mf)
    Bf4 = [Zl[0:4], Zl[4:8], SP[0:4], SP[4:8]]
    sb = [sa + 12 + 3 * jj for jj in range(4)]
    yaw = lambda cc: [f'ds_write_b32 {c.aYAw}, {acc[cc & 1][i]} offset:{L_YA + YAP * cc + YAI * i}' + (f'@ya{cc}' if i == 3 else '')
                      for i in range(4)]
    while True:
        mf = list(base_mf)
        for jj in range(4):
            mf.insert(sb[jj], (-1, ('b', jj), f'v_mfma_f32_16x16x32_bf16 {Y[jj]}, {c.Fb}, {Bf4[jj]}, 0'))
        st = Stream([m[2] for m in mf])
        pos = lambda tag: [i for i, m in enumerate(mf) if m[1] == tag]
        last = {cc: max(i for i, m in enumerate(mf) if m[0] == cc) for cc in range(4)}
        g = st.place(0, [rd(B0[r], 0, r) for r in range(NPRE, 16)])
        g = st.place(g + 1, [rd(B1[r], 1, r) for r in range(16)])
        gw_ = 0
        for jj in range(4):
            gw_ = st.place(pos(('b', jj))[0] + 3, [f'ds_write_b128 {c.aYBw}, {Y[jj]} offset:{L_YB + 1088 * jj}' + ('@yb' if jj == 3 else '')])
        g0 = st.place(max(g + 1, last[0] + 4), yaw(0))
        lastw = 'yb' if gw_ > g0 else 'ya0'
        gb = st.barrier_after(max(gw_, g0) + 3, lastw)
        gy = st.place(gb, [f'ds_read_b128 {Y[w]}, {c.aYBr} offset:{L_YB + 4 * 1088 * w}' for w in range(4)])
        e2g = st.place(gy + 1, epi(0)[0])
        g = st.place(e2g + 1, [uw(2)])
        g = st.place(g + 1, [uw(3) + '@uw'])
        gu = st.barrier_after(g + 3, 'uw')
        prev_use = {}
        for si, (q, r, reg) in enumerate(streams):
            p_ = pos(('s', si))
            lo = prev_use.get(str(reg), None)
            if lo is None:
                lo = max(gu, p_[0] - 12)
                for jj in range(4):
                    if str(reg) in (str(Di[jj]), str(Bf4[jj])):
                        lo = max(lo, pos(('b', jj))[0])
            gg = st.place(lo, [rd(reg, q, r)])
            assert gg < p_[0] - 3, (si, gg, p_)
            prev_use[str(reg)] = p_[-1]
        if True:
            for n_, cc in enumerate(range(c.qdone, 4)):
                st.place(o.get('qg', [14, 40, 52])[n_], [c.qld(cc)])
        pre_a = [f'v_perm_b32 {SP[i]}, {SP[i]}, {SP[i]}, {c.psel}' for i in range(8)]
        pre_a += [f'v_fma_f32 {Ci[jj][0]}, {SP[4 + jj]}, {c.sgn}, {SP[jj]}' for jj in range(4)]
        assert st.place(zs - 12, pre_a) < zs
        st.place(zs, [f'v_swap_b32 {Zl[1]}, {Zl[4]}', f'v_swap_b32 {Zl[3]}, {Zl[6]}'], per_gap=1)
        gblk = sa + 7 + o.get('blkd', 1)
        g = gblk + 1
        ok = True
        for jj in range(4):
            a, b = Ci[jj], Di[jj]
            if jj < npk:
                st.blk[gblk] += [x[1].text for x in k.capture(cmul_tw, k, a, b, c.tw2c, c.tw2s, t)]
            else:
                tw = []
                for h in (0, 2):
                    for i in (h, h + 1):
                        tw.append(f'v_mul_f32 {t[i & 1]}, {b[i]}, {c.tw2s[i]}')
                        tw.append(f'v_mul_f32 {b[i]}, {b[i]}, {c.tw2c[i]}')
                    for i in (h, h + 1):
                        tw.append(f'v_fma_f32 {b[i]}, -{a[i]}, {c.tw2s[i]}, {b[i]}')
                        tw.append(f'v_fma_f32 {a[i]}, {a[i]}, {c.tw2c[i]}, {t[i & 1]}')
                g = st.place(g, tw)
            cv = [f'v_cvt_pk_bf16_f32 {Bf4[jj][2 + h]}, {b[2 * h]}, {b[2 * h + 1]}' for h in range(2)]
            cv += [f'v_cvt_pk_bf16_f32 {Bf4[jj][h]}, {a[2 * h]}, {a[2 * h + 1]}' for h in range(2)]
            g = st.place(g, cv)
            if not g < pos(('b', jj))[0] - 1:
                for j2 in range(jj, 4):
                    sb[j2] += 1
                ok = False
                break
        if ok:
            break
    sys.stderr.write(f'stage b at {sb}, yB barrier {gb}, u barrier {gu}\n')
    gt = g
    g1 = st.place(last[1] + 4, yaw(1))
    gb1 = st.barrier_after(g1 + 3, 'ya1')

    gp = g + 1
    gfree = max(gu, gt + 1)
    for cc in range(4):
        o1, o2 = pre(cc)
        gp = st.place(gp, o1)
        if cc == 0:
            e2, e3, e4 = epi(0)
            assert e2g > gt
            g = e2g
            gp = st.place(max(g + 4, gp), [f'v_mul_f32 {ya[w]}, {gq[w]}, {ya[w]}' for w in range(4)] + [f'v_sub_f32 {G[0]}, 1.0, {G[0]}'])
            g = st.place(max(gp, gy + 3), [f'v_fmac_f32 {ya[w]}, {G[0]}, {Y[w][0]}' for w in range(4)] + e3[4:])
            gfree = g + 1
            g = st.place(g + 1, e4)
            sys.stderr.write(f'store {cc} at gap {g} of {len(mf)}\n')
            gp += 1
            continue
        gp = st.place(max(gp, gy + 4), o2)
        if cc < 3:
            e2, e3, e4 = epi(cc)
            if cc == 1:
                gfree = max(gfree, gb1)
            if cc == 2:
                g2 = st.place(last[2] + 4, yaw(2))
                gfree = max(gfree, st.barrier_after(g2 + 3, 'ya2'))
            g = st.place(gfree, e2)
            g = st.place(max(g + 5, gp), e3)
            gfree = g + 1
            gp = g + 1
            g = st.place(g + 1, e4)
            sys.stderr.write(f'store {cc} at gap {g} of {len(mf)}\n')
    assert not st.tail
    for pat in c.drop:
        st.vec = [[x for x in g_ if not x.startswith(pat) or '@' in x] for g_ in st.vec]
        st.sca = [[x for x in g_ if not x.startswith(pat)] for g_ in st.sca]
    st.emit(k)
    stamp(k, c, 'conv')
    for x in yaw(3):
        k(x.split('@')[0])
    k('s_waitcnt lgkmcnt(0)')
    k('s_barrier')
    e2, e3, e4 = epi(3)
    for ins in e2 + e3 + e4:
        k(ins)


def sync_go(k, c):
    s, v = k.s, k.v
    k(f's_lshl2_add_u32 {c.t0}, {c.w}, s2')
    k(f's_cmp_ge_u32 {c.t0}, 4')
    lab = k.begin_skip('s_cbranch_scc1', 'nogo')
    a, o = v.get(), v.get()
    k(f's_lshl_b32 {c.t0}, s2, 6')
    k(f'v_lshl_add_u32 {a}, {c.n}, 2, {c.t0}')
    k(f'v_mov_b32 {o}, 1')
    k('s_mov_b64 exec, 0xffff')
    k(f'global_store_dword {a}, {o}, {c.pdbg}{SC} ; untracked')
    k('s_mov_b64 exec, -1')
    v.put(a, o)
    k.end_skip(lab)


def sync_pre(k, c):
    s, v = k.s, k.v
    c.go, c.ago, c.az, c.aat, c.apoll, c.one = (v.get() for _ in range(6))
    k(f'v_lshlrev_b32 {c.ago}, 6, {c.g}')
    k(f'global_load_dword {c.go}, {c.ago}, {c.pdbg}{SC}')
    k(f'v_mov_b32 {c.az}, 0')


def sync_addrs(k, c):
    s, v = k.s, k.v
    m = s.get(2)
    k(f's_and_b32 {c.t0}, {c.j if c.o.get("mix", 1) else "s2"}, {NL - 1}')
    k(f's_lshl_b32 {c.t0}, {c.t0}, 7')
    k(f's_add_u32 {c.t0}, {c.t0}, {COFF}')
    k(f'v_cmp_gt_u32 {m}, {c.nrep}, v0')
    k(f'v_lshl_add_u32 {c.aat}, v0, 11, {c.t0}')
    k(f's_and_b32 {c.t0}, {c.x}, {c.nrep - 1}')
    k(f's_lshl_b32 {c.t0}, {c.t0}, 11')
    k(f's_add_u32 {c.t0}, {c.t0}, {COFF}')
    k(f'v_cndmask_b32 {c.aat}, 2.0, {c.aat}, {m}')
    k(f'v_lshl_add_u32 {c.apoll}, {c.n}, 7, {c.t0}')
    k(f'v_mov_b32 {c.one}, 1')
    s.put(m)


def sync_arrive(k, c):
    s, v = k.s, k.v
    if c.stamps and 'sack' in c.stamps:
        k.waitfor(vm='stores')
        stamp(k, c, 'sack')
    k.waitfor(c.go, vm='stores')
    stamp(k, c, 'ack')
    k(f'v_cmp_eq_u32 vcc, 0, {c.go}')
    k(f's_mov_b32 {c.t1}, 0')
    lab = k.begin_skip('s_cbranch_vccz', 'gook')
    lp = k.loop_label('gospin')
    k(f'global_load_dword {c.go}, {c.ago}, {c.pdbg}{SC}')
    k(f's_add_u32 {c.t1}, {c.t1}, 1')
    k(f's_lshr_b32 {c.t2}, {c.t1}, 20')
    k('s_waitcnt vmcnt(0)')
    k(f'v_or_b32 {c.go}, {c.t2}, {c.go}')
    k(f'v_cmp_eq_u32 vcc, 0, {c.go}')
    k(f's_cbranch_vccnz {lp}')
    k.end_skip(lab)
    k('s_barrier')
    k(f'buffer_atomic_add {c.one}, {c.aat}, {c.srdws}, 0 offen{SC}')
    v.put(c.az, c.ago, c.aat, c.one)


def sync_poll(k, c):
    k(f's_cmp_lg_u32 {c.w}, 0')
    lab = k.begin_skip('s_cbranch_scc1', 'nopoll0')
    k('s_mov_b64 exec, 0xffff')
    k(f'global_load_dword {c.go}, {c.apoll}, {c.pws}{SC} ; untracked')
    k('s_mov_b64 exec, -1')
    k.end_skip(lab)


def sync_wait(k, c):
    s, v = k.s, k.v
    d = c.go
    k(f's_cmp_lg_u32 {c.w}, 0')
    lab0 = k.begin_skip('s_cbranch_scc1', 'nopoll')
    k('s_mov_b64 exec, 0xffff')
    k(f's_mov_b32 {c.t1}, 0')
    k(f's_mov_b32 {c.t2}, {256 // NL}')
    lp = k.loop_label('poll')
    k('s_waitcnt vmcnt(0)')
    k(f'v_cmp_gt_u32 vcc, {c.t2}, {d}')
    k('s_nop 1')
    k('s_and_b64 exec, exec, vcc')
    lab = k.begin_skip('s_cbranch_scc0', 'done')
    k(f'global_load_dword {d}, {c.apoll}, {c.pws}{SC} ; untracked')
    k(f's_add_u32 {c.t1}, {c.t1}, 1')
    k(f's_cmp_lt_u32 {c.t1}, 0x100000')
    k(f's_cselect_b32 {c.t2}, {256 // NL}, 0')
    k(f's_branch {lp}')
    k.end_skip(lab)
    k('s_mov_b64 exec, -1')
    k.end_skip(lab0)
    k('s_barrier')
    v.put(c.apoll, d)


def kern(opts):
    k = Kern(NAME + '_kernel')
    c = Ctx()
    c.stamps = opts.get('stamps', None)
    c.stretch = opts.get('stretch', None)
    c.clk = 's_memtime' if opts.get('cyc') else 's_memrealtime'
    c.drop = opts.get('drop', [])
    c.o = opts
    c.ne = opts.get('ne', 2)
    c.nrep = NREP
    c.zlate = opts.get('zlate', 1)
    setup(k, c)
    c.mhi = k.s.get()
    k.hold()
    C = k.capture(load_addrs, k, c) + k.capture(consts_b, k, c) + k.capture(x_addrs, k, c)
    C += k.capture(store_addrs, k, c) + k.capture(consts_a, k, c)
    npre, d0 = opts.get('npre0', 40), opts.get('delay', 70)
    k.items += C[:npre]
    first_loads(k, c)
    hp = opts.get('hpos', 'end')
    Lh = [('i', I(x)) for x in c.Lh]
    if hp == 'q':
        hd = opts.get('hd', 20)
        k.items += C[npre:npre + hd]
        k.interleave(C[npre + hd:npre + d0], Lh, opts.get('hev', 8))
    else:
        k.items += C[npre:npre + d0]
    stamp(k, c, 'd0')
    if hp == 'k':
        c.loads = Lh + c.loads
    if hp == 'v':
        c.loads = c.loads[:12] + Lh + c.loads[12:]
    if hp == 'e':
        c.loads = c.loads + Lh
    k.interleave(C[npre + d0:], c.loads, opts.get('every', 2))
    k(f's_mov_b32 {c.mhi}, 0xffff0000')
    if hp == 'end':
        k.items += Lh
    k.release()
    k.s.put(c.srdk)
    stamp(k, c, 'ca')
    if opts.get('j1'):
        page_jump(k, c)
    p1_dft(k, c)
    stamp(k, c, 'dft1')
    p1_kv(k, c)
    stamp(k, c, 'kv')
    stamp(k, c, 'p_ack', 's_waitcnt vmcnt(0)')
    sync_pre(k, c)
    c.Pv = k.v.get(4, 1)
    c.sh = k.s.get()
    k(f's_lshl_b32 {c.sh}, {c.tau}, 4')
    k(f's_xor_b32 {c.sh}, {c.sh}, 16')
    p2_hpre(k, c)
    sv = c.t0, c.t1
    c.t0, c.t1 = k.s.get(), k.s.get()
    k.hold()
    c.fill = k.capture(sync_addrs, k, c) + k.capture(out_addrs, k, c)
    nfirst = len(c.fill)
    c.fill += k.capture(p2_addrs, k, c) + k.capture(p2_consts, k, c) + k.capture(p2_dfrag, k, c)
    ntot = len(c.fill)
    heldv, helds = k.v.held, k.s.held
    k.v.held = k.s.held = None
    c.t0, c.t1 = sv
    prog = opts.get('prog', 'hL0aP1qFqHp23w')
    for ch in prog:
        if ch in 'aq':
            while ntot - len(c.fill) < nfirst:
                fill(k, c, 1)
        if ch == 'h':
            p2_hstage(k, c, 0, c.ne)
        elif ch == 'H':
            p2_hstage(k, c, c.ne, 4)
        elif ch == 'L':
            for x in c.Lh2:
                k(x)
        elif ch.isdigit():
            p2_afrags(k, c, int(ch), opts.get('nfill', 8))
        elif ch == 'f':
            fill(k, c, 16)
        elif ch == 'F':
            fill(k, c, 10000)
        elif ch == 'a':
            stamp(k, c, 'shadow')
            sync_arrive(k, c)
            stamp(k, c, 'arr')
        elif ch == 'P':
            q_prefetch(k, c)
        elif ch == 'q':
            narrow_q(k, c, 1)
        elif ch == 'p':
            sync_poll(k, c)
        elif ch == 'w':
            fill(k, c, 10000)
            stamp(k, c, 'af')
            sync_wait(k, c)
            stamp(k, c, 'sync')
            p2_xloads(k, c)
    k.v.put(*heldv, c.ah, c.aHr)
    k.s.put(*helds)
    if hasattr(c, 'qpf'):
        k.v.put(c.qpf)
    k.v.put(c.l, c.l16, c.n, c.g)
    if opts.get('j2', 1):
        page_jump(k, c)
    stamp(k, c, 'xiss')
    stamp(k, c, 'p_x', 's_waitcnt vmcnt(0)')
    p2_main(k, c)
    stamp(k, c, 'epi')
    stamp(k, c, 'end', 's_waitcnt vmcnt(0)')
    stamps_out(k, c)
    k.raw(f'{c.end}:')
    k('s_endpgm')
    return k


HEADER = open('cdna_kernels/%s.s.ref' % NAME).read().split('; Override launch')[0]


def build(opts):
    k = kern(opts)
    body = k.finalize()
    sys.stderr.write(f'{k.stats} vhi={k.v.hi_water} shi={k.s.hi_water}\n')
    out = [HEADER.rstrip('\n'), f'; @launch grid=(256,1,1) block=(256,1,1) lds={LDS_BYTES}',
           '.amdgcn_target "amdgcn-amd-amdhsa--gfx950"', '.text',
           *(['.p2align 12', f'.fill {(4096 - 768 + opts.get("entry", 0)) % 4096 // 4}, 4, 0xbf800000'] if opts.get('page', True) else []),
           f'.globl {k.name}', '.p2align 8', f'.type {k.name},@function', f'{k.name}:', body,
           '.section .rodata,"a"', '.p2align 6', f'.amdhsa_kernel {k.name}',
           '  .amdhsa_next_free_vgpr 512', '  .amdhsa_next_free_sgpr 102', '  .amdhsa_accum_offset 256',
           '  .amdhsa_group_segment_fixed_size 0', '  .amdhsa_kernarg_size 120', '  .amdhsa_user_sgpr_count 2',
           '  .amdhsa_user_sgpr_kernarg_segment_ptr 1', '  .amdhsa_system_sgpr_workgroup_id_x 1',
           '  .amdhsa_float_denorm_mode_32 3', '.end_amdhsa_kernel']
    return '\n'.join(out) + '\n'


if __name__ == '__main__':
    opts = {}
    for a in sys.argv[2:]:
        kk, vv = a.split('=', 1)
        opts[kk] = eval(vv)
    open(sys.argv[1], 'w').write(build(opts))
```

```python
import sys, struct
from asmgen import Kern, R, I

NAME = 'gated_mix__ssm_conv_h3__spectral_fnet__prompt'
UOFF, ZOFF, QOFF, GOFF, COFF, SOFF = 0, 2 << 20, 4 << 20, 6 << 20, (6 << 20) + 65536, 8 << 20
STM = ' sc1'
L_X = 0
L_H = 10240
HC = 4224
HS = 2 * HC
PS, WS = 1280, 5152
L_Z = 1024
L_U = 10240
L_YB = L_U + 4 * WS
L_YA = L_YB + 16 * 1088
YAP, YAW, YAI = 5120, 1280, 288
L_G = L_YA + 4 * YAP
L_H = L_G + 2048
LDS_BYTES = L_H + 4 * HS
NREP = 8
NL = 16
SC = ' sc1'


def fl(x):
    return '0x%08x' % struct.unpack('<I', struct.pack('<f', x))[0]


class Ctx:
    pass


def stamp(k, c, name, pre=None):
    if c.stamps and name in c.stamps:
        if pre:
            k(pre)
        i = c.stamps.index(name)
        k(f'{c.clk} {c.st[2 * i:2 * i + 2]}')
        k('s_waitcnt lgkmcnt(0)')


def stamps_out(k, c):
    if not c.stamps:
        return
    if c.stretch is not None:
        k(f's_memrealtime {c.st[22:24]}')
        k(f's_sub_u32 {c.t0}, {c.st[2]}, {c.st[0]}')
        k(f's_mul_i32 {c.t0}, {c.t0}, {c.stretch}')
        k(f's_min_u32 {c.t0}, {c.t0}, 100000')
        k('s_waitcnt lgkmcnt(0)')
        k(f's_mov_b32 {c.t1}, {c.st[22]}')
        lp = k.loop_label('stretch')
        k(f's_memrealtime {c.st[22:24]}')
        k('s_waitcnt lgkmcnt(0)')
        k(f's_sub_u32 {c.t2}, {c.st[22]}, {c.t1}')
        k(f's_cmp_lt_u32 {c.t2}, {c.t0}')
        k(f's_cbranch_scc1 {lp}')
        return
    t = k.v.get(2)
    a = k.v.get()
    k(f's_lshl_b32 {c.t0}, s2, 2')
    k(f's_add_u32 {c.t0}, {c.t0}, {c.w}')
    k(f's_lshl_b32 {c.t0}, {c.t0}, 7')
    k(f's_add_u32 {c.t0}, {c.t0}, {SOFF}')
    k(f'v_mov_b32 {a}, {c.t0}')
    for i in range(len(c.stamps)):
        k(f'v_mov_b32 {t[0]}, {c.st[2 * i]}')
        k(f'v_mov_b32 {t[1]}, {c.st[2 * i + 1]}')
        k(f'global_store_dwordx2 {a}, {t}, {c.pws} offset:{8 * i}')
    k.v.put(t, a)


def sincos(k, base, step, mults, cs, sn, negsin=False):
    for i, m in enumerate(mults):
        if m and mults[i - 1] == m - 1:
            k(f'v_add_f32 {sn[i]}, {step}, {sn[i - 1] if mults[i - 1] else base}')
        elif m:
            k(f'v_fmamk_f32 {sn[i]}, {step}, {fl(m)}, {base}')
    for i, m in enumerate(mults):
        src = base if m == 0 else sn[i]
        k(f'v_cos_f32 {cs[i]}, {src}')
        k(f'v_sin_f32 {sn[i]}, {"-" if negsin else ""}{src}')


def cmul_tw(k, a, b, cc, ss, t):
    for h in (0, 2):
        k(f'v_pk_mul_f32 {t[h:h + 2]}, {b[h:h + 2]}, {ss[h:h + 2]}')
        k(f'v_pk_mul_f32 {b[h:h + 2]}, {b[h:h + 2]}, {cc[h:h + 2]}')
    for h in (0, 2):
        k(f'v_pk_fma_f32 {b[h:h + 2]}, {a[h:h + 2]}, {ss[h:h + 2]}, {b[h:h + 2]} neg_lo:[1,0,0] neg_hi:[1,0,0]')
        k(f'v_pk_fma_f32 {a[h:h + 2]}, {a[h:h + 2]}, {cc[h:h + 2]}, {t[h:h + 2]}')


WIDE = ('ds_write_b128', 'v_exp', 'v_rcp')


class Stream:
    def __init__(self, mfmas):
        self.m = list(mfmas)
        n = len(self.m)
        self.vec = [[] for _ in range(n)]
        self.sca = [[] for _ in range(n)]
        self.lgw = [None] * n
        self.vmw = [None] * n
        self.tail = []
        self.nods = set()
        self.blk = [[] for _ in range(n)]

    def place(self, g, instrs, per_gap=2):
        last = g
        used = 0
        for ins in instrs:
            while g < len(self.m):
                mem = ins.startswith(('ds_', 'global_', 'buffer_'))
                ok = len(self.vec[g]) < 2 and used < per_gap
                if ok and mem and used and not self.vec[g][-1].startswith(('ds_', 'global_', 'buffer_')):
                    ok = False
                if ok and mem and any(x.startswith('ds_') for x in self.vec[g]) and ins.startswith('ds_'):
                    ok = False
                if ok and ins.startswith('ds_') and g in self.nods:
                    ok = False
                if ok and ins.startswith('ds_write_b128') and (self.vec[g] or any(
                        x.startswith('ds_') for gg in (g + 1, g + 2) if gg < len(self.m) for x in self.vec[gg])):
                    ok = False
                if ok and (ins.startswith(WIDE) and self.vec[g] or any(x.startswith(WIDE) for x in self.vec[g])):
                    ok = False
                if ok:
                    break
                g += 1
                used = 0
            if g >= len(self.m):
                self.tail.append(ins)
                last = len(self.m)
                continue
            self.vec[g].append(ins)
            if ins.startswith('ds_write_b128'):
                self.nods |= {g + 1, g + 2}
            used += 1
            last = g
        return last

    def scalar(self, g, ins):
        self.sca[g].append(ins)

    def barrier_after(self, g, mark):
        self.lgw[g] = mark
        self.sca[g + 1].append('s_barrier')
        return g + 1

    def emit(self, k):
        isa = lambda x: x.split('@')[0]
        for i, m in enumerate(self.m):
            k(m)
            mem = [x for x in self.vec[i] if x.startswith(('ds_', 'global_', 'buffer_'))]
            alu = [x for x in self.vec[i] if x not in mem]
            look = [isa(x) for x in self.vec[i]]
            if i + 1 < len(self.m):
                look.append(self.m[i + 1])
                if self.sca[i + 1]:
                    look += [isa(x) for x in self.vec[i + 1]]
                    if i + 2 < len(self.m):
                        look.append(self.m[i + 2])
            k.waitfor(*look, lg=self.lgw[i], vm=self.vmw[i])
            for x in self.sca[i]:
                k(x)
            for x in mem + alu:
                k(isa(x))
                if '@' in x:
                    k.mark(x.split('@')[1])
            for x in self.blk[i]:
                if x.startswith('RAW '):
                    k.raw(x[4:])
                else:
                    k(x)
        for x in self.tail:
            k(isa(x))
            if '@' in x:
                k.mark(x.split('@')[1])


def setup(k, c):
    s, v = k.s, k.v
    c.end = k.label('end')
    k('s_cmp_ge_u32 s2, 256')
    k(f's_cbranch_scc1 {c.end}')
    a0 = s.get(8, 4); a1 = s.get(4, 4); a2 = s.get(8, 4)
    k(f's_load_dwordx8 {a0}, s[0:1], 0')
    k(f's_load_dwordx8 {a2}, s[0:1], 88')
    k(f's_load_dwordx4 {a1}, s[0:1], 32')
    c.pq, c.pk, c.pv, c.psk = a0[0:2], a0[2:4], a0[4:6], a0[6:8]
    c.ph, c.pD = a1[0:2], a1[2:4]
    c.pgw, c.pout, c.pdbg, c.pws = a2[0:2], a2[2:4], a2[4:6], a2[6:8]
    if c.stamps:
        c.st = s.get(24, 4)
        if 'start' in c.stamps:
            i = c.stamps.index('start')
            k(f'{c.clk} {c.st[2 * i:2 * i + 2]}')
    pc = s.get(2)
    c.dummy, a = v.get(), v.get()
    k(f's_getpc_b64 {pc}')
    here = k.label('pc')
    k.raw(f'{here}:')
    k(f's_lshl_b32 s3, s2, 9')
    k(f's_and_b32 s3, s3, 0x3000')
    k(f'v_lshl_add_u32 {a}, v0, 4, s3')
    k(f'v_min_u32 {a}, {c.end}-{here}, {a}')
    k(f'global_load_dword {c.dummy}, {a}, {pc}')
    s.put(pc)
    v.put(a)
    c.x, c.j, c.w, c.t0, c.t1, c.t2, c.s0, c.iA, c.E, c.tau = (s.get() for _ in range(10))
    c.l, c.l16, c.n, c.g = (v.get() for _ in range(4))
    t0, t1 = c.t0, c.t1
    k(f'v_lshrrev_b32 {c.l}, 6, v0')
    k(f's_and_b32 {c.x}, s2, 7')
    k(f'v_readfirstlane_b32 {c.w}, {c.l}')
    k(f's_bfe_u32 {t1}, s2, 0x40003')
    k(f'v_and_b32 {c.l}, 63, v0')
    k(f'v_lshlrev_b32 {c.l16}, 4, {c.l}')
    k(f's_lshl4_add_u32 {t0}, {c.x}, {t1}')
    k(f's_sub_u32 {t1}, 256, {t0}')
    k(f's_cmp_eq_u32 {t0}, 0')
    k(f's_cselect_b32 {t1}, 128, {t1}')
    k(f's_cmp_lt_u32 s2, 128')
    k(f's_cselect_b32 {c.s0}, {t0}, {t1}')
    k(f's_and_b32 {t0}, {c.w}, 2')
    k(f's_add_u32 {c.iA}, {c.w}, {t0}')
    k(f's_lshl_b32 {t0}, {c.iA}, 8')
    k(f's_add_u32 {t0}, {t0}, {c.s0}')
    k(f's_lshl_b32 {t0}, {t0}, 10')
    c.aq = aq = v.get(4, 1)
    k(f'v_add_u32 {aq[0]}, {t0}, {c.l16}')
    k(f's_sub_u32 {t1}, {2048 * 1024 + 1008}, {t0}')
    k(f's_bitset0_b32 {t1}, 21')
    k(f'v_sub_u32 {aq[1]}, {t1}, {c.l16}')
    k(f'v_add_u32 {aq[2]}, {512 * 1024}, {aq[0]}')
    k(f'v_sub_u32 {aq[3]}, {1536 * 1024 + 1008}, {aq[0]}')
    c.qd = [v.get(4), v.get(4)]
    c.qm = [v.get(4), v.get(4)]
    c.K, c.V = v.get(11, 1), v.get(8, 1)
    c.gw, c.skw = v.get(4), v.get(4)
    c.H = [v.get(4) for _ in range(4)]
    c.Dv = v.get()
    c.srdk, c.srdws = s.get(4, 4), s.get(4, 4)


def load_addrs(k, c):
    s, v = k.s, k.v
    t0, t1 = c.t0, c.t1
    c.P, c.cb, akv, akh, ask, c.ah, aD = (v.get() for _ in range(7))
    k(f's_lshr_b32 {c.j}, s2, 3')
    k(f'v_and_b32 {c.n}, 15, v0')
    k(f'v_lshrrev_b32 {c.g}, 4, {c.l}')
    k(f'v_and_b32 {c.P}, 31, v0')
    k(f'v_lshrrev_b32 {c.cb}, 5, {c.l}')
    k(f's_lshl3_add_u32 {t0}, {c.j}, {c.w}')
    k(f's_lshl4_add_u32 {t0}, {t0}, 8')
    k(f's_lshl2_add_u32 {t0}, {t0}, {c.x}')
    k(f's_lshl_b32 {t0}, {t0}, 7')
    k(f'v_lshl_add_u32 {akv}, {c.cb}, 15, {t0}')
    k(f'v_lshl_add_u32 {akv}, {c.P}, 2, {akv}')
    k(f'v_subrev_u32 {akh}, 7168, {akv}')
    k(f's_mov_b32 {c.srdk[2]}, {2 << 20}')
    k(f's_mov_b32 {c.srdk[3]}, 0x00020000')
    k(f's_mov_b32 {c.srdws[2]}, {1 << 28}')
    k(f's_mov_b32 {c.srdws[3]}, 0x00020000')
    k(f's_lshr_b32 {t0}, s2, 4')
    k(f's_lshl4_add_u32 {c.E}, {c.x}, {t0}')
    k(f's_and_b32 {c.tau}, {c.j}, 1')
    k(f's_lshl_b32 {t1}, {c.x}, 9')
    k(f'v_lshl_add_u32 {ask}, {c.P}, 4, {t1}')
    k(f's_lshl2_add_u32 {t0}, {c.E}, {c.w}')
    k(f's_lshl_b32 {t1}, {t0}, 12')
    k(f'v_add_u32 {c.ah}, {t1}, {c.l16}')
    k(f'v_lshrrev_b32 {aD}, 11, {c.ah}')
    c.Lq = []
    if c.qx:
        ap = v.get(2, 1)
        c.qp = [v.get(4), v.get(4)]
        k(f'v_and_b32 {ap[0]}, 1, {c.g}')
        k(f'v_lshl_add_u32 {ap[0]}, {ap[0]}, 2, {c.cb}')
        k(f's_lshl3_add_u32 {t0}, {c.s0}, {c.w}')
        k(f's_lshl_b32 {t0}, {t0}, 7')
        k(f'v_lshl_add_u32 {ap[0]}, {ap[0]}, 18, {t0}')
        k(f'v_lshl_add_u32 {ap[0]}, {c.n}, 3, {ap[0]}')
        k(f'v_add_u32 {ap[1]}, {512 * 1024}, {ap[0]}')
        c.Lq = [f'global_load_dwordx2 {c.qp[eh][2 * r:2 * r + 2]}, {ap[r]}, {c.pq} offset:{512 * eh}' for eh in range(2) for r in range(2)]
        v.put(ap)
    L = [f'buffer_load_dword {c.K[t]}, {akh}, {c.srdk}, 0 offen offset:{1024 * t}' for t in range(3)]
    L += [f'global_load_dword {c.K[3 + t]}, {akv}, {c.pk} offset:{1024 * (t - 4)}' for t in range(8)]
    L += [f'global_load_dwordx4 {c.skw}, {ask}, {c.psk}']
    L += [f'global_load_dword {c.V[t]}, {akv}, {c.pv} offset:{1024 * (t - 4)}' for t in range(8)]
    Lh = [f'global_load_dwordx4 {c.H[n]}, {c.ah}, {c.ph} offset:{1024 * n}' for n in range(4)]
    c.Lh, c.Lh2 = Lh[:c.ne] + [f'global_load_ushort {c.Dv}, {aD}, {c.pD}'], Lh[c.ne:]
    c.loads = [('i', I(x)) for x in L]
    v.put(akv, akh, ask, aD)


def first_loads(k, c):
    s, v = k.s, k.v
    aq = c.aq
    k('s_waitcnt lgkmcnt(0)')
    stamp(k, c, 'karg')
    k(f'global_load_dwordx4 {c.qd[0]}, {aq[0]}, {c.pq}')
    k(f's_mov_b32 {c.srdk[0]}, {c.pk[0]}')
    k(f'global_load_dwordx4 {c.qm[0]}, {aq[1]}, {c.pq}')
    k(f's_and_b32 {c.srdk[1]}, {c.pk[1]}, 0xffff')
    k(f'global_load_dwordx4 {c.qd[1]}, {aq[2]}, {c.pq}')
    k(f's_mov_b32 {c.srdws[0]}, {c.pws[0]}')
    k(f'global_load_dwordx4 {c.qm[1]}, {aq[3]}, {c.pq}')
    k(f's_and_b32 {c.srdws[1]}, {c.pws[1]}, 0xffff')
    k('s_cmp_ge_u32 s2, 4')
    lab = k.begin_skip('s_cbranch_scc1', 'noclear')
    z4 = c.H[3]
    k(f's_lshl_b32 s3, s2, 12')
    k(f's_add_u32 s3, s3, {COFF}')
    k(f'v_lshl_add_u32 {aq[0]}, v0, 4, s3')
    k(f'v_pk_mov_b32 {z4[0:2]}, 0, 0')
    k(f'v_pk_mov_b32 {z4[2:4]}, 0, 0')
    k(f'global_store_dwordx4 {aq[0]}, {z4}, {c.pws}{SC} ; untracked')
    k.end_skip(lab)
    k(f'global_load_dwordx4 {c.gw}, {c.l16}, {c.pgw}')
    v.put(aq)


def line_prefetch(k, c):
    s, v = k.s, k.v
    mode = c.o.get('pf')
    b, o, sh = s.get(2), s.get(), s.get()
    c.pfd = v.get()
    if mode == 'h':
        k(f's_lshl1_add_u32 {o}, {c.E}, {c.tau}')
        k(f's_lshl2_add_u32 {o}, {o}, {c.w}')
        k(f's_lshl_b32 {o}, {o}, 11')
        k(f'v_lshl_add_u32 {c.pfd}, {c.l}, 5, {o}')
        k(f'global_load_dword {c.pfd}, {c.pfd}, {c.ph}')
    else:
        k(f's_lshl_b32 {o}, {c.j}, 9')
        k(f's_add_u32 {o}, {o}, {c.x}')
        k(f's_lshl_b32 {o}, {o}, 7')
        k(f's_lshl1_add_u32 {sh}, {c.E}, {c.tau}')
        k(f's_lshl1_add_u32 {sh}, {sh}, {c.w}')
        k(f's_sub_u32 {sh}, {sh}, 2')
        k(f's_lshl_b32 {sh}, {sh}, 12')
        k(f's_cmp_eq_u32 {c.w}, 0')
        k(f's_cselect_b64 {b}, {c.pk}, {c.pv}')
        k(f's_cmp_lt_u32 {c.w}, 2')
        k(f's_cselect_b64 {b}, {b}, {c.ph}')
        k(f's_cselect_b32 {o}, {o}, {sh}')
        k(f's_cselect_b32 {sh}, 10, 6')
        k(f'v_lshlrev_b32 {c.pfd}, {sh}, {c.l}')
        k(f'v_add_u32 {c.pfd}, {o}, {c.pfd}')
        k(f'global_load_dword {c.pfd}, {c.pfd}, {b}')
    s.put(b, o, sh)


def consts_b(k, c):
    s, v = k.s, k.v
    base, step, t = v.get(), v.get(), v.get()
    cs, sn = v.get(8), v.get(8)
    c.sg = s.get()
    c.CBc = [v.get(4), v.get(4)]
    c.CBs = [v.get(4)]
    c.CBn = [v.get(4)]
    c.a2, c.gea = v.get(), v.get()
    k(f'v_mul_u32_u24 {base}, {c.g}, {c.n}')
    k(f'v_cvt_f32_u32 {step}, {c.n}')
    k(f'v_cvt_f32_u32 {base}, {base}')
    k(f'v_mul_f32 {step}, {fl(1 / 32)}, {step}')
    k(f'v_mul_f32 {base}, {fl(1 / 8)}, {base}')
    k(f's_mov_b32 {c.sg}, 0x80008000')
    sincos(k, base, step, [0, 1, 2, 3], cs, sn)
    k(f'v_bfe_i32 {t}, v0, 0, 1')
    k(f'v_and_b32 {t}, {c.sg}, {t}')
    for m in range(2):
        k(f'v_cvt_pk_bf16_f32 {c.CBc[0][m]}, {cs[2 * m]}, {cs[2 * m + 1]}')
        k(f'v_cvt_pk_bf16_f32 {c.CBs[0][m]}, {sn[2 * m]}, {sn[2 * m + 1]}')
    for m in range(2):
        k(f'v_xor_b32 {c.CBc[0][2 + m]}, {t}, {c.CBc[0][m]}')
        k(f'v_xor_b32 {c.CBs[0][2 + m]}, {t}, {c.CBs[0][m]}')
    k(f'v_lshrrev_b32 {c.a2}, 2, {c.n}')
    k(f'v_lshl_add_u32 {t}, {c.w}, 2, {c.a2}')
    k(f'v_mul_u32_u24 {c.gea}, {c.g}, {t}')
    k(f'v_cvt_f32_u32 {step}, {t}')
    k(f'v_cvt_f32_u32 {base}, {c.gea}')
    k(f'v_mul_f32 {step}, {fl(1 / 512)}, {step}')
    k(f'v_mul_f32 {base}, {fl(1 / 128)}, {base}')
    sincos(k, base, step, [0, 1, 2, 3, 16, 17, 18, 19], cs, sn)
    c.tw1c, c.tw1s = cs, sn
    c.cbx = []
    for m in range(4):
        c.cbx.append(f'v_xor_b32 {c.CBn[0][m]}, {c.sg}, {c.CBs[0][m]}')
    c.cbx.append(f'v_mov_b32 {c.CBc[1][0]}, 0xbf803f80')
    c.cbx += [f'v_mov_b32 {c.CBc[1][m]}, {c.CBc[1][0]}' for m in range(1, 4)]
    c.cbx_s = [c.sg]
    n = c.o.get('cbx', 8)
    for x in c.cbx[n:]:
        k(x)
    c.cbx = c.cbx[:n]
    v.put(base, step, t)


def x_addrs(k, c):
    s, v = k.s, k.v
    t0, t1 = c.t0, c.t1
    t, u = v.get(), v.get()
    c.aXw, c.aXr, c.aGw, c.aGr = (v.get() for _ in range(4))
    k(f's_and_b32 {t1}, {c.w}, 1')
    k(f's_mul_i32 {t0}, {c.iA}, 40')
    k(f's_add_u32 {t0}, {t0}, {t1}')
    k(f'v_lshl_add_u32 {c.aXw}, {t0}, 5, {c.l16}')
    k(f'v_bfe_u32 {t}, v0, 2, 2')
    k(f'v_and_b32 {u}, 8, v0')
    k(f'v_mul_u32_u24 {c.aXr}, {1280 + 32}, {t}')
    k(f'v_and_or_b32 {u}, v0, 3, {u}')
    k(f'v_lshl_add_u32 {u}, {c.g}, 3, {u}')
    k(f'v_lshl_add_u32 {c.aXr}, {u}, 3, {c.aXr}')
    k(f's_lshr_b32 {t0}, {c.w}, 1')
    k(f's_lshl1_add_u32 {t0}, {t1}, {t0}')
    k(f's_lshl_b32 {t0}, {t0}, 9')
    k(f's_add_u32 {t0}, {t0}, {L_G}')
    k(f'v_lshl_add_u32 {c.aGw}, {c.l}, 2, {t0}')
    k(f's_mov_b32 {t1}, {L_G}')
    k(f'v_lshl_add_u32 {c.aGr}, {c.l}, 5, {t1}')
    v.put(t, u)


def store_addrs(k, c):
    s, v = k.s, k.v
    t0, t1 = c.t0, c.t1
    t = v.get()
    c.aZ, c.aU, c.aGs = v.get(2, 1), v.get(), v.get()
    m = s.get(2)
    k(f's_lshl4_add_u32 {t0}, {c.w}, {ZOFF >> 10}')
    k(f's_lshl4_add_u32 {t0}, {t0}, {c.s0}')
    k(f's_lshl_b32 {t0}, {t0}, 6')
    k(f'v_lshl_add_u32 {t}, {c.g}, 4, {t0}')
    k(f'v_lshl_add_u32 {c.aZ[0]}, {c.n}, 16, {t}')
    k(f'v_and_b32 {c.aU}, 0xcf, v0')
    k(f'v_cmp_eq_u32 {m}, 0, {c.aU}')
    k(f'v_add_u32 {t}, {1 << 20}, {t}')
    k(f's_and_b32 {t0}, {c.s0}, 1')
    k(f'v_cndmask_b32 {c.aZ[1]}, 2.0, {t}, {m}')
    k(f's_mul_i32 {t0}, {t0}, 255')
    k(f's_add_u32 {t0}, {t0}, {c.s0}')
    if c.qx:
        c.aQ = v.get(2, 1)
        k(f's_lshl_b32 {t1}, {c.w}, 13')
        k(f's_add_u32 {t1}, {t1}, {t0}')
        k(f's_lshl_b32 {t1}, {t1}, 5')
        k(f's_add_u32 {t1}, {t1}, {QOFF}')
        k(f'v_lshl_add_u32 {t}, {c.g}, 4, {t1}')
        k(f'v_lshl_add_u32 {c.aQ[0]}, {c.n}, 14, {t}')
        k(f'v_add_u32 {c.aQ[1]}, {1 << 20}, {c.aQ[0]}')
    k(f's_lshl4_add_u32 {t0}, {t0}, {GOFF >> 1}')
    k(f'v_and_b32 {t}, 0xc6, v0')
    k(f'v_cmp_eq_u32 {m}, 0, {t}')
    k(f'v_and_b32 {t}, 1, v0')
    k(f'v_lshl_add_u32 {c.aGs}, {t}, 4, {t0}')
    k(f'v_lshrrev_b32 {c.aU}, 2, v0')
    k(f'v_add_lshl_u32 {c.aGs}, {c.aGs}, {c.aU}, 1')
    k(f'v_cndmask_b32 {c.aGs}, 2.0, {c.aGs}, {m}')
    k(f's_lshl_b32 {t0}, {c.x}, 9')
    k(f's_add_u32 {t0}, {t0}, {c.j}')
    k(f's_lshl2_add_u32 {t0}, {t0}, {c.w}')
    k(f's_lshl_b32 {t0}, {t0}, 7')
    if c.ut0:
        k(f'v_and_b32 {t}, 3, v0')
        k(f'v_lshl_add_u32 {t}, {c.cb}, 2, {t}')
        k(f'v_lshl_add_u32 {t}, {t}, 4, {t0}')
        k(f'v_lshrrev_b32 {c.aU}, 2, {c.P}')
        k(f'v_lshl_add_u32 {c.aU}, {c.aU}, 15, {t}')
    else:
        k(f'v_lshl_add_u32 {t}, {c.cb}, 1, {t}')
        k(f'v_lshl_add_u32 {t}, {t}, 4, {t0}')
        k(f'v_lshrrev_b32 {c.aU}, 1, {c.P}')
        k(f'v_lshl_add_u32 {c.aU}, {c.aU}, 14, {t}')
    s.put(m)
    v.put(t, c.P, c.cb)


def consts_a(k, c):
    s, v = k.s, k.v
    ip, base, step = (v.get() for _ in range(3))
    cs, sn = v.get(4), v.get(4)
    c.sel = s.get(4, 2)
    sp, sig = s.get(), s.get()
    k(f's_movk_i32 {c.sel[0]}, 0x3f80')
    k(f's_movk_i32 {c.sel[2]}, 0x3f80')
    k(f's_lshr_b32 {c.t0}, {c.s0}, 7')
    k(f's_mul_i32 {sig}, {c.t0}, {c.sg}')
    k(f's_lshl_b32 {c.t0}, {c.t0}, 1')
    k(f's_mov_b32 {c.t2}, 0')
    k(f's_and_b32 {sp}, {c.s0}, 127')
    lab = k.begin_skip('s_cbranch_scc1', 'nospecial')
    k(f's_lshl_b32 {c.t0}, {c.iA}, 8')
    k(f's_add_u32 {c.t0}, {c.t0}, {c.s0}')
    k(f'v_cvt_f32_u32 {base}, {c.t0}')
    k(f'v_mul_f32 {base}, {fl(1 / 4096)}, {base}')
    k(f'v_sub_f32 {step}, {fl(1 / 8)}, {base}')
    k(f'v_cos_f32 {base}, {base}')
    k(f'v_cos_f32 {step}, {step}')
    k(f's_mov_b32 {c.t0}, 1')
    k(f'v_cvt_pk_bf16_f32 {base}, {step}, {base}')
    k(f's_movk_i32 {c.t2}, 3584')
    k(f'v_readfirstlane_b32 {c.sel[2]}, {base}')
    k(f's_and_b32 {c.sel[0]}, {c.sel[2]}, 0xffff')
    k(f's_lshr_b32 {c.sel[2]}, {c.sel[2]}, 16')
    k.end_skip(lab)
    k(f's_lshl_b32 {c.sel[1]}, {c.sel[0]}, 16')
    k(f's_lshl_b32 {c.sel[3]}, {c.sel[2]}, 16')
    k(f'v_and_b32 {ip}, 3, v0')
    k(f'v_lshl_add_u32 {ip}, {ip}, 2, {c.t0}')
    k(f'v_lshl_add_u32 {base}, {c.gea}, 8, {c.t2}')
    k(f'v_mad_u32_u24 {base}, {ip}, {c.s0}, {base}')
    k(f'v_cvt_f32_u32 {step}, {ip}')
    k(f'v_cvt_f32_u32 {base}, {base}')
    k(f'v_mul_f32 {step}, {fl(-1 / 16)}, {step}')
    k(f'v_mul_f32 {base}, {fl(-1 / 4096)}, {base}')
    sincos(k, base, step, [0, 1, 2, 3], cs, sn)
    c.CAr = [v.get(4) for _ in range(4)]
    c.CAi = [v.get(4) for _ in range(4)]
    C, S = c.CAr[0], c.CAi[0]
    mo, m2, m12 = ip, base, step
    odd = s.get(2)
    k(f'v_bfe_i32 {mo}, v0, 2, 1')
    k(f'v_bfe_i32 {m2}, v0, 3, 1')
    for m in range(2):
        k(f'v_cvt_pk_bf16_f32 {C[m]}, {cs[2 * m]}, {cs[2 * m + 1]}')
        k(f'v_cvt_pk_bf16_f32 {S[m]}, {sn[2 * m]}, {sn[2 * m + 1]}')
    k(f's_mov_b32 {odd[0]}, 0xf0f0f0f0')
    k(f's_mov_b32 {odd[1]}, {odd[0]}')
    k(f'v_and_b32 {mo}, {c.sg}, {mo}')
    k(f'v_and_b32 {m2}, {c.sg}, {m2}')
    k(f'v_xor_b32 {m12}, {mo}, {m2}')
    for m in range(2):
        k(f'v_xor_b32 {C[2 + m]}, {sig}, {C[m]}')
        k(f'v_xor_b32 {S[2 + m]}, {sig}, {S[m]}')
    k(f's_cmp_lg_u32 {sp}, 0')
    lab = k.begin_skip('s_cbranch_scc1', 'nospecial')
    for m in range(2):
        k(f'v_mov_b32 {C[2 + m]}, {S[m]}')
        k(f'v_xor_b32 {S[2 + m]}, {c.sg}, {C[m]}')
    k.end_skip(lab)
    for m in range(4):
        k(f'v_cndmask_b32 {c.CAr[3][m]}, {C[m]}, {S[m]}, {odd}')
        k(f'v_cndmask_b32 {c.CAi[3][m]}, {S[m]}, {C[m]}, {odd}')
        k(f'v_xor_b32 {c.CAr[2][m]}, {C[m]}, {mo}')
        k(f'v_xor_b32 {c.CAi[2][m]}, {S[m]}, {mo}')
    for m in range(4):
        k(f'v_xor_b32 {c.CAr[1][m]}, {c.CAr[3][m]}, {m2}')
        k(f'v_xor_b32 {c.CAi[1][m]}, {c.CAi[3][m]}, {m12}')
        k(f'v_xor_b32 {c.CAr[3][m]}, {c.CAr[3][m]}, {m12}')
        k(f'v_xor_b32 {c.CAi[3][m]}, {c.CAi[3][m]}, {m2}')
    s.put(odd, sp, sig)
    v.put(ip, base, step, cs, sn, c.a2, c.gea)


def p1_dft(k, c):
    s, v = k.s, k.v
    f = v.get(8)
    o = v.get(4)
    X = v.get()
    if c.stamps and 'qarr' in c.stamps:
        k.waitfor(*c.qd, *c.qm)
        stamp(k, c, 'qarr')
    for r in range(2):
        A, M = c.qd[r], c.qm[r]
        lo, hi = c.sel[2 * r], c.sel[2 * r + 1]
        for m in range(4):
            k(f'v_dot2_f32_bf16 {f[2 * m]}, {A[m]}, {lo}, 0')
            k(f'v_dot2_f32_bf16 {f[2 * m + 1]}, {A[m]}, {hi}, 0')
        k(f'v_mov_b32_dpp {X}, {M[0]} wave_ror:1 row_mask:0xf bank_mask:0xf')
        src = [(X, 0), (M[3], 1), (M[3], 0), (M[2], 1), (M[2], 0), (M[1], 1), (M[1], 0), (M[0], 1)]
        for e in range(8):
            k(f'v_dot2c_f32_bf16 {f[e]}, {hi if src[e][1] else lo}, {src[e][0]}')
        dst = o if r == 0 else c.qm[0]
        for m in range(4):
            k(f'v_cvt_pk_bf16_f32 {dst[m]}, {f[2 * m]}, {f[2 * m + 1]}')
        k(f'ds_write_b128 {c.aXw}, {dst} offset:{L_X + r * (2560 + 128)}')
    z = f[0:2]
    for m in range(4):
        for r in range(2):
            k(f'v_dot2_f32_bf16 {z[r]}, {c.qd[r][m]}, {c.gw[m]}, {z[r] if m else 0}')
    k('s_waitcnt lgkmcnt(0)')
    stamp(k, c, 'xt')
    k('s_barrier')
    v.put(o, X, c.qm[0], c.qm[1], c.aXw, c.qd[0], c.qd[1], c.gw)
    s.put(c.sel)
    F = [[v.get(4) for _ in range(4)] for _ in range(2)]
    tr = [f'ds_read_b64_tr_b16 {F[T][ks][2 * h:2 * h + 2]}, {c.aXr} offset:{L_X + 5120 * h + 256 * ks + 32 * T}'
          for T in range(2) for ks in range(4) for h in range(2)]
    ntr = c.o.get('ntr', 8)
    for x in tr[:ntr]:
        k(x)
    k(f'ds_write2st64_b32 {c.aGw}, {z[0]}, {z[1]} offset0:0 offset1:1')
    k.mark('gp')
    sync_go(k, c)
    Dr = [v.get(4), v.get(4)]
    Di = [v.get(4), v.get(4)]
    Re, Im, t = v.get(4), v.get(4), v.get(4)
    Hr, Hi = F[0][0:2], F[0][2:4]
    mf = []
    for T in range(2):
        for ks in range(4):
            mf.append(f'v_mfma_f32_16x16x32_bf16 {Dr[T]}, {F[T][ks]}, {c.CAr[ks]}, {Dr[T] if ks else 0}')
            mf.append(f'v_mfma_f32_16x16x32_bf16 {Di[T]}, {F[T][ks]}, {c.CAi[ks]}, {Di[T] if ks else 0}')
    mf.append(f'v_mfma_f32_16x16x32_bf16 {Hr[0]}, {Im}, {c.CBs[0]}, 0')
    mf.append(f'v_mfma_f32_16x16x32_bf16 {Hi[0]}, {Im}, {c.CBc[0]}, 0')
    mf.append(f'v_mfma_f32_16x16x32_bf16 {Hr[0]}, {Re}, {c.CBc[0]}, {Hr[0]}')
    mf.append(f'v_mfma_f32_16x16x32_bf16 {Hi[0]}, {Re}, {c.CBn[0]}, {Hi[0]}')
    mf.append(f'v_mfma_f32_16x16x32_bf16 {Hi[1]}, {Im}, {c.CBc[1]}, 0')
    mf.append(f'v_mfma_f32_16x16x32_bf16 {Hr[1]}, {Re}, {c.CBc[1]}, 0')
    st = Stream(mf)

    def twid():
        for T in range(2):
            cmul_tw(k, Dr[T], Di[T], c.tw1c[4 * T:4 * T + 4], c.tw1s[4 * T:4 * T + 4], t)
            for h in range(2):
                k(f'v_cvt_pk_bf16_f32 {Im[2 * T + h]}, {Di[T][2 * h]}, {Di[T][2 * h + 1]}')
            for h in range(2):
                k(f'v_cvt_pk_bf16_f32 {Re[2 * T + h]}, {Dr[T][2 * h]}, {Dr[T][2 * h + 1]}')
    st.blk[15] = [x[1].text for x in k.capture(twid)]
    g = st.place(0, tr[ntr:])
    gb = st.barrier_after(c.o.get('gbar', 5), 'gp')
    g = st.place(max(g + 1, gb), [f'ds_read_b128 {f[4 * h:4 * h + 4]}, {c.aGr} offset:{16 * h}' for h in range(2)])
    z = f[0]
    g = st.place(g + 4, [f'v_add_f32 {f[i]}, {f[i]}, {f[i + 4]}' for i in range(4)] +
                 [f'v_add_f32 {f[i]}, {f[i]}, {f[i + 2]}' for i in range(2)])
    chain = [f'v_add_f32 {z}, {z}, {f[1]}']
    chain += [f'v_add_f32_dpp {z}, {z}, {z} {ctl} row_mask:0xf bank_mask:0xf' for ctl in
              ('quad_perm:[1,0,3,2]', 'quad_perm:[2,3,0,1]', 'row_half_mirror')]
    chain += [f'v_mul_f32 {z}, {fl(-1.4426950408889634)}, {z}', f'v_exp_f32 {z}, {z}', f'v_add_f32 {z}, 1.0, {z}',
              f'v_rcp_f32 {z}, {z}']
    g = st.place(g + 1, chain, per_gap=1)
    rest, st.tail = st.tail, []
    assert st.place(0, c.cbx) < 15
    c.Kf = [v.get(2) for _ in range(11)]
    c.Wt = [v.get(2) for _ in range(4)]
    c.unp = unp = lambda d, x: [f'v_lshlrev_b32 {d[0]}, 16, {x}', f'v_and_b32 {d[1]}, {c.mhi}, {x}']
    c.unpK = [i for t_ in range(11) for i in unp(c.Kf[t_], c.K[t_])]
    for ch in range(2):
        for jj in range(4):
            src = c.skw[2 * ch + (jj >> 1)]
            c.unpK.append(f'v_and_b32 {c.Wt[jj][ch]}, {c.mhi}, {src}' if jj & 1 else f'v_lshlrev_b32 {c.Wt[jj][ch]}, 16, {src}')
    st.place(c.o.get('ks0', 10), c.unpK)
    c.unpK, st.tail = rest + st.tail, []
    st.emit(k)
    stamp(k, c, 'stB')
    c.zst = []
    for x in c.unpK[:4]:
        k(x)
    c.unpK = c.unpK[4:]
    for Tb in range(2):
        o = F[1][Tb]
        for i in range(4):
            k(f'v_cvt_pk_bf16_f32 {o[i]}, {Hr[Tb][i]}, {Hi[Tb][i]}')
        c.zst.append(f'buffer_store_dwordx4 {o}, {c.aZ[Tb]}, {c.srdws}, 0 offen{SC}')
        while c.zlate == 0 and c.zst:
            k(c.zst.pop(0))
    c.zst.append(f'buffer_store_dword {z}, {c.aGs}, {c.srdws}, 0 offen{SC}')
    c.ztxt = list(c.zst)
    c.qst = [f'global_store_dwordx4 {c.aQ[eh]}, {c.qp[eh]}, {c.pws}{SC}' for eh in range(2)] if c.qx else []
    if c.qx == 1:
        c.zst = c.qst + c.zst
    v.put(*F[0], *F[1][2:], *Dr, *Di, Re, Im, t, c.aXr, c.tw1c, c.tw1s, c.aGr, c.aGw)
    c.zfree = [*F[1][:2], c.aZ, f, c.aGs]
    v.put(*c.CAr, *c.CAi, *c.CBc, *c.CBs, *c.CBn)
    s.put(*c.cbx_s)


def p1_kv(k, c):
    s, v = k.s, k.v
    Kf, Wt = c.Kf, c.Wt
    Vf = [v.get(2) for _ in range(8)]
    for x in c.unpK:
        k(x)
    S = [v.get(2) for _ in range(8)]
    for jj in range(4):
        if c.qx == 2 and jj in (0, 2):
            k(c.qst[jj // 2])
        for t in range(8):
            if jj == 0:
                k(f'v_pk_mul_f32 {S[t]}, {Kf[3 + t]}, {Wt[0]}')
            else:
                k(f'v_pk_fma_f32 {S[t]}, {Kf[3 + t - jj]}, {Wt[jj]}, {S[t]}')
    stamp(k, c, 'ks')
    k.waitfor(c.V)
    stamp(k, c, 'varr')
    unpV = [i for t_ in range(8) for i in c.unp(Vf[7 - t_], c.V[7 - t_])]
    side = [('i', I(x)) for x in c.zst] if c.zlate <= 1 else []
    if c.o.get('zev', 6) == 0:
        k.items += side
        side = []
    k.interleave([('i', I(x)) for x in unpV], side, c.o.get('zev', 6))
    for t in range(8):
        k(f'v_pk_mul_f32 {S[7 - t]}, {S[7 - t]}, {Vf[7 - t]}')
    o = [v.get(4), v.get(4)]
    for p in range(2):
        for m in range(4):
            k(f'v_cvt_pk_bf16_f32 {o[p][m]}, {S[7 - 2 * m][p]}, {S[6 - 2 * m][p]}')
        if not c.ut0:
            k(f'global_store_dwordx4 {c.aU}, {o[p]}, {c.pws} offset:{UOFF + 64 * p}{SC}')
    if c.ut0:
        X, Y = v.get(4), v.get(4)
        k('s_mov_b32 vcc_lo, 0x33333333')
        k('s_mov_b32 vcc_hi, 0x33333333')
        for m in range(4):
            k(f'v_cndmask_b32_dpp {X[m]}, {o[1][m]}, {o[0][m]}, vcc quad_perm:[2,3,0,1] row_mask:0xf bank_mask:0xf')
            k('s_nop 0')
        k(f'global_store_dwordx4 {c.aU}, {X}, {c.pws} offset:{UOFF}{SC}')
        k('s_not_b64 vcc, vcc')
        k(f'v_add_u32 {c.aU}, 16384, {c.aU}')
        for m in range(4):
            k(f'v_cndmask_b32_dpp {Y[m]}, {o[0][m]}, {o[1][m]}, vcc quad_perm:[2,3,0,1] row_mask:0xf bank_mask:0xf')
            k('s_nop 0')
        k(f'global_store_dwordx4 {c.aU}, {Y}, {c.pws} offset:{UOFF}{SC}')
        v.put(X, Y)
    if c.zlate == 2:
        for x in c.zst:
            k(x)
    k.mark('stores')
    if c.qx:
        v.put(c.aQ, *c.qp)
    if c.o.get('pf'):
        v.put(c.pfd)
    v.put(*c.zfree, *Wt, *Kf, *Vf, *S, *o, c.K, c.V, c.skw, c.aU, c.dummy)


def p2_consts(k, c):
    s, v = k.s, k.v
    t0, t1 = c.t0, c.t1
    k1, base, step, t = (v.get() for _ in range(4))
    fg = v.get()
    k(f'v_lshrrev_b32 {t}, 2, {c.n}')
    k(f'v_and_b32 {k1}, 3, v0')
    k(f'v_lshl_add_u32 {k1}, {k1}, 2, {t}')
    c.sgn = v.get()
    c.psel = s.get()
    k(f's_mul_i32 {t0}, {c.tau}, 0x02020000')
    k(f's_add_u32 {c.psel}, {t0}, 0x01000c0c')
    k(f's_lshl_b32 {t1}, {c.mir}, 31')
    k(f's_xor_b32 {t1}, {t1}, {fl(1 / 16)}')
    k(f'v_cvt_f32_u32 {fg}, {c.g}')
    cs, sn = v.get(4), v.get(4)
    k(f'v_cvt_f32_u32 {step}, {k1}')
    k(f'v_add_u32 {k1}, {c.mir}, {k1}')
    k(f'v_mul_f32 {step}, {t1}, {step}')
    k(f'v_mul_f32 {t}, 4.0, {fg}')
    k(f'v_mul_f32 {base}, {step}, {t}')
    sincos(k, base, step, [0, 1, 2, 3], cs, sn)
    c.Fb = v.get(4)
    k(f'v_cvt_f32_u32 {step}, {k1}')
    k(f's_mul_i32 {t0}, {c.tau}, {fl(8.0)}')
    for h in range(2):
        k(f'v_cvt_pk_bf16_f32 {c.Fb[h]}, {cs[2 * h]}, {cs[2 * h + 1]}')
        k(f'v_cvt_pk_bf16_f32 {c.Fb[2 + h]}, {sn[2 * h]}, {sn[2 * h + 1]}')
    k(f'v_mul_f32 {step}, {t1}, {step}')
    k(f'v_fma_f32 {fg}, 2.0, {fg}, {t0}')
    k(f'v_mul_f32 {base}, {step}, {fg}')
    sincos(k, base, step, [0, 1], cs, sn)
    c.Fa = v.get(4)
    c.Far, c.Fai = c.Fa[0:2], c.Fa[2:4]
    k(f'v_mul_f32 {step}, {fl(1 / 16)}, {step}')
    k(f'v_lshlrev_b32 {k1}, 31, {k1}')
    for jj in range(2):
        k(f'v_cvt_pk_bf16_f32 {c.Far[jj]}, {cs[jj]}, {sn[jj]}')
        k(f'v_cvt_pk_bf16_f32 {c.Fai[jj]}, -{sn[jj]}, {cs[jj]}')
    k(f'v_mul_f32 {base}, {step}, {t}')
    k(f'v_xor_b32 {c.sgn}, 1.0, {k1}')
    sincos(k, base, step, [0, 1, 2, 3], cs, sn)
    c.tw2c, c.tw2s = cs, sn
    v.put(fg)
    c.Ci = [v.get(4) for _ in range(4)]
    c.SP = v.get(8)
    for jj in range(4):
        k(f'v_pk_mov_b32 {c.Ci[jj][0:2]}, 0, 0')
        k(f'v_pk_mov_b32 {c.Ci[jj][2:4]}, 0, 0')
        k(f'v_pk_mov_b32 {c.SP[2 * jj:2 * jj + 2]}, 0, 0')
    k(f's_mul_i32 {t0}, {c.w}, {WS}')
    k(f'v_mul_u32_u24 {t}, {PS}, {c.g}')
    k(f'v_lshl_add_u32 {t}, {c.n}, 4, {t}')
    c.aB = v.get()
    k(f'v_add_u32 {c.aB}, {t0}, {t}')
    k(f'ds_write_b128 {c.aB}, {c.Ci[0]} offset:{L_U}')
    v.put(k1, base, step, t)


def p2_hpre(k, c):
    s, v = k.s, k.v
    t0, t1 = c.t0, c.t1
    t, base = v.get(), v.get()
    c.aHw, c.aHr = v.get(), v.get()
    k(f's_mul_i32 {t0}, {c.w}, {HS}')
    k(f's_add_u32 {t0}, {t0}, {L_H}')
    k(f'v_lshl_add_u32 {t}, {c.n}, 2, {t0}')
    k(f'v_add_u32 {c.aHw}, {t0}, {c.l16}')
    k(f'ds_write_b32 {t}, {c.az}')
    k(f'ds_write_b32 {t}, {c.az} offset:{HC}')
    k(f's_add_u32 {t1}, {c.tau}, 1')
    k(f'v_lshl_add_u32 {t}, {c.g}, 2, {c.n}')
    k(f'v_add_u32 {t}, {t1}, {t}')
    k(f'v_and_b32 {base}, 1, {t}')
    k(f'v_mul_u32_u24 {base}, {HC - 4}, {base}')
    k(f'v_lshl_add_u32 {t}, {t}, 2, {t0}')
    k(f'v_add_u32 {c.aHr}, {base}, {t}')
    v.put(t, base)


def p2_dfrag(k, c):
    s, v = k.s, k.v
    if c.dfold:
        return
    c.AD = v.get(4)
    t = v.get()
    ms = [s.get(2) for _ in range(4)]
    k(f'v_lshl_add_u32 {t}, {c.g}, 2, {c.n}')
    for m in range(4):
        k(f'v_cmp_eq_u32 {ms[m]}, {15 - m}, {t}')
    k(f'v_lshlrev_b32 {c.Dv}, {c.sh}, {c.Dv}')
    for m in range(4):
        k(f'v_cndmask_b32 {c.AD[m]}, 0, {c.Dv}, {ms[m]}')
    s.put(*ms)
    v.put(c.Dv, t)


def out_addrs(k, c):
    if hasattr(c, 'xl'):
        return
    s, v = k.s, k.v
    t0 = c.t0
    c.xl, c.aO1, t = v.get(), v.get(), v.get()
    c.qn = v.get(8)
    c.qdone = 0
    k(f's_lshl_b32 {t0}, {c.w}, 2')
    k(f'v_and_b32 {t}, 60, v0')
    k(f'v_lshl_add_u32 {c.xl}, {t}, 2, {t0}')
    k(f'v_and_or_b32 {c.xl}, v0, 3, {c.xl}')
    k(f's_lshl_b32 {t0}, {c.tau}, 7')
    k(f's_add_u32 {t0}, {t0}, {c.E}')
    k(f's_lshl_b32 {t0}, {t0}, 3')
    k(f'v_lshl_add_u32 {c.aO1}, {c.xl}, 11, {t0}')
    v.put(t)
    c.srdq = s.get(4, 4)
    c.po = s.get(3, 1)
    k(f's_mov_b32 {c.srdq[0]}, {c.pq[0]}')
    k(f's_and_b32 {c.srdq[1]}, {c.pq[1]}, 0xffff')
    k(f's_mov_b32 {c.srdq[2]}, {2 << 20}')
    k(f's_mov_b32 {c.srdq[3]}, 0x00020000')
    for cc in range(1, 4):
        k(f's_mov_b32 {c.po[cc - 1]}, {cc << 19}')
    c.qld = lambda cc: f'buffer_load_dwordx2 {c.qn[2 * cc:2 * cc + 2]}, {c.aO1}, {c.srdq}, {c.po[cc - 1] if cc else 0} offen{c.o.get("qm", "")}'


def p2_addrs(k, c):
    s, v = k.s, k.v
    t0, t1 = c.t0, c.t1
    out_addrs(k, c)
    t, u, xl = v.get(), v.get(), c.xl
    c.srdo = s.get(4, 4)
    k(f's_mov_b32 {c.srdo[0]}, {c.pout[0]}')
    k(f's_and_b32 {c.srdo[1]}, {c.pout[1]}, 0xffff')
    k(f's_mov_b32 {c.srdo[2]}, {2 << 20}')
    k(f's_mov_b32 {c.srdo[3]}, 0x00020000')
    m = s.get(2)
    if c.o.get('fl'):
        c.aOf = v.get()
        k(f's_and_b32 {t0}, {c.E}, 15')
        k(f'v_lshrrev_b32 {t}, 2, {c.l}')
        k(f'v_cmp_eq_u32 {m}, {t0}, {t}')
        k(f's_nop 0')
        k(f'v_cndmask_b32 {c.aOf}, 2.0, {c.aO1}, {m}')
    c.aUg, c.aUw = v.get(2, 1), v.get()
    c.e14 = s.get()
    k(f's_lshl_b32 {c.e14}, {c.E}, 14')
    k(f's_add_u32 {t0}, {c.e14}, {UOFF + 4096}')
    k(f'v_lshl_add_u32 {c.aUg[0]}, v0, 4, {t0}')
    k(f'v_add_u32 {c.aUg[1]}, 8192, {c.aUg[0]}')
    k(f'v_and_b32 {t}, 1, v0')
    k(f'v_bfe_u32 {u}, v0, {1 if c.ut0 else 2}, 1')
    k(f'v_lshl_add_u32 {t}, {t}, 1, {u}')
    k(f'v_mul_u32_u24 {c.aUw}, {WS}, {t}')
    k(f'v_bfe_u32 {t}, v0, 3, 2')
    k(f'v_xor_b32 {t}, 3, {t}')
    k(f'v_mul_u32_u24 {t}, {PS}, {t}')
    k(f'v_and_b32 {u}, 0xe0, v0')
    k(f'v_add3_u32 {c.aUw}, {c.aUw}, {t}, {u}')
    k(f'v_and_b32 {t}, {4 if c.ut0 else 2}, v0')
    k(f'v_lshl_add_u32 {c.aUw}, {t}, {2 if c.ut0 else 3}, {c.aUw}')
    c.aZ0, c.aZ1, c.aG = (v.get() for _ in range(3))
    c.aSP = v.get(2, 1)
    c.mir = s.get()
    k(f's_add_u32 {t0}, {c.E}, 63')
    k(f's_lshr_b32 {c.mir}, {t0}, 7')
    k(f's_lshl2_add_u32 {t0}, {c.E}, {c.w}')
    k(f's_lshl1_add_u32 {t1}, {t0}, -512')
    k(f's_mul_i32 {t1}, {t1}, {c.mir}')
    k(f's_sub_u32 {t0}, {t0}, {t1}')
    k(f's_and_b32 {t1}, {t0}, 3')
    k(f's_lshr_b32 {t0}, {t0}, 2')
    k(f's_lshl_b32 {t0}, {t0}, 14')
    k(f's_lshl4_add_u32 {t0}, {t1}, {t0}')
    k(f's_add_u32 {t0}, {t0}, {ZOFF}')
    k(f'v_mov_b32 {c.aSP[0]}, {t0}')
    k(f'v_add_u32 {c.aSP[1]}, 8192, {c.aSP[0]}')
    k(f'v_cmp_eq_u32 {m}, 0, {c.l}')
    if c.zdma:
        c.aZg = v.get()
        k(f'v_sub_u32 {t}, {c.l}, {c.g}')
        k(f's_lshl_b32 {t0}, {c.E}, 2')
        k(f'v_and_or_b32 {t}, {t}, 3, {t0}')
        k(f's_sub_u32 {t0}, 0, {c.mir}')
        k(f's_mul_i32 {t1}, {c.mir}, 513')
        k(f'v_xor_b32 {t}, {t0}, {t}')
        k(f'v_add_u32 {t}, {t1}, {t}')
        k(f'v_lshrrev_b32 {u}, 2, {t}')
        k(f'v_bfi_b32 {t}, 3, {t}, {c.l}')
        k(f's_lshl2_add_u32 {t0}, {c.tau}, {c.w}')
        k(f's_lshl_b32 {t0}, {t0}, 11')
        k(f's_add_u32 {t0}, {t0}, {ZOFF}')
        k(f'v_lshl_add_u32 {t}, {t}, 4, {t0}')
        k(f'v_lshl_add_u32 {c.aZg}, {u}, 14, {t}')
        k(f's_lshl_b32 {t0}, {c.w}, 11')
        k(f's_add_u32 m0, {t0}, {L_Z}')
        k(f'v_lshrrev_b32 {t}, 2, {c.n}')
        k(f'v_add_u32 {t}, {c.w}, {t}')
        k(f'v_and_b32 {t}, 3, {t}')
        k(f'v_lshl_add_u32 {t}, {c.n}, 2, {t}')
        k(f'v_lshl_add_u32 {t}, {c.g}, 7, {t}')
        k(f'v_lshlrev_b32 {c.aZ1}, 4, {t}')
        k(f'v_mov_b32 {t}, {L_U - L_Z}')
        k(f'v_cndmask_b32 {c.aZ0}, {c.aZ1}, {t}, {m}')
    else:
        k(f's_lshl_b32 {t1}, {c.tau}, 13')
        k(f's_add_u32 {t0}, {t0}, {t1}')
        k(f'v_lshl_add_u32 {c.aZ1}, {c.n}, 6, {t0}')
        k(f'v_lshl_add_u32 {c.aZ1}, {c.g}, 11, {c.aZ1}')
        k(f'v_cndmask_b32 {c.aZ0}, {c.aZ1}, 2.0, {m}')
    c.aYBw, c.aYBr, c.aYAw, c.aYAr, c.aYBp = (v.get() for _ in range(5))
    k(f's_lshl1_add_u32 {t0}, {c.mir}, 1')
    k(f'v_mul_u32_u24 {t}, {t0}, v0')
    k(f's_and_b32 {t0}, {c.mir}, {c.tau}')
    k(f'v_subrev_u32 {t}, {t0}, {t}')
    k(f'v_and_b32 {t}, 3, {t}')
    k(f'v_mul_u32_u24 {c.aYBr}, 1088, {t}')
    k(f's_sub_u32 {t0}, {c.mir}, {t0}')
    k(f'v_subrev_u32 {u}, {t0}, {xl}')
    k(f'v_ashrrev_i32 {u}, 2, {u}')
    k(f'v_and_b32 {t}, -16, {u}')
    k(f'v_bfe_u32 {c.aYBp}, {u}, 2, 2')
    k(f'v_and_b32 {u}, 3, {u}')
    k(f'v_lshl_add_u32 {t}, {u}, 2, {t}')
    k(f'v_add_lshl_u32 {t}, {t}, {c.aYBp}, 4')
    k(f'v_add3_u32 {c.aYBr}, {c.aYBr}, {t}, 16')
    k(f's_mul_i32 {t0}, {c.w}, {4 * 1088}')
    k(f'v_add_u32 {c.aYBw}, {t0}, {c.l16}')
    k(f's_add_u32 {t0}, {t0}, {L_YB - 16 - 4 * 63}')
    k(f'v_cmp_eq_u32 {m}, 63, {c.l}')
    k(f'v_mov_b32 {t}, {t0}')
    k(f'v_lshlrev_b32 {c.aYBp}, 2, {c.l}')
    k(f'v_cndmask_b32 {t}, 0, {t}, {m}')
    k(f'v_add_u32 {c.aYBp}, {c.aYBp}, {t}')
    k(f'v_and_b32 {t}, 127, {xl}')
    k(f'v_lshrrev_b32 {u}, 7, {xl}')
    k(f's_lshl_b32 {t0}, {c.tau}, 13')
    k(f's_add_u32 {t0}, {t0}, {GOFF}')
    k(f'v_lshl_add_u32 {c.aG}, {t}, 6, {t0}')
    k(f'v_lshl_add_u32 {c.aG}, {u}, 4, {c.aG}')
    if c.qx:
        c.aQg = v.get()
        k(f'v_lshl_add_u32 {t}, {t}, 1, {u}')
        k(f's_add_u32 {t0}, {c.e14}, {t1}')
        k(f's_add_u32 {t0}, {t0}, {QOFF}')
        k(f'v_lshl_add_u32 {c.aQg}, {t}, 5, {t0}')
    k(f's_mul_i32 {t0}, {c.w}, {YAW}')
    k(f'v_lshl_add_u32 {c.aYAw}, {c.l}, 2, {t0}')
    k(f'v_and_b32 {t}, 3, v0')
    k(f'v_mul_u32_u24 {t}, {YAI - 1}, {t}')
    k(f's_mov_b32 {t0}, {L_YA}')
    k(f'v_add3_u32 {c.aYAr}, {t}, v0, {t0}')
    v.put(t, u, xl)
    s.put(m, c.e14)


def q_prefetch(k, c):
    v = k.v
    a = v.get()
    c.qpf = v.get()
    k(f's_lshl_b32 {c.t0}, {c.j}, 2')
    k(f's_add_u32 {c.t0}, {c.t0}, {c.w}')
    k(f's_lshl_b32 {c.t0}, {c.t0}, 7')
    k(f's_add_u32 {c.t0}, {c.t0}, {c.x}')
    k(f's_lshl_b32 {c.t0}, {c.t0}, 7')
    k(f'v_lshl_add_u32 {a}, {c.n}, 10, {c.t0}')
    k('s_mov_b64 exec, 0xffff')
    k(f'global_load_dword {c.qpf}, {a}, {c.pq}')
    k('s_mov_b64 exec, -1')
    v.put(a)


def narrow_q(k, c, n):
    for cc in range(c.qdone, c.qdone + n):
        k(c.qld(cc))
    c.qdone += n


def p2_hstage(k, c, n0, n1):
    s, v = k.s, k.v
    H = c.H
    if n0 == n1:
        return
    P, sh = c.Pv, c.sh
    U = {n: v.get(4) for n in range(n0, n1)}
    k.waitfor(*H[n0:n1])
    if n0 == 0 and c.dfold:
        t = U[0][0]
        k('s_mov_b64 exec, 1')
        k(f'v_lshlrev_b32 {c.Dv}, 16, {c.Dv}')
        k(f'v_lshlrev_b32 {t}, 16, {H[0][0]}')
        k(f'v_add_f32 {t}, {t}, {c.Dv}')
        k(f'v_and_b32 {H[0][0]}, {c.mhi}, {H[0][0]}')
        k(f'v_cvt_pk_bf16_f32 {H[0][0]}, {t}, {H[0][0]}')
        k('s_mov_b64 exec, -1')
        v.put(c.Dv)
    for n in range(n0 + 1, min(n1 + 1, 4)):
        k(f'v_mov_b32_dpp {P[n]}, {H[n - 1][3]} wave_ror:1 row_mask:0xf bank_mask:0xf')
    for n in range(n0, n1):
        k(f'v_mov_b32_dpp {P[n]}, {H[n][3]} wave_shr:1 row_mask:0xf bank_mask:0xf' + (' bound_ctrl:0' if n == 0 else ''))
    for n in range(n0, n1):
        for m in (1, 2, 3):
            k(f'v_alignbit_b32 {U[n][m]}, {H[n][m]}, {H[n][m - 1]}, {sh}')
        k(f'v_alignbit_b32 {U[n][0]}, {H[n][0]}, {P[n]}, {sh}')
        k(f'ds_write_b128 {c.aHw}, {U[n]} offset:{64 + 1024 * n}')
    k(f's_cmp_eq_u32 {c.tau}, 1')
    lab = k.begin_skip('s_cbranch_scc1', 'noshift')
    for n in range(n0, n1 - 1):
        k(f'v_mov_b32_dpp {H[n][3]}, {U[n + 1][0]} wave_rol:1 row_mask:0xf bank_mask:0xf')
    for n in range(n0, n1):
        k(f'v_pk_mov_b32 {H[n][0:2]}, {U[n][0:2]}, {U[n][2:4]} op_sel:[1,0]')
        k(f'v_mov_b32 {H[n][2]}, {U[n][3]}')
    for n in range(n0, n1):
        k(f'v_mov_b32_dpp {H[n][3]}, {U[n][0]} wave_shl:1 row_mask:0xf bank_mask:0xf')
    k.end_skip(lab)
    k(f'ds_write_b32 {c.aHw}, {U[n0][0]} offset:{HC + 60 + 1024 * n0}')
    for n in range(n0, n1):
        k(f'ds_write_b128 {c.aHw}, {H[n]} offset:{HC + 64 + 1024 * n}')
    v.put(*U.values(), *H[n0:n1])
    if n1 == 4:
        v.put(P, c.aHw)


def p2_afrags(k, c, p, nfill):
    for r in range(16):
        a = R('a', 4 * (16 * p + r), 4)
        for h in range(2):
            k(f'ds_read_b64 {a[2 * h:2 * h + 2]}, {c.aHr} offset:{64 * (16 * p + r) + 8 * h}')
        if r % 4 == 3:
            fill(k, c, nfill)


def fill(k, c, n):
    while c.fill and n > 0:
        it = c.fill.pop(0)
        k.items.append(it)
        if it[0] == 'i':
            n -= 2 if it[1].is_trans else 1


def p2_xloads(k, c):
    s, v = k.s, k.v
    c.Ul = [v.get(4) for _ in range(4)]
    c.Zl = v.get(8)
    c.G = v.get(4)
    ul = lambda n: f'global_load_dwordx4 {c.Ul[n]}, {c.aUg[n >> 1]}, {c.pws} offset:{-4096 + 4096 * (n & 1)}{SC}'
    k(ul(0))
    k(ul(1))
    k('s_mov_b64 exec, 0xffff')
    k(f'global_load_dwordx4 {c.SP[0:4]}, {c.aSP[0]}, {c.pws}{SC}')
    k(f'global_load_dwordx4 {c.SP[4:8]}, {c.aSP[1]}, {c.pws}{SC}')
    k('s_mov_b64 exec, -1')
    if c.zdma:
        k(f'global_load_lds_dwordx4 {c.aZg}, {c.pws}{SC}')
        k(f'global_load_lds_dwordx4 {c.aZg}, {c.pws} offset:1024{SC}')
        k.mark('zd')
        v.put(c.aZg)
    else:
        k(f'buffer_load_dwordx4 {c.Zl[0:4]}, {c.aZ0}, {c.srdws}, 0 offen{SC}')
        k(f'buffer_load_dwordx4 {c.Zl[4:8]}, {c.aZ1}, {c.srdws}, 0 offen offset:1024{SC}')
        v.put(c.aZ0, c.aZ1)
    late = [ul(2), ul(3), f'global_load_dwordx4 {c.G}, {c.aG}, {c.pws}{SC}']
    if c.o.get('gfirst', 1):
        late = late[2:] + late[:2]
    if c.o.get('qx0'):
        late += [c.qld(c.qdone)]
        c.qdone += 1
    n = c.o.get('xl', 1)
    for x in late[:n]:
        k(x)
    c.late = late[n:]
    v.put(c.aUg[0], c.aSP)


def page_jump(k, c):
    if c.o.get('page', True):
        lab = k.label('page')
        k(f's_branch {lab}')
        k.raw('.p2align 12')
        k.raw(f'{lab}:')


def p2_main(k, c):
    s, v = k.s, k.v
    o = c.o
    Zl, SP, Ul, G, qn, Ci = c.Zl, c.SP, c.Ul, c.G, c.qn, c.Ci
    uw = lambda n: f'ds_write_b128 {c.aUw}, {Ul[n]} offset:{L_U + 256 + 256 * n}'
    rd = lambda dst, q, r: f'ds_read_b128 {dst}, {c.aB} offset:{L_U + 16 + 256 * q + 16 * (15 - r)}'
    k(uw(0))
    k(uw(1))
    lg = o.get('lg', [8, 10])
    if not lg:
        for x in c.late:
            k(x)
        v.put(c.aUg[1], c.aG)
    if c.zdma == 2:
        k.waitfor(vm='zd')
    k('s_waitcnt lgkmcnt(0)')
    k('s_barrier')
    stamp(k, c, 'ubar')
    v.put(Ul[0], Ul[1])
    B0 = [v.get(4) for _ in range(16)]
    B1 = [v.get(4) for _ in range(16)]
    Di = [v.get(4) for _ in range(4)]
    acc = [v.get(4) for _ in range(2)]
    ya = v.get(4)
    t = ya
    gq = c.Fa
    Bf = [Zl[0:4], Zl[4:8]]
    ring2 = ([Ul[2], Ul[3], Zl[0:4], Zl[4:8]] + Di + [SP[0:4], SP[4:8]])[:o.get('r2', 8)]
    ring3 = ([Ul[2], Ul[3], Zl[0:4], Zl[4:8]] + Di + [SP[0:4], SP[4:8]])[:4 + o.get('r3', 4)]
    Y = Ci
    NPRE = o.get('npre', 6)
    for r in range(NPRE):
        k(rd(B0[r], 0, r))
    A = lambda p, r: R('a', 4 * (16 * p + r), 4)
    fr = [Zl[0:2], Zl[4:6], Zl[2:4], Zl[6:8]]
    mf = []
    seen = set()
    def add(cc, a, b, tag=None):
        if any(str(b) == str(x) for x in B0[16 - o.get('skipd', [0] * 4)[cc]:]):
            return
        d = acc[cc & 1]
        mf.append((cc, tag, f'v_mfma_f32_16x16x32_bf16 {d}, {a}, {b}, {d if cc in seen else 0}'))
        seen.add(cc)
    streams = []
    def addstream(cc, p, q, r, reg):
        streams.append((q, r, reg))
        add(cc, A(p, r), reg, ('s', len(streams) - 1))
        if r == 0 and p == 0 and not c.dfold:
            add(cc, c.AD, reg, ('s', len(streams) - 1))
    if not c.dfold:
        add(0, c.AD, B0[0])
    for r in range(16):
        add(0, A(0, r), B0[r])
    for r in range(16):
        add(1, A(1, r), B0[r])
    if not c.dfold:
        add(1, c.AD, B1[0])
    for r in range(16):
        add(1, A(0, r), B1[r])
    d2 = o.get('d2', 26)
    res2 = [(p, r) for r in range(16) for p in (2, 1)]
    for p, r in res2[:d2]:
        add(2, A(p, r), (B0 if p == 2 else B1)[r])
    res2 = res2[d2:]
    for r in range(16):
        addstream(2, 0, 2, r, ring2[r % len(ring2)])
        for p, r_ in res2[len(res2) * r // 16:len(res2) * (r + 1) // 16]:
            add(2, A(p, r_), (B0 if p == 2 else B1)[r_])
    n3 = len(ring3)
    n2 = len(ring2)
    order3 = ring3[n2:] + [ring2[(16 + i) % n2] for i in range(n2)]
    d3 = o.get('d3', 8)
    res3 = [(p, r) for r in range(16) for p in (3, 2)]
    for p, r in res3[:d3]:
        add(3, A(p, r), (B0 if p == 3 else B1)[r])
    res3 = res3[d3:]
    for i in range(32):
        addstream(3, 1 - (i & 1), 2 + (i & 1), i >> 1, order3[i % n3])
        for p, r_ in res3[len(res3) * i // 32:len(res3) * (i + 1) // 32]:
            add(3, A(p, r_), (B0 if p == 3 else B1)[r_])
    def epi(cc):
        e2 = [f'ds_read2st64_b32 {ya[0:2]}, {c.aYAr} offset0:{20 * cc} offset1:{20 * cc + 5}',
              f'ds_read2st64_b32 {ya[2:4]}, {c.aYAr} offset0:{20 * cc + 10} offset1:{20 * cc + 15}']
        e3 = [f'v_fma_f32 {ya[w]}, {gq[w]}, {ya[w]}, {Y[w][cc]}' for w in range(4)]
        ob = qn[2 * cc:2 * cc + 2]
        e3 += [f'v_cvt_pk_bf16_f32 {ob[h]}, {ya[2 * h]}, {ya[2 * h + 1]}' for h in range(2)]
        e4 = [f'buffer_store_dwordx2 {ob}, {c.aO1}, {c.srdo}, {c.po[cc - 1] if cc else 0} offen{o.get("om", "")}']
        return e2, e3, e4

    def pre(cc):
        o1 = []
        for h in range(2):
            o1.append(f'v_lshlrev_b32 {gq[2 * h]}, 16, {qn[2 * cc + h]}')
            o1.append(f'v_and_b32 {gq[2 * h + 1]}, {c.mhi}, {qn[2 * cc + h]}')
        o1 += [f'v_mul_f32 {gq[w]}, {G[cc]}, {gq[w]}' for w in range(4)]
        o2 = [f'v_fma_f32 {Y[w][cc]}, -{G[cc]}, {Y[w][cc]}, {Y[w][cc]}' for w in range(4)]
        return o1, o2
    zs = o.get('zs', 18)
    LW, LR = o.get('lw', 5), o.get('lr', 6)
    sa = zs + 3
    npk = o.get('npk', 4)
    sta = []
    for jj in range(4):
        sta.append((-1, ('a', jj), f'v_mfma_f32_16x16x16_bf16 {Di[jj]}, {fr[jj]}, {c.Fai}, 0'))
        sta.append((-1, ('a', jj), f'v_mfma_f32_16x16x16_bf16 {Ci[jj]}, {fr[jj]}, {c.Far}, {Ci[jj]}'))
    mf[sa:sa] = sta
    base_mf = list(mf)
    Bf4 = [Zl[0:4], Zl[4:8], SP[0:4], SP[4:8]]
    sb = [sa + 12 + 3 * jj for jj in range(4)]
    yaw = lambda cc: [f'ds_write_b32 {c.aYAw}, {acc[cc & 1][i]} offset:{L_YA + YAP * cc + YAI * i}' + (f'@ya{cc}' if i == 3 else '')
                      for i in range(4)]
    while True:
        mf = list(base_mf)
        for jj in range(4):
            mf.insert(sb[jj], (-1, ('b', jj), f'v_mfma_f32_16x16x32_bf16 {Y[jj]}, {c.Fb}, {Bf4[jj]}, 0'))
        st = Stream([m[2] for m in mf])
        pos = lambda tag: [i for i, m in enumerate(mf) if m[1] == tag]
        last = {cc: max(i for i, m in enumerate(mf) if m[0] == cc) for cc in range(4)}
        if c.zdma:
            zr = zs - o.get('zlr', 6)
            if c.zdma == 1:
                st.vmw[zr - 2] = 'zd'
                st.sca[zr - 1].append('s_barrier')
            st.place(zr - 1, [f'ds_read_b128 {Zl[0:4]}, {c.aZ0} offset:{L_Z}', f'ds_read_b128 {Zl[4:8]}, {c.aZ1} offset:{L_Z + 1024}'])
        g = st.place(0, [rd(B0[r], 0, r) for r in range(NPRE, 16)])
        g = st.place(g + 1, [rd(B1[r], 1, r) for r in range(16)])
        gw_ = 0
        ufirst = o.get('ufirst', npk < 4)
        if ufirst:
            g = st.place(g + 1, [uw(2)])
            g = st.place(g + 1, [uw(3) + '@uw'])
            gu = st.barrier_after(g + LW, 'uw')
        for jj in range(4):
            gw_ = st.place(pos(('b', jj))[0] + 3, [f'ds_write_b128 {c.aYBw}, {Y[jj]} offset:{L_YB + 1088 * jj}' + ('@yb' if jj == 3 else '')])
        g0 = st.place(max(g + 1, last[0] + 4), yaw(0))
        gpt = st.place(pos(('b', 0))[0] + 3, [f'ds_write2_b32 {c.aYBp}, {Y[0][3]}, {Y[0][0]} offset0:0 offset1:1',
                                               f'ds_write2_b32 {c.aYBp}, {Y[0][1]}, {Y[0][2]} offset0:2 offset1:3@yp'])
        lastw = max((gw_, 'yb'), (g0, 'ya0'), (gpt, 'yp'))[1]
        g0 = max(g0, gpt - 1)
        gb = st.barrier_after(max(gw_ + LW, g0 + LW, gu + 1 if ufirst else 0), lastw)
        e2g = st.place(gb, epi(0)[0])
        gy = st.place(e2g + 1, [f'ds_read_b128 {Y[w]}, {c.aYBr} offset:{L_YB - 16 + 4 * 1088 * w}' for w in range(4)])
        if not ufirst:
            g = st.place(gy + o.get('ud', 1), [uw(2)])
            g = st.place(g + 1, [uw(3) + '@uw'])
            gu = st.barrier_after(g + LW, 'uw')
        erd = {}
        if o.get('eprio', 1):
            for cc in (1, 2):
                gx = st.place(last[cc] + 3, yaw(cc)) + LW - 1
                while st.lgw[gx] or st.sca[gx] or st.sca[gx + 1] or st.lgw[gx + 1]:
                    gx += 1
                erd[cc] = st.place(st.barrier_after(gx, f'ya{cc}'), epi(cc)[0])
        prev_use, leads = {}, []
        for si, (q, r, reg) in enumerate(streams):
            p_ = pos(('s', si))
            lo = prev_use.get(str(reg), None)
            if lo is None:
                lo = max(gu, p_[0] - 12)
                for jj in range(4):
                    if str(reg) in (str(Di[jj]), str(Bf4[jj])):
                        lo = max(lo, pos(('b', jj))[0])
            gg = st.place(lo, [rd(reg, q, r)])
            assert gg < p_[0] - 2, (si, gg, p_)
            leads.append(p_[0] - gg)
            prev_use[str(reg)] = p_[-1]
        if lg:
            for g_, x in zip(lg, c.late):
                st.place(g_, [x])
        if c.qx:
            st.place(o.get('qg', [14])[0], [f'global_load_dwordx4 {qn[4 * h:4 * h + 4]}, {c.aQg}, {c.pws} offset:{16 * h}{SC}' for h in range(2)], per_gap=1)
        else:
            for n_, cc in enumerate(range(c.qdone, 4)):
                st.place(o.get('qg', [20, 44, 56])[n_], [c.qld(cc)])
        pre_a = [f'v_perm_b32 {SP[i]}, {SP[i]}, {SP[i]}, {c.psel}' for i in range(8)]
        pre_a += [f'v_fma_f32 {Ci[jj][0]}, {SP[4 + jj]}, {c.sgn}, {SP[jj]}' for jj in range(4)]
        assert st.place(max(0, zs - o.get('pa', 16)), pre_a) < zs
        st.place(zs, [f'v_swap_b32 {Zl[1]}, {Zl[4]}', f'v_swap_b32 {Zl[3]}, {Zl[6]}'], per_gap=1)
        gblk = sa + 7 + o.get('blkd', 1)
        g = gblk + 1
        ok = True
        for jj in range(4):
            a, b = Ci[jj], Di[jj]
            if jj < npk:
                st.blk[gblk] += [x[1].text for x in k.capture(cmul_tw, k, a, b, c.tw2c, c.tw2s, t)]
            else:
                tw = []
                for h in (0, 2):
                    for i in (h, h + 1):
                        tw.append(f'v_mul_f32 {t[i & 1]}, {b[i]}, {c.tw2s[i]}')
                        tw.append(f'v_mul_f32 {b[i]}, {b[i]}, {c.tw2c[i]}')
                    for i in (h, h + 1):
                        tw.append(f'v_fma_f32 {b[i]}, -{a[i]}, {c.tw2s[i]}, {b[i]}')
                        tw.append(f'v_fma_f32 {a[i]}, {a[i]}, {c.tw2c[i]}, {t[i & 1]}')
                g = st.place(g, tw)
            cv = [f'v_cvt_pk_bf16_f32 {Bf4[jj][2 + h]}, {b[2 * h]}, {b[2 * h + 1]}' for h in range(2)]
            cv += [f'v_cvt_pk_bf16_f32 {Bf4[jj][h]}, {a[2 * h]}, {a[2 * h + 1]}' for h in range(2)]
            g = st.place(g, cv)
            if not g < pos(('b', jj))[0] - 1:
                for j2 in range(jj, 4):
                    sb[j2] += 1
                ok = False
                break
        if ok:
            break
    sys.stderr.write(f'sb {sb} yBbar {gb} ubar {gu} leads {"".join(str(min(x, 9)) for x in leads)}\n')
    gt = g
    if not erd:
        g1 = st.place(last[1] + 4, yaw(1))
        gx = g1 + 3
        while st.lgw[gx] or st.sca[gx] or st.sca[gx + 1] or st.lgw[gx + 1]:
            gx += 1
        gb1 = st.barrier_after(gx, 'ya1')

    gp = g + 1
    gfree = max(gu, gt + 1)
    for cc in range(4):
        o1, o2 = pre(cc)
        gp = st.place(gp, o1)
        if cc == 0:
            e2, e3, e4 = epi(0)
            assert e2g > gt
            g = e2g
            gp = st.place(max(g + LR, gp), [f'v_mul_f32 {ya[w]}, {gq[w]}, {ya[w]}' for w in range(4)] + [f'v_sub_f32 {G[0]}, 1.0, {G[0]}'])
            g = st.place(max(gp, gy + LR - 1), [f'v_fmac_f32 {ya[w]}, {G[0]}, {Y[w][0]}' for w in range(4)] + e3[4:])
            gfree = g + 1
            g = st.place(g + 1, e4)
            sys.stderr.write(f'store {cc} at gap {g} of {len(mf)}\n')
            gp += 1
            continue
        gp = st.place(max(gp, gy + LR), o2)
        if cc < 3:
            e2, e3, e4 = epi(cc)
            if erd:
                g = erd[cc]
                assert g - 1 >= gfree, (cc, g, gfree)
            else:
                if cc == 1:
                    gfree = max(gfree, gb1)
                if cc == 2:
                    g2 = st.place(last[2] + 4, yaw(2))
                    gfree = max(gfree, st.barrier_after(g2 + 3, 'ya2'))
                g = st.place(gfree, e2)
            g = st.place(max(g + LR, gp), e3)
            gfree = g + 1
            gp = g + 1
            g = st.place(g + 1, e4)
            sys.stderr.write(f'store {cc} at gap {g} of {len(mf)}\n')
    for cc, g in enumerate(o.get('fl', [])):
        st.place(g, [f'buffer_store_dwordx2 {qn[2 * cc:2 * cc + 2]}, {c.aOf}, {c.srdo}, {c.po[cc - 1] if cc else 0} offen{o.get("flm", SC)}'])
    assert not st.tail
    for nm in (c.stamps or []):
        if nm[0] == 'g' and nm[1:].isdigit():
            st.blk[int(nm[1:])] += [x[1].text for x in k.capture(stamp, k, c, nm)]
    for pat in c.drop:
        st.vec = [[x for x in g_ if not x.startswith(pat) or '@' in x] for g_ in st.vec]
        st.sca = [[x for x in g_ if not x.startswith(pat)] for g_ in st.sca]
    st.emit(k)
    stamp(k, c, 'conv')
    for x in yaw(3):
        k(x.split('@')[0])
    k('s_waitcnt lgkmcnt(0)')
    k('s_barrier')
    e2, e3, e4 = epi(3)
    for ins in e2 + e3 + e4:
        k(ins)


def sync_go(k, c):
    s, v = k.s, k.v
    k(f's_lshl2_add_u32 {c.t0}, {c.w}, s2')
    k(f's_cmp_ge_u32 {c.t0}, 4')
    lab = k.begin_skip('s_cbranch_scc1', 'nogo')
    a, o = v.get(), v.get()
    k(f's_lshl_b32 {c.t0}, s2, 6')
    k(f'v_lshl_add_u32 {a}, {c.n}, 2, {c.t0}')
    k(f'v_mov_b32 {o}, 1')
    k('s_mov_b64 exec, 0xffff')
    k(f'global_store_dword {a}, {o}, {c.pdbg}{SC} ; untracked')
    k('s_mov_b64 exec, -1')
    v.put(a, o)
    k.end_skip(lab)


def sync_pre(k, c):
    s, v = k.s, k.v
    c.go, c.ago, c.az, c.aat, c.apoll, c.one = (v.get() for _ in range(6))
    k(f'v_lshlrev_b32 {c.ago}, 6, {c.g}')
    k(f'global_load_dword {c.go}, {c.ago}, {c.pdbg}{SC}')
    k(f'v_mov_b32 {c.az}, 0')


def sync_addrs(k, c):
    s, v = k.s, k.v
    m = s.get(2)
    k(f's_and_b32 {c.t0}, {c.j if c.o.get("mix", 1) else "s2"}, {NL - 1}')
    k(f's_lshl_b32 {c.t0}, {c.t0}, 7')
    k(f's_add_u32 {c.t0}, {c.t0}, {COFF}')
    k(f'v_cmp_gt_u32 {m}, {c.nrep}, v0')
    k(f'v_lshl_add_u32 {c.aat}, v0, 11, {c.t0}')
    k(f's_and_b32 {c.t0}, {c.x}, {c.nrep - 1}')
    k(f's_lshl_b32 {c.t0}, {c.t0}, 11')
    k(f's_add_u32 {c.t0}, {c.t0}, {COFF}')
    k(f'v_cndmask_b32 {c.aat}, 2.0, {c.aat}, {m}')
    k(f'v_lshl_add_u32 {c.apoll}, {c.n}, 7, {c.t0}')
    k(f'v_mov_b32 {c.one}, 1')
    s.put(m)


def sync_arrive(k, c):
    s, v = k.s, k.v
    if c.stamps and 'sack' in c.stamps:
        k.waitfor(vm='stores')
        stamp(k, c, 'sack')
    k.waitfor(c.go, vm='stores')
    stamp(k, c, 'ack')
    k(f'v_cmp_eq_u32 vcc, 0, {c.go}')
    k(f's_mov_b32 {c.t1}, 0')
    lab = k.begin_skip('s_cbranch_vccz', 'gook')
    lp = k.loop_label('gospin')
    k(f'global_load_dword {c.go}, {c.ago}, {c.pdbg}{SC}')
    k(f's_add_u32 {c.t1}, {c.t1}, 1')
    k(f's_lshr_b32 {c.t2}, {c.t1}, 20')
    k('s_waitcnt vmcnt(0)')
    k(f'v_or_b32 {c.go}, {c.t2}, {c.go}')
    k(f'v_cmp_eq_u32 vcc, 0, {c.go}')
    k(f's_cbranch_vccnz {lp}')
    k.end_skip(lab)
    k('s_barrier')
    k(f'buffer_atomic_add {c.one}, {c.aat}, {c.srdws}, 0 offen{SC}')
    v.put(c.az, c.ago, c.aat, c.one)


def sync_poll(k, c):
    k(f's_cmp_lg_u32 {c.w}, 0')
    lab = k.begin_skip('s_cbranch_scc1', 'nopoll0')
    k('s_mov_b64 exec, 0xffff')
    k(f'global_load_dword {c.go}, {c.apoll}, {c.pws}{SC} ; untracked')
    k('s_mov_b64 exec, -1')
    k.end_skip(lab)


def sync_wait(k, c):
    s, v = k.s, k.v
    d = c.go
    k(f's_cmp_lg_u32 {c.w}, 0')
    lab0 = k.begin_skip('s_cbranch_scc1', 'nopoll')
    k('s_mov_b64 exec, 0xffff')
    k(f's_mov_b32 {c.t1}, 0')
    k(f's_mov_b32 {c.t2}, {256 // NL}')
    k.raw(f'    s_waitcnt vmcnt({c.after_poll})')
    lp = k.loop_label('poll')
    k(f'v_cmp_gt_u32 vcc, {c.t2}, {d}')
    k('s_nop 1')
    k('s_and_b64 exec, exec, vcc')
    lab = k.begin_skip('s_cbranch_scc0', 'done')
    k(f'global_load_dword {d}, {c.apoll}, {c.pws}{SC} ; untracked')
    k(f's_add_u32 {c.t1}, {c.t1}, 1')
    k(f's_cmp_lt_u32 {c.t1}, 0x100000')
    k(f's_cselect_b32 {c.t2}, {256 // NL}, 0')
    k('s_waitcnt vmcnt(0)')
    k(f's_branch {lp}')
    k.end_skip(lab)
    k('s_mov_b64 exec, -1')
    k.end_skip(lab0)
    k('s_barrier')
    v.put(c.apoll, d)


def kern(opts):
    k = Kern(NAME + '_kernel')
    c = Ctx()
    c.stamps = opts.get('stamps', None)
    c.stretch = opts.get('stretch', None)
    c.clk = 's_memtime' if opts.get('cyc') else 's_memrealtime'
    k.c = c
    c.drop = opts.get('drop', [])
    c.o = opts
    c.ne = opts.get('ne', 2)
    c.nrep = NREP
    c.zlate = opts.get('zlate', 1)
    c.zdma = opts.get('zdma', 0)
    c.dfold = opts.get('dfold', 1)
    c.qx = opts.get('qx', 0)
    c.zt10 = opts.get('zt10', 0)
    c.ut0 = opts.get('ut0', 0)
    setup(k, c)
    c.mhi = k.s.get()
    k.hold()
    C = k.capture(load_addrs, k, c) + k.capture(consts_b, k, c) + k.capture(x_addrs, k, c)
    C += k.capture(store_addrs, k, c) + k.capture(consts_a, k, c)
    npre, d0 = opts.get('npre0', 40), opts.get('delay', 70)
    k.items += C[:npre]
    first_loads(k, c)
    hp = opts.get('hpos', 'end')
    Lh = [('i', I(x)) for x in c.Lh]
    if hp == 'q':
        hd = opts.get('hd', 20)
        k.items += C[npre:npre + hd]
        k.interleave(C[npre + hd:npre + d0], Lh, opts.get('hev', 8))
    else:
        dp = opts.get('dp', 0) if opts.get('pf') else 0
        k.items += C[npre:npre + dp]
        if opts.get('pf'):
            line_prefetch(k, c)
        k.interleave(C[npre + dp:npre + d0], [('i', I(x)) for x in c.Lq], 12)
    stamp(k, c, 'd0')
    if hp == 'k':
        c.loads = Lh + c.loads
    if hp == 'v':
        c.loads = c.loads[:12] + Lh + c.loads[12:]
    if hp == 'e':
        c.loads = c.loads + Lh
    k.interleave(C[npre + d0:], c.loads, opts.get('every', 2))
    k(f's_mov_b32 {c.mhi}, 0xffff0000')
    if hp == 'end':
        k.items += Lh
    k.release()
    k.s.put(c.srdk)
    stamp(k, c, 'ca')
    if opts.get('j1'):
        page_jump(k, c)
    p1_dft(k, c)
    stamp(k, c, 'dft1')
    p1_kv(k, c)
    stamp(k, c, 'kv')
    stamp(k, c, 'p_ack', 's_waitcnt vmcnt(0)')
    sync_pre(k, c)
    c.Pv = k.v.get(4, 1)
    c.sh = k.s.get()
    k(f's_lshl_b32 {c.sh}, {c.tau}, 4')
    k(f's_xor_b32 {c.sh}, {c.sh}, 16')
    p2_hpre(k, c)
    sv = c.t0, c.t1
    c.t0, c.t1 = k.s.get(), k.s.get()
    k.hold()
    c.fill = k.capture(sync_addrs, k, c) + k.capture(out_addrs, k, c)
    nfirst = len(c.fill)
    c.fill += k.capture(p2_addrs, k, c) + k.capture(p2_consts, k, c) + k.capture(p2_dfrag, k, c)
    ntot = len(c.fill)
    heldv, helds = k.v.held, k.s.held
    k.v.held = k.s.held = None
    c.t0, c.t1 = sv
    prog = opts.get('prog', 'hL0aP1qFqHp2w3')
    for ch in prog:
        if ch in 'aq':
            while ntot - len(c.fill) < nfirst:
                fill(k, c, 1)
        if ch == 'h':
            p2_hstage(k, c, 0, c.ne)
        elif ch == 'H':
            p2_hstage(k, c, c.ne, 4)
        elif ch == 'L':
            for x in c.Lh2:
                k(x)
        elif ch.isdigit():
            p2_afrags(k, c, int(ch), opts.get('nfill', 8))
        elif ch == 'f':
            fill(k, c, 16)
        elif ch == 'F':
            fill(k, c, 10000)
        elif ch == 'a':
            stamp(k, c, 'shadow')
            sync_arrive(k, c)
            stamp(k, c, 'arr')
        elif ch == 'P':
            q_prefetch(k, c)
        elif ch == 'q':
            narrow_q(k, c, 1)
        elif ch == 'p':
            sync_poll(k, c)
            c.poll_at = len(k.items)
        elif ch == 'w':
            fill(k, c, 10000)
            c.after_poll = sum(1 for it in k.items[c.poll_at:] if it[0] == 'i' and it[1].is_vm)
            stamp(k, c, 'af')
            sync_wait(k, c)
            stamp(k, c, 'sync')
            p2_xloads(k, c)
    k.v.put(*heldv, c.ah, c.aHr)
    k.s.put(*helds)
    if hasattr(c, 'qpf'):
        k.v.put(c.qpf)
    k.v.put(c.l, c.l16, c.n, c.g)
    if opts.get('j2', 1):
        page_jump(k, c)
    stamp(k, c, 'xiss')
    stamp(k, c, 'p_x', 's_waitcnt vmcnt(0)')
    p2_main(k, c)
    stamp(k, c, 'epi')
    stamp(k, c, 'end', 's_waitcnt vmcnt(0)')
    stamps_out(k, c)
    k.raw(f'{c.end}:')
    k('s_endpgm')
    return k


HEADER = open('cdna_kernels/%s.s.ref' % NAME).read().split('; Override launch')[0]


def build(opts):
    k = kern(opts)
    abl = opts.get('abl', '')
    if abl:
        c = k.c
        def drop(it):
            if it[0] != 'i':
                return False
            t = it[1].text
            if 'q' in abl and (t.startswith('buffer_load_dwordx2') or (t.startswith('global_load_dword ') and str(c.pq) in t)):
                return True
            if 'h' in abl and t.startswith('global_load_dwordx4') and str(c.ph) in t:
                return True
            if 'z' in abl and t in c.ztxt:
                return True
            if 'y' in abl and t == c.ztxt[1]:
                return True
            if 'u' in abl and t.startswith('global_store_dwordx4') and 'offset' in t:
                return True
            if 'b' in abl and t.startswith('s_branch') and 'poll' in t:
                return True
            if 'o' in abl and t.startswith('buffer_store_dwordx2') and ', 0 offen' not in t:
                return True
            if 'a' in abl and t.startswith('ds_read_b64 a'):
                return True
            if 'm' in abl and t.startswith('v_mfma') and ', a[' in t and int(t.split(', a[')[1].split(':')[0]) % 8 == 4:
                return True
            return False
        k.items = [it for it in k.items if not drop(it)]
    body = k.finalize()
    sys.stderr.write(f'{k.stats} vhi={k.v.hi_water} shi={k.s.hi_water}\n')
    out = [HEADER.rstrip('\n'), f'; @launch grid=(256,1,1) block=(256,1,1) lds={LDS_BYTES}',
           '.amdgcn_target "amdgcn-amd-amdhsa--gfx950"', '.text',
           *(['.p2align 12', f'.fill {(4096 - 768 + opts.get("entry", 0)) % 4096 // 4}, 4, 0xbf800000'] if opts.get('page', True) else []),
           f'.globl {k.name}', '.p2align 8', f'.type {k.name},@function', f'{k.name}:', body,
           '.section .rodata,"a"', '.p2align 6', f'.amdhsa_kernel {k.name}',
           '  .amdhsa_next_free_vgpr 512', '  .amdhsa_next_free_sgpr 102', '  .amdhsa_accum_offset 256',
           '  .amdhsa_group_segment_fixed_size 0', '  .amdhsa_kernarg_size 120', '  .amdhsa_user_sgpr_count 2',
           '  .amdhsa_user_sgpr_kernarg_segment_ptr 1', '  .amdhsa_system_sgpr_workgroup_id_x 1',
           '  .amdhsa_float_denorm_mode_32 3', '.end_amdhsa_kernel']
    return '\n'.join(out) + '\n'


if __name__ == '__main__':
    opts = {}
    for a in sys.argv[2:]:
        kk, vv = a.split('=', 1)
        opts[kk] = eval(vv)
    open(sys.argv[1], 'w').write(build(opts))
```

```python
import sys, struct
from asmgen import Kern, R, I

NAME = 'gated_mix__ssm_conv_h3__spectral_fnet__prompt'
UOFF, ZOFF, QOFF, GOFF, COFF, SOFF = 0, 2 << 20, 4 << 20, 6 << 20, (6 << 20) + 65536, 8 << 20
STM = ' sc1'
L_X = 0
L_H = 10240
HC = 4224
HS = 2 * HC
PS, WS = 1280, 5152
L_Z = 1024
L_U = 10240
L_YB = L_U + 4 * WS
L_YA = L_YB + 16 * 1088
YAP, YAW, YAI = 5120, 1280, 288
L_G = L_YA + 4 * YAP
L_H = L_G + 2048
LDS_BYTES = L_H + 4 * HS
NREP = 8
NL = 16
SC = ' sc1'


def fl(x):
    return '0x%08x' % struct.unpack('<I', struct.pack('<f', x))[0]


class Ctx:
    pass


def stamp(k, c, name, pre=None):
    if c.stamps and name in c.stamps:
        if pre:
            k(pre)
        i = c.stamps.index(name)
        k(f'{c.clk} {c.st[2 * i:2 * i + 2]}')
        k('s_waitcnt lgkmcnt(0)')


def stamps_out(k, c):
    if not c.stamps:
        return
    if c.stretch is not None:
        k(f's_memrealtime {c.st[22:24]}')
        k(f's_sub_u32 {c.t0}, {c.st[2]}, {c.st[0]}')
        k(f's_mul_i32 {c.t0}, {c.t0}, {c.stretch}')
        k(f's_min_u32 {c.t0}, {c.t0}, 100000')
        k('s_waitcnt lgkmcnt(0)')
        k(f's_mov_b32 {c.t1}, {c.st[22]}')
        lp = k.loop_label('stretch')
        k(f's_memrealtime {c.st[22:24]}')
        k('s_waitcnt lgkmcnt(0)')
        k(f's_sub_u32 {c.t2}, {c.st[22]}, {c.t1}')
        k(f's_cmp_lt_u32 {c.t2}, {c.t0}')
        k(f's_cbranch_scc1 {lp}')
        return
    t = k.v.get(2)
    a = k.v.get()
    k(f's_lshl_b32 {c.t0}, s2, 2')
    k(f's_add_u32 {c.t0}, {c.t0}, {c.w}')
    k(f's_lshl_b32 {c.t0}, {c.t0}, 7')
    k(f's_add_u32 {c.t0}, {c.t0}, {SOFF}')
    k(f'v_mov_b32 {a}, {c.t0}')
    for i in range(len(c.stamps)):
        k(f'v_mov_b32 {t[0]}, {c.st[2 * i]}')
        k(f'v_mov_b32 {t[1]}, {c.st[2 * i + 1]}')
        k(f'global_store_dwordx2 {a}, {t}, {c.pws} offset:{8 * i}')
    k.v.put(t, a)


def sincos(k, base, step, mults, cs, sn, negsin=False):
    for i, m in enumerate(mults):
        if m and mults[i - 1] == m - 1:
            k(f'v_add_f32 {sn[i]}, {step}, {sn[i - 1] if mults[i - 1] else base}')
        elif m:
            k(f'v_fmamk_f32 {sn[i]}, {step}, {fl(m)}, {base}')
    for i, m in enumerate(mults):
        src = base if m == 0 else sn[i]
        k(f'v_cos_f32 {cs[i]}, {src}')
        k(f'v_sin_f32 {sn[i]}, {"-" if negsin else ""}{src}')


def cmul_tw(k, a, b, cc, ss, t):
    for h in (0, 2):
        k(f'v_pk_mul_f32 {t[h:h + 2]}, {b[h:h + 2]}, {ss[h:h + 2]}')
        k(f'v_pk_mul_f32 {b[h:h + 2]}, {b[h:h + 2]}, {cc[h:h + 2]}')
    for h in (0, 2):
        k(f'v_pk_fma_f32 {b[h:h + 2]}, {a[h:h + 2]}, {ss[h:h + 2]}, {b[h:h + 2]} neg_lo:[1,0,0] neg_hi:[1,0,0]')
        k(f'v_pk_fma_f32 {a[h:h + 2]}, {a[h:h + 2]}, {cc[h:h + 2]}, {t[h:h + 2]}')


WIDE = ('ds_write_b128', 'v_exp', 'v_rcp')


class Stream:
    def __init__(self, mfmas):
        self.m = list(mfmas)
        n = len(self.m)
        self.vec = [[] for _ in range(n)]
        self.sca = [[] for _ in range(n)]
        self.lgw = [None] * n
        self.vmw = [None] * n
        self.tail = []
        self.nods = set()
        self.blk = [[] for _ in range(n)]

    def place(self, g, instrs, per_gap=2):
        last = g
        used = 0
        for ins in instrs:
            while g < len(self.m):
                mem = ins.startswith(('ds_', 'global_', 'buffer_'))
                ok = len(self.vec[g]) < 2 and used < per_gap
                if ok and mem and used and not self.vec[g][-1].startswith(('ds_', 'global_', 'buffer_')):
                    ok = False
                if ok and mem and any(x.startswith('ds_') for x in self.vec[g]) and ins.startswith('ds_'):
                    ok = False
                if ok and ins.startswith('ds_') and g in self.nods:
                    ok = False
                if ok and ins.startswith('ds_write_b128') and (self.vec[g] or any(
                        x.startswith('ds_') for gg in (g + 1, g + 2) if gg < len(self.m) for x in self.vec[gg])):
                    ok = False
                if ok and (ins.startswith(WIDE) and self.vec[g] or any(x.startswith(WIDE) for x in self.vec[g])):
                    ok = False
                if ok:
                    break
                g += 1
                used = 0
            if g >= len(self.m):
                self.tail.append(ins)
                last = len(self.m)
                continue
            self.vec[g].append(ins)
            if ins.startswith('ds_write_b128'):
                self.nods |= {g + 1, g + 2}
            used += 1
            last = g
        return last

    def scalar(self, g, ins):
        self.sca[g].append(ins)

    def barrier_after(self, g, mark):
        self.lgw[g] = mark
        self.sca[g + 1].append('s_barrier')
        return g + 1

    def emit(self, k):
        isa = lambda x: x.split('@')[0]
        for i, m in enumerate(self.m):
            k(m)
            mem = [x for x in self.vec[i] if x.startswith(('ds_', 'global_', 'buffer_'))]
            alu = [x for x in self.vec[i] if x not in mem]
            look = [isa(x) for x in self.vec[i]]
            if i + 1 < len(self.m):
                look.append(self.m[i + 1])
                if self.sca[i + 1]:
                    look += [isa(x) for x in self.vec[i + 1]]
                    if i + 2 < len(self.m):
                        look.append(self.m[i + 2])
            k.waitfor(*look, lg=self.lgw[i], vm=self.vmw[i])
            for x in self.sca[i]:
                k(x)
            for x in mem + alu:
                k(isa(x))
                if '@' in x:
                    k.mark(x.split('@')[1])
            for x in self.blk[i]:
                if x.startswith('RAW '):
                    k.raw(x[4:])
                else:
                    k(x)
        for x in self.tail:
            k(isa(x))
            if '@' in x:
                k.mark(x.split('@')[1])


def setup(k, c):
    s, v = k.s, k.v
    c.end = k.label('end')
    k('s_cmp_ge_u32 s2, 256')
    k(f's_cbranch_scc1 {c.end}')
    a0 = s.get(8, 4); a1 = s.get(4, 4); a2 = s.get(8, 4)
    k(f's_load_dwordx8 {a0}, s[0:1], 0')
    k(f's_load_dwordx8 {a2}, s[0:1], 88')
    k(f's_load_dwordx4 {a1}, s[0:1], 32')
    c.pq, c.pk, c.pv, c.psk = a0[0:2], a0[2:4], a0[4:6], a0[6:8]
    c.ph, c.pD = a1[0:2], a1[2:4]
    c.pgw, c.pout, c.pdbg, c.pws = a2[0:2], a2[2:4], a2[4:6], a2[6:8]
    if c.stamps:
        c.st = s.get(24, 4)
        if 'start' in c.stamps:
            i = c.stamps.index('start')
            k(f'{c.clk} {c.st[2 * i:2 * i + 2]}')
    pc = s.get(2)
    c.dummy, a = v.get(), v.get()
    k(f's_getpc_b64 {pc}')
    here = k.label('pc')
    k.raw(f'{here}:')
    k(f's_lshl_b32 s3, s2, 9')
    k(f's_and_b32 s3, s3, 0x3000')
    k(f'v_lshl_add_u32 {a}, v0, 4, s3')
    k(f'v_min_u32 {a}, {c.end}-{here}, {a}')
    k(f'global_load_dword {c.dummy}, {a}, {pc}')
    s.put(pc)
    v.put(a)
    c.x, c.j, c.w, c.t0, c.t1, c.t2, c.s0, c.iA, c.E, c.tau = (s.get() for _ in range(10))
    c.l, c.l16, c.n, c.g = (v.get() for _ in range(4))
    t0, t1 = c.t0, c.t1
    k(f'v_lshrrev_b32 {c.l}, 6, v0')
    k(f's_and_b32 {c.x}, s2, 7')
    k(f'v_readfirstlane_b32 {c.w}, {c.l}')
    k(f's_bfe_u32 {t1}, s2, 0x40003')
    k(f'v_and_b32 {c.l}, 63, v0')
    k(f'v_lshlrev_b32 {c.l16}, 4, {c.l}')
    k(f's_lshl4_add_u32 {t0}, {c.x}, {t1}')
    k(f's_sub_u32 {t1}, 256, {t0}')
    k(f's_cmp_eq_u32 {t0}, 0')
    k(f's_cselect_b32 {t1}, 128, {t1}')
    k(f's_cmp_lt_u32 s2, 128')
    k(f's_cselect_b32 {c.s0}, {t0}, {t1}')
    k(f's_and_b32 {t0}, {c.w}, 2')
    k(f's_add_u32 {c.iA}, {c.w}, {t0}')
    k(f's_lshl_b32 {t0}, {c.iA}, 8')
    k(f's_add_u32 {t0}, {t0}, {c.s0}')
    k(f's_lshl_b32 {t0}, {t0}, 10')
    c.aq = aq = v.get(4, 1)
    k(f'v_add_u32 {aq[0]}, {t0}, {c.l16}')
    k(f's_sub_u32 {t1}, {2048 * 1024 + 1008}, {t0}')
    k(f's_bitset0_b32 {t1}, 21')
    k(f'v_sub_u32 {aq[1]}, {t1}, {c.l16}')
    k(f'v_add_u32 {aq[2]}, {512 * 1024}, {aq[0]}')
    k(f'v_sub_u32 {aq[3]}, {1536 * 1024 + 1008}, {aq[0]}')
    c.qd = [v.get(4), v.get(4)]
    c.qm = [v.get(4), v.get(4)]
    c.K, c.V = v.get(11, 1), v.get(8, 1)
    c.gw, c.skw = v.get(4), v.get(4)
    c.H = [v.get(4) for _ in range(4)]
    c.Dv = v.get()
    c.srdk, c.srdws = s.get(4, 4), s.get(4, 4)


def load_addrs(k, c):
    s, v = k.s, k.v
    t0, t1 = c.t0, c.t1
    c.P, c.cb, akv, akh, ask, c.ah, aD = (v.get() for _ in range(7))
    k(f's_lshr_b32 {c.j}, s2, 3')
    k(f'v_and_b32 {c.n}, 15, v0')
    k(f'v_lshrrev_b32 {c.g}, 4, {c.l}')
    k(f'v_and_b32 {c.P}, 31, v0')
    k(f'v_lshrrev_b32 {c.cb}, 5, {c.l}')
    k(f's_lshl3_add_u32 {t0}, {c.j}, {c.w}')
    k(f's_lshl4_add_u32 {t0}, {t0}, 8')
    k(f's_lshl2_add_u32 {t0}, {t0}, {c.x}')
    k(f's_lshl_b32 {t0}, {t0}, 7')
    k(f'v_lshl_add_u32 {akv}, {c.cb}, 15, {t0}')
    k(f'v_lshl_add_u32 {akv}, {c.P}, 2, {akv}')
    k(f'v_subrev_u32 {akh}, 7168, {akv}')
    k(f's_mov_b32 {c.srdk[2]}, {2 << 20}')
    k(f's_mov_b32 {c.srdk[3]}, 0x00020000')
    k(f's_mov_b32 {c.srdws[2]}, {1 << 28}')
    k(f's_mov_b32 {c.srdws[3]}, 0x00020000')
    k(f's_lshr_b32 {t0}, s2, 4')
    k(f's_lshl4_add_u32 {c.E}, {c.x}, {t0}')
    k(f's_and_b32 {c.tau}, {c.j}, 1')
    k(f's_lshl_b32 {t1}, {c.x}, 9')
    k(f'v_lshl_add_u32 {ask}, {c.P}, 4, {t1}')
    k(f's_lshl2_add_u32 {t0}, {c.E}, {c.w}')
    k(f's_lshl_b32 {t1}, {t0}, 12')
    k(f'v_add_u32 {c.ah}, {t1}, {c.l16}')
    k(f'v_lshrrev_b32 {aD}, 11, {c.ah}')
    c.Lq = []
    if c.qx:
        ap = v.get(2, 1)
        c.qp = [v.get(4), v.get(4)]
        k(f'v_and_b32 {ap[0]}, 1, {c.g}')
        k(f'v_lshl_add_u32 {ap[0]}, {ap[0]}, 2, {c.cb}')
        k(f's_lshl3_add_u32 {t0}, {c.s0}, {c.w}')
        k(f's_lshl_b32 {t0}, {t0}, 7')
        k(f'v_lshl_add_u32 {ap[0]}, {ap[0]}, 18, {t0}')
        k(f'v_lshl_add_u32 {ap[0]}, {c.n}, 3, {ap[0]}')
        k(f'v_add_u32 {ap[1]}, {512 * 1024}, {ap[0]}')
        c.Lq = [f'global_load_dwordx2 {c.qp[eh][2 * r:2 * r + 2]}, {ap[r]}, {c.pq} offset:{512 * eh}' for eh in range(2) for r in range(2)]
        v.put(ap)
    nt = lambda ch: c.o.get('ntm', ' nt') if ch in c.o.get('nt', '') else ''
    L = [f'buffer_load_dword {c.K[t]}, {akh}, {c.srdk}, 0 offen offset:{1024 * t}{nt("k")}' for t in range(3)]
    L += [f'global_load_dword {c.K[3 + t]}, {akv}, {c.pk} offset:{1024 * (t - 4)}{nt("k")}' for t in range(8)]
    L += [f'global_load_dwordx4 {c.skw}, {ask}, {c.psk}']
    L += [f'global_load_dword {c.V[t]}, {akv}, {c.pv} offset:{1024 * (t - 4)}{nt("v")}' for t in range(8)]
    Lh = [f'global_load_dwordx4 {c.H[n]}, {c.ah}, {c.ph} offset:{1024 * n}{nt("h")}' for n in range(4)]
    c.Lh, c.Lh2 = Lh[:c.ne] + [f'global_load_ushort {c.Dv}, {aD}, {c.pD}'], Lh[c.ne:]
    c.loads = [('i', I(x)) for x in L]
    v.put(akv, akh, ask, aD)


def first_loads(k, c):
    s, v = k.s, k.v
    aq = c.aq
    ntq = c.o.get('ntm', ' nt') if 'q' in c.o.get('nt', '') else ''
    k('s_waitcnt lgkmcnt(0)')
    stamp(k, c, 'karg')
    k(f'global_load_dwordx4 {c.qd[0]}, {aq[0]}, {c.pq}{ntq}')
    k(f's_mov_b32 {c.srdk[0]}, {c.pk[0]}')
    k(f'global_load_dwordx4 {c.qm[0]}, {aq[1]}, {c.pq}{ntq}')
    k(f's_and_b32 {c.srdk[1]}, {c.pk[1]}, 0xffff')
    k(f'global_load_dwordx4 {c.qd[1]}, {aq[2]}, {c.pq}{ntq}')
    k(f's_mov_b32 {c.srdws[0]}, {c.pws[0]}')
    k(f'global_load_dwordx4 {c.qm[1]}, {aq[3]}, {c.pq}{ntq}')
    k(f's_and_b32 {c.srdws[1]}, {c.pws[1]}, 0xffff')
    k('s_cmp_ge_u32 s2, 4')
    lab = k.begin_skip('s_cbranch_scc1', 'noclear')
    z4 = c.H[3]
    k(f's_lshl_b32 s3, s2, 12')
    k(f's_add_u32 s3, s3, {COFF}')
    k(f'v_lshl_add_u32 {aq[0]}, v0, 4, s3')
    k(f'v_pk_mov_b32 {z4[0:2]}, 0, 0')
    k(f'v_pk_mov_b32 {z4[2:4]}, 0, 0')
    k(f'global_store_dwordx4 {aq[0]}, {z4}, {c.pws}{SC} ; untracked')
    k.end_skip(lab)
    k(f'global_load_dwordx4 {c.gw}, {c.l16}, {c.pgw}')
    v.put(aq)


def line_prefetch(k, c):
    s, v = k.s, k.v
    mode = c.o.get('pf')
    b, o, sh = s.get(2), s.get(), s.get()
    c.pfd = v.get()
    if mode == 'h':
        k(f's_lshl1_add_u32 {o}, {c.E}, {c.tau}')
        k(f's_lshl2_add_u32 {o}, {o}, {c.w}')
        k(f's_lshl_b32 {o}, {o}, 11')
        k(f'v_lshl_add_u32 {c.pfd}, {c.l}, 5, {o}')
        k(f'global_load_dword {c.pfd}, {c.pfd}, {c.ph}')
    else:
        k(f's_lshl_b32 {o}, {c.j}, 9')
        k(f's_add_u32 {o}, {o}, {c.x}')
        k(f's_lshl_b32 {o}, {o}, 7')
        k(f's_lshl1_add_u32 {sh}, {c.E}, {c.tau}')
        k(f's_lshl1_add_u32 {sh}, {sh}, {c.w}')
        k(f's_sub_u32 {sh}, {sh}, 2')
        k(f's_lshl_b32 {sh}, {sh}, 12')
        k(f's_cmp_eq_u32 {c.w}, 0')
        k(f's_cselect_b64 {b}, {c.pk}, {c.pv}')
        k(f's_cmp_lt_u32 {c.w}, 2')
        k(f's_cselect_b64 {b}, {b}, {c.ph}')
        k(f's_cselect_b32 {o}, {o}, {sh}')
        k(f's_cselect_b32 {sh}, 10, 6')
        k(f'v_lshlrev_b32 {c.pfd}, {sh}, {c.l}')
        k(f'v_add_u32 {c.pfd}, {o}, {c.pfd}')
        k(f'global_load_dword {c.pfd}, {c.pfd}, {b}')
    s.put(b, o, sh)


def consts_b(k, c):
    s, v = k.s, k.v
    base, step, t = v.get(), v.get(), v.get()
    cs, sn = v.get(8), v.get(8)
    c.sg = s.get()
    c.CBc = [v.get(4), v.get(4)]
    c.CBs = [v.get(4)]
    c.CBn = [v.get(4)]
    c.a2, c.gea = v.get(), v.get()
    k(f'v_mul_u32_u24 {base}, {c.g}, {c.n}')
    k(f'v_cvt_f32_u32 {step}, {c.n}')
    k(f'v_cvt_f32_u32 {base}, {base}')
    k(f'v_mul_f32 {step}, {fl(1 / 32)}, {step}')
    k(f'v_mul_f32 {base}, {fl(1 / 8)}, {base}')
    k(f's_mov_b32 {c.sg}, 0x80008000')
    sincos(k, base, step, [0, 1, 2, 3], cs, sn)
    k(f'v_bfe_i32 {t}, v0, 0, 1')
    k(f'v_and_b32 {t}, {c.sg}, {t}')
    for m in range(2):
        k(f'v_cvt_pk_bf16_f32 {c.CBc[0][m]}, {cs[2 * m]}, {cs[2 * m + 1]}')
        k(f'v_cvt_pk_bf16_f32 {c.CBs[0][m]}, {sn[2 * m]}, {sn[2 * m + 1]}')
    for m in range(2):
        k(f'v_xor_b32 {c.CBc[0][2 + m]}, {t}, {c.CBc[0][m]}')
        k(f'v_xor_b32 {c.CBs[0][2 + m]}, {t}, {c.CBs[0][m]}')
    k(f'v_lshrrev_b32 {c.a2}, 2, {c.n}')
    k(f'v_lshl_add_u32 {t}, {c.w}, 2, {c.a2}')
    k(f'v_mul_u32_u24 {c.gea}, {c.g}, {t}')
    k(f'v_cvt_f32_u32 {step}, {t}')
    k(f'v_cvt_f32_u32 {base}, {c.gea}')
    k(f'v_mul_f32 {step}, {fl(1 / 512)}, {step}')
    k(f'v_mul_f32 {base}, {fl(1 / 128)}, {base}')
    sincos(k, base, step, [0, 1, 2, 3, 16, 17, 18, 19], cs, sn)
    c.tw1c, c.tw1s = cs, sn
    c.cbx = []
    for m in range(4):
        c.cbx.append(f'v_xor_b32 {c.CBn[0][m]}, {c.sg}, {c.CBs[0][m]}')
    c.cbx.append(f'v_mov_b32 {c.CBc[1][0]}, 0xbf803f80')
    c.cbx += [f'v_mov_b32 {c.CBc[1][m]}, {c.CBc[1][0]}' for m in range(1, 4)]
    c.cbx_s = [c.sg]
    n = c.o.get('cbx', 8)
    for x in c.cbx[n:]:
        k(x)
    c.cbx = c.cbx[:n]
    v.put(base, step, t)


def x_addrs(k, c):
    s, v = k.s, k.v
    t0, t1 = c.t0, c.t1
    t, u = v.get(), v.get()
    c.aXw, c.aXr, c.aGw, c.aGr = (v.get() for _ in range(4))
    k(f's_and_b32 {t1}, {c.w}, 1')
    k(f's_mul_i32 {t0}, {c.iA}, 40')
    k(f's_add_u32 {t0}, {t0}, {t1}')
    k(f'v_lshl_add_u32 {c.aXw}, {t0}, 5, {c.l16}')
    k(f'v_bfe_u32 {t}, v0, 2, 2')
    k(f'v_and_b32 {u}, 8, v0')
    k(f'v_mul_u32_u24 {c.aXr}, {1280 + 32}, {t}')
    k(f'v_and_or_b32 {u}, v0, 3, {u}')
    k(f'v_lshl_add_u32 {u}, {c.g}, 3, {u}')
    k(f'v_lshl_add_u32 {c.aXr}, {u}, 3, {c.aXr}')
    k(f's_lshr_b32 {t0}, {c.w}, 1')
    k(f's_lshl1_add_u32 {t0}, {t1}, {t0}')
    k(f's_lshl_b32 {t0}, {t0}, 9')
    k(f's_add_u32 {t0}, {t0}, {L_G}')
    k(f'v_lshl_add_u32 {c.aGw}, {c.l}, 2, {t0}')
    k(f's_mov_b32 {t1}, {L_G}')
    k(f'v_lshl_add_u32 {c.aGr}, {c.l}, 5, {t1}')
    v.put(t, u)


def store_addrs(k, c):
    s, v = k.s, k.v
    t0, t1 = c.t0, c.t1
    t = v.get()
    c.aZ, c.aU, c.aGs = v.get(2, 1), v.get(), v.get()
    m = s.get(2)
    k(f's_lshl4_add_u32 {t0}, {c.w}, {ZOFF >> 10}')
    k(f's_lshl4_add_u32 {t0}, {t0}, {c.s0}')
    k(f's_lshl_b32 {t0}, {t0}, 6')
    k(f'v_lshl_add_u32 {t}, {c.g}, 4, {t0}')
    k(f'v_lshl_add_u32 {c.aZ[0]}, {c.n}, 16, {t}')
    k(f'v_and_b32 {c.aU}, 0xcf, v0')
    k(f'v_cmp_eq_u32 {m}, 0, {c.aU}')
    k(f'v_add_u32 {t}, {1 << 20}, {t}')
    k(f's_and_b32 {t0}, {c.s0}, 1')
    k(f'v_cndmask_b32 {c.aZ[1]}, 2.0, {t}, {m}')
    k(f's_mul_i32 {t0}, {t0}, 255')
    k(f's_add_u32 {t0}, {t0}, {c.s0}')
    if c.qx:
        c.aQ = v.get(2, 1)
        k(f's_lshl_b32 {t1}, {c.w}, 13')
        k(f's_add_u32 {t1}, {t1}, {t0}')
        k(f's_lshl_b32 {t1}, {t1}, 5')
        k(f's_add_u32 {t1}, {t1}, {QOFF}')
        k(f'v_lshl_add_u32 {t}, {c.g}, 4, {t1}')
        k(f'v_lshl_add_u32 {c.aQ[0]}, {c.n}, 14, {t}')
        k(f'v_add_u32 {c.aQ[1]}, {1 << 20}, {c.aQ[0]}')
    k(f's_lshl4_add_u32 {t0}, {t0}, {GOFF >> 1}')
    k(f'v_and_b32 {t}, 0xc6, v0')
    k(f'v_cmp_eq_u32 {m}, 0, {t}')
    k(f'v_and_b32 {t}, 1, v0')
    k(f'v_lshl_add_u32 {c.aGs}, {t}, 4, {t0}')
    k(f'v_lshrrev_b32 {c.aU}, 2, v0')
    k(f'v_add_lshl_u32 {c.aGs}, {c.aGs}, {c.aU}, 1')
    k(f'v_cndmask_b32 {c.aGs}, 2.0, {c.aGs}, {m}')
    k(f's_lshl_b32 {t0}, {c.x}, 9')
    k(f's_add_u32 {t0}, {t0}, {c.j}')
    k(f's_lshl2_add_u32 {t0}, {t0}, {c.w}')
    k(f's_lshl_b32 {t0}, {t0}, 7')
    if c.ut0:
        k(f'v_and_b32 {t}, 3, v0')
        k(f'v_lshl_add_u32 {t}, {c.cb}, 2, {t}')
        k(f'v_lshl_add_u32 {t}, {t}, 4, {t0}')
        k(f'v_lshrrev_b32 {c.aU}, 2, {c.P}')
        k(f'v_lshl_add_u32 {c.aU}, {c.aU}, 15, {t}')
    else:
        k(f'v_lshl_add_u32 {t}, {c.cb}, 1, {t}')
        k(f'v_lshl_add_u32 {t}, {t}, 4, {t0}')
        k(f'v_lshrrev_b32 {c.aU}, 1, {c.P}')
        k(f'v_lshl_add_u32 {c.aU}, {c.aU}, 14, {t}')
    s.put(m)
    v.put(t, c.P, c.cb)


def consts_a(k, c):
    s, v = k.s, k.v
    ip, base, step = (v.get() for _ in range(3))
    cs, sn = v.get(4), v.get(4)
    c.sel = s.get(4, 2)
    sp, sig = s.get(), s.get()
    k(f's_movk_i32 {c.sel[0]}, 0x3f80')
    k(f's_movk_i32 {c.sel[2]}, 0x3f80')
    k(f's_lshr_b32 {c.t0}, {c.s0}, 7')
    k(f's_mul_i32 {sig}, {c.t0}, {c.sg}')
    k(f's_lshl_b32 {c.t0}, {c.t0}, 1')
    k(f's_mov_b32 {c.t2}, 0')
    k(f's_and_b32 {sp}, {c.s0}, 127')
    lab = k.begin_skip('s_cbranch_scc1', 'nospecial')
    k(f's_lshl_b32 {c.t0}, {c.iA}, 8')
    k(f's_add_u32 {c.t0}, {c.t0}, {c.s0}')
    k(f'v_cvt_f32_u32 {base}, {c.t0}')
    k(f'v_mul_f32 {base}, {fl(1 / 4096)}, {base}')
    k(f'v_sub_f32 {step}, {fl(1 / 8)}, {base}')
    k(f'v_cos_f32 {base}, {base}')
    k(f'v_cos_f32 {step}, {step}')
    k(f's_mov_b32 {c.t0}, 1')
    k(f'v_cvt_pk_bf16_f32 {base}, {step}, {base}')
    k(f's_movk_i32 {c.t2}, 3584')
    k(f'v_readfirstlane_b32 {c.sel[2]}, {base}')
    k(f's_and_b32 {c.sel[0]}, {c.sel[2]}, 0xffff')
    k(f's_lshr_b32 {c.sel[2]}, {c.sel[2]}, 16')
    k.end_skip(lab)
    k(f's_lshl_b32 {c.sel[1]}, {c.sel[0]}, 16')
    k(f's_lshl_b32 {c.sel[3]}, {c.sel[2]}, 16')
    k(f'v_and_b32 {ip}, 3, v0')
    k(f'v_lshl_add_u32 {ip}, {ip}, 2, {c.t0}')
    k(f'v_lshl_add_u32 {base}, {c.gea}, 8, {c.t2}')
    k(f'v_mad_u32_u24 {base}, {ip}, {c.s0}, {base}')
    k(f'v_cvt_f32_u32 {step}, {ip}')
    k(f'v_cvt_f32_u32 {base}, {base}')
    k(f'v_mul_f32 {step}, {fl(-1 / 16)}, {step}')
    k(f'v_mul_f32 {base}, {fl(-1 / 4096)}, {base}')
    sincos(k, base, step, [0, 1, 2, 3], cs, sn)
    c.CAr = [v.get(4) for _ in range(4)]
    c.CAi = [v.get(4) for _ in range(4)]
    C, S = c.CAr[0], c.CAi[0]
    mo, m2, m12 = ip, base, step
    odd = s.get(2)
    k(f'v_bfe_i32 {mo}, v0, 2, 1')
    k(f'v_bfe_i32 {m2}, v0, 3, 1')
    for m in range(2):
        k(f'v_cvt_pk_bf16_f32 {C[m]}, {cs[2 * m]}, {cs[2 * m + 1]}')
        k(f'v_cvt_pk_bf16_f32 {S[m]}, {sn[2 * m]}, {sn[2 * m + 1]}')
    k(f's_mov_b32 {odd[0]}, 0xf0f0f0f0')
    k(f's_mov_b32 {odd[1]}, {odd[0]}')
    k(f'v_and_b32 {mo}, {c.sg}, {mo}')
    k(f'v_and_b32 {m2}, {c.sg}, {m2}')
    k(f'v_xor_b32 {m12}, {mo}, {m2}')
    for m in range(2):
        k(f'v_xor_b32 {C[2 + m]}, {sig}, {C[m]}')
        k(f'v_xor_b32 {S[2 + m]}, {sig}, {S[m]}')
    k(f's_cmp_lg_u32 {sp}, 0')
    lab = k.begin_skip('s_cbranch_scc1', 'nospecial')
    for m in range(2):
        k(f'v_mov_b32 {C[2 + m]}, {S[m]}')
        k(f'v_xor_b32 {S[2 + m]}, {c.sg}, {C[m]}')
    k.end_skip(lab)
    for m in range(4):
        k(f'v_cndmask_b32 {c.CAr[3][m]}, {C[m]}, {S[m]}, {odd}')
        k(f'v_cndmask_b32 {c.CAi[3][m]}, {S[m]}, {C[m]}, {odd}')
        k(f'v_xor_b32 {c.CAr[2][m]}, {C[m]}, {mo}')
        k(f'v_xor_b32 {c.CAi[2][m]}, {S[m]}, {mo}')
    for m in range(4):
        k(f'v_xor_b32 {c.CAr[1][m]}, {c.CAr[3][m]}, {m2}')
        k(f'v_xor_b32 {c.CAi[1][m]}, {c.CAi[3][m]}, {m12}')
        k(f'v_xor_b32 {c.CAr[3][m]}, {c.CAr[3][m]}, {m12}')
        k(f'v_xor_b32 {c.CAi[3][m]}, {c.CAi[3][m]}, {m2}')
    s.put(odd, sp, sig)
    v.put(ip, base, step, cs, sn, c.a2, c.gea)


def p1_dft(k, c):
    s, v = k.s, k.v
    f = v.get(8)
    o = v.get(4)
    X = v.get()
    if c.stamps and 'qarr' in c.stamps:
        k.waitfor(*c.qd, *c.qm)
        stamp(k, c, 'qarr')
    for r in range(2):
        A, M = c.qd[r], c.qm[r]
        lo, hi = c.sel[2 * r], c.sel[2 * r + 1]
        for m in range(4):
            k(f'v_dot2_f32_bf16 {f[2 * m]}, {A[m]}, {lo}, 0')
            k(f'v_dot2_f32_bf16 {f[2 * m + 1]}, {A[m]}, {hi}, 0')
        k(f'v_mov_b32_dpp {X}, {M[0]} wave_ror:1 row_mask:0xf bank_mask:0xf')
        src = [(X, 0), (M[3], 1), (M[3], 0), (M[2], 1), (M[2], 0), (M[1], 1), (M[1], 0), (M[0], 1)]
        for e in range(0 if 'x' in c.o.get('abl', '') else 8):
            k(f'v_dot2c_f32_bf16 {f[e]}, {hi if src[e][1] else lo}, {src[e][0]}')
        dst = o if r == 0 else c.qm[0]
        for m in range(4):
            k(f'v_cvt_pk_bf16_f32 {dst[m]}, {f[2 * m]}, {f[2 * m + 1]}')
        k(f'ds_write_b128 {c.aXw}, {dst} offset:{L_X + r * (2560 + 128)}')
    z = f[0:2]
    for m in range(4):
        for r in range(2):
            k(f'v_dot2_f32_bf16 {z[r]}, {c.qd[r][m]}, {c.gw[m]}, {z[r] if m else 0}')
    k('s_waitcnt lgkmcnt(0)')
    stamp(k, c, 'xt')
    k('s_barrier')
    v.put(o, X, c.qm[0], c.qm[1], c.aXw, c.qd[0], c.qd[1], c.gw)
    s.put(c.sel)
    F = [[v.get(4) for _ in range(4)] for _ in range(2)]
    tr = [f'ds_read_b64_tr_b16 {F[T][ks][2 * h:2 * h + 2]}, {c.aXr} offset:{L_X + 5120 * h + 256 * ks + 32 * T}'
          for T in range(2) for ks in range(4) for h in range(2)]
    ntr = c.o.get('ntr', 8)
    for x in tr[:ntr]:
        k(x)
    k(f'ds_write2st64_b32 {c.aGw}, {z[0]}, {z[1]} offset0:0 offset1:1')
    k.mark('gp')
    sync_go(k, c)
    Dr = [v.get(4), v.get(4)]
    Di = [v.get(4), v.get(4)]
    Re, Im, t = v.get(4), v.get(4), v.get(4)
    Hr, Hi = F[0][0:2], F[0][2:4]
    mf = []
    for T in range(2):
        for ks in range(4):
            mf.append(f'v_mfma_f32_16x16x32_bf16 {Dr[T]}, {F[T][ks]}, {c.CAr[ks]}, {Dr[T] if ks else 0}')
            mf.append(f'v_mfma_f32_16x16x32_bf16 {Di[T]}, {F[T][ks]}, {c.CAi[ks]}, {Di[T] if ks else 0}')
    mf.append(f'v_mfma_f32_16x16x32_bf16 {Hr[0]}, {Im}, {c.CBs[0]}, 0')
    mf.append(f'v_mfma_f32_16x16x32_bf16 {Hi[0]}, {Im}, {c.CBc[0]}, 0')
    mf.append(f'v_mfma_f32_16x16x32_bf16 {Hr[0]}, {Re}, {c.CBc[0]}, {Hr[0]}')
    mf.append(f'v_mfma_f32_16x16x32_bf16 {Hi[0]}, {Re}, {c.CBn[0]}, {Hi[0]}')
    mf.append(f'v_mfma_f32_16x16x32_bf16 {Hi[1]}, {Im}, {c.CBc[1]}, 0')
    mf.append(f'v_mfma_f32_16x16x32_bf16 {Hr[1]}, {Re}, {c.CBc[1]}, 0')
    st = Stream(mf)

    def twid():
        for T in range(2):
            cmul_tw(k, Dr[T], Di[T], c.tw1c[4 * T:4 * T + 4], c.tw1s[4 * T:4 * T + 4], t)
            for h in range(2):
                k(f'v_cvt_pk_bf16_f32 {Im[2 * T + h]}, {Di[T][2 * h]}, {Di[T][2 * h + 1]}')
            for h in range(2):
                k(f'v_cvt_pk_bf16_f32 {Re[2 * T + h]}, {Dr[T][2 * h]}, {Dr[T][2 * h + 1]}')
    st.blk[15] = [x[1].text for x in k.capture(twid)]
    g = st.place(0, tr[ntr:])
    gb = st.barrier_after(c.o.get('gbar', 5), 'gp')
    g = st.place(max(g + 1, gb), [f'ds_read_b128 {f[4 * h:4 * h + 4]}, {c.aGr} offset:{16 * h}' for h in range(2)])
    z = f[0]
    g = st.place(g + 4, [f'v_add_f32 {f[i]}, {f[i]}, {f[i + 4]}' for i in range(4)] +
                 [f'v_add_f32 {f[i]}, {f[i]}, {f[i + 2]}' for i in range(2)])
    chain = [f'v_add_f32 {z}, {z}, {f[1]}']
    chain += [f'v_add_f32_dpp {z}, {z}, {z} {ctl} row_mask:0xf bank_mask:0xf' for ctl in
              ('quad_perm:[1,0,3,2]', 'quad_perm:[2,3,0,1]', 'row_half_mirror')]
    chain += [f'v_mul_f32 {z}, {fl(-1.4426950408889634)}, {z}', f'v_exp_f32 {z}, {z}', f'v_add_f32 {z}, 1.0, {z}',
              f'v_rcp_f32 {z}, {z}']
    g = st.place(g + 1, chain, per_gap=1)
    rest, st.tail = st.tail, []
    assert st.place(0, c.cbx) < 15
    c.Kf = [v.get(2) for _ in range(11)]
    c.Wt = [v.get(2) for _ in range(4)]
    c.unp = unp = lambda d, x: [f'v_lshlrev_b32 {d[0]}, 16, {x}', f'v_and_b32 {d[1]}, {c.mhi}, {x}']
    c.unpK = [i for t_ in range(11) for i in unp(c.Kf[t_], c.K[t_])]
    for ch in range(2):
        for jj in range(4):
            src = c.skw[2 * ch + (jj >> 1)]
            c.unpK.append(f'v_and_b32 {c.Wt[jj][ch]}, {c.mhi}, {src}' if jj & 1 else f'v_lshlrev_b32 {c.Wt[jj][ch]}, 16, {src}')
    st.place(c.o.get('ks0', 10), c.unpK)
    c.unpK, st.tail = rest + st.tail, []
    st.emit(k)
    stamp(k, c, 'stB')
    c.zst = []
    for x in c.unpK[:4]:
        k(x)
    c.unpK = c.unpK[4:]
    for Tb in range(2):
        o = F[1][Tb]
        for i in range(4):
            k(f'v_cvt_pk_bf16_f32 {o[i]}, {Hr[Tb][i]}, {Hi[Tb][i]}')
        c.zst.append(f'buffer_store_dwordx4 {o}, {c.aZ[Tb]}, {c.srdws}, 0 offen{SC}')
        while c.zlate == 0 and c.zst:
            k(c.zst.pop(0))
    c.zst.append(f'buffer_store_dword {z}, {c.aGs}, {c.srdws}, 0 offen{SC}')
    c.ztxt = list(c.zst)
    c.qst = [f'global_store_dwordx4 {c.aQ[eh]}, {c.qp[eh]}, {c.pws}{SC}' for eh in range(2)] if c.qx else []
    if c.qx == 1:
        c.zst = c.qst + c.zst
    v.put(*F[0], *F[1][2:], *Dr, *Di, Re, Im, t, c.aXr, c.tw1c, c.tw1s, c.aGr, c.aGw)
    c.zfree = [*F[1][:2], c.aZ, f, c.aGs]
    v.put(*c.CAr, *c.CAi, *c.CBc, *c.CBs, *c.CBn)
    s.put(*c.cbx_s)


def p1_kv(k, c):
    s, v = k.s, k.v
    Kf, Wt = c.Kf, c.Wt
    Vf = [v.get(2) for _ in range(8)]
    kab = 'k' in c.o.get('abl', '')
    for x in c.unpK[:4 if kab else None]:
        k(x)
    S = [v.get(2) for _ in range(8)]
    for jj in range(1 if kab else 4):
        if c.qx == 2 and jj in (0, 2):
            k(c.qst[jj // 2])
        for t in range(8):
            if jj == 0:
                k(f'v_pk_mul_f32 {S[t]}, {Kf[3 + t]}, {Wt[0]}')
            else:
                k(f'v_pk_fma_f32 {S[t]}, {Kf[3 + t - jj]}, {Wt[jj]}, {S[t]}')
    stamp(k, c, 'ks')
    k.waitfor(c.V)
    stamp(k, c, 'varr')
    unpV = [i for t_ in range(8) for i in c.unp(Vf[7 - t_], c.V[7 - t_])][::(2 if kab else 1)]
    if c.o.get('w0', 0) and c.zlate == 1:
        k(c.zst[0])
        k(f's_cmp_lg_u32 {c.w}, 0')
        lab = k.begin_skip('s_cbranch_scc1', 'notw0')
        for x in c.zst[1:]:
            k(x + ' ; untracked')
        k.end_skip(lab)
        c.zst = []
    side = [('i', I(x)) for x in c.zst] if c.zlate <= 1 else []
    if c.o.get('zev', 6) == 0:
        k.items += side
        side = []
    k.interleave([('i', I(x)) for x in unpV], side, c.o.get('zev', 6))
    for t in range(8):
        k(f'v_pk_mul_f32 {S[7 - t]}, {S[7 - t]}, {Vf[7 - t]}')
    o = [v.get(4), v.get(4)]
    for p in range(2):
        for m in range(4):
            k(f'v_cvt_pk_bf16_f32 {o[p][m]}, {S[7 - 2 * m][p]}, {S[6 - 2 * m][p]}')
        if not c.ut0:
            k(f'global_store_dwordx4 {c.aU}, {o[p]}, {c.pws} offset:{UOFF + 64 * p}{SC}')
    if c.ut0:
        X, Y = v.get(4), v.get(4)
        k('s_mov_b32 vcc_lo, 0x33333333')
        k('s_mov_b32 vcc_hi, 0x33333333')
        for m in range(4):
            k(f'v_cndmask_b32_dpp {X[m]}, {o[1][m]}, {o[0][m]}, vcc quad_perm:[2,3,0,1] row_mask:0xf bank_mask:0xf')
            k('s_nop 0')
        k(f'global_store_dwordx4 {c.aU}, {X}, {c.pws} offset:{UOFF}{SC}')
        k('s_not_b64 vcc, vcc')
        k(f'v_add_u32 {c.aU}, 16384, {c.aU}')
        for m in range(4):
            k(f'v_cndmask_b32_dpp {Y[m]}, {o[0][m]}, {o[1][m]}, vcc quad_perm:[2,3,0,1] row_mask:0xf bank_mask:0xf')
            k('s_nop 0')
        k(f'global_store_dwordx4 {c.aU}, {Y}, {c.pws} offset:{UOFF}{SC}')
        v.put(X, Y)
    if c.zlate == 2:
        for x in c.zst:
            k(x)
    k.mark('stores')
    if c.qx:
        v.put(c.aQ, *c.qp)
    if c.o.get('pf'):
        v.put(c.pfd)
    v.put(*c.zfree, *Wt, *Kf, *Vf, *S, *o, c.K, c.V, c.skw, c.aU, c.dummy)


def p2_consts(k, c):
    s, v = k.s, k.v
    t0, t1 = c.t0, c.t1
    k1, base, step, t = (v.get() for _ in range(4))
    fg = v.get()
    k(f'v_lshrrev_b32 {t}, 2, {c.n}')
    k(f'v_and_b32 {k1}, 3, v0')
    k(f'v_lshl_add_u32 {k1}, {k1}, 2, {t}')
    c.sgn = v.get()
    c.psel = s.get()
    k(f's_mul_i32 {t0}, {c.tau}, 0x02020000')
    k(f's_add_u32 {c.psel}, {t0}, 0x01000c0c')
    k(f's_lshl_b32 {t1}, {c.mir}, 31')
    k(f's_xor_b32 {t1}, {t1}, {fl(1 / 16)}')
    k(f'v_cvt_f32_u32 {fg}, {c.g}')
    cs, sn = v.get(4), v.get(4)
    k(f'v_cvt_f32_u32 {step}, {k1}')
    k(f'v_add_u32 {k1}, {c.mir}, {k1}')
    k(f'v_mul_f32 {step}, {t1}, {step}')
    k(f'v_mul_f32 {t}, 4.0, {fg}')
    k(f'v_mul_f32 {base}, {step}, {t}')
    sincos(k, base, step, [0, 1, 2, 3], cs, sn)
    c.Fb = v.get(4)
    k(f'v_cvt_f32_u32 {step}, {k1}')
    k(f's_mul_i32 {t0}, {c.tau}, {fl(8.0)}')
    for h in range(2):
        k(f'v_cvt_pk_bf16_f32 {c.Fb[h]}, {cs[2 * h]}, {cs[2 * h + 1]}')
        k(f'v_cvt_pk_bf16_f32 {c.Fb[2 + h]}, {sn[2 * h]}, {sn[2 * h + 1]}')
    k(f'v_mul_f32 {step}, {t1}, {step}')
    k(f'v_fma_f32 {fg}, 2.0, {fg}, {t0}')
    k(f'v_mul_f32 {base}, {step}, {fg}')
    sincos(k, base, step, [0, 1], cs, sn)
    c.Fa = v.get(4)
    c.Far, c.Fai = c.Fa[0:2], c.Fa[2:4]
    k(f'v_mul_f32 {step}, {fl(1 / 16)}, {step}')
    k(f'v_lshlrev_b32 {k1}, 31, {k1}')
    for jj in range(2):
        k(f'v_cvt_pk_bf16_f32 {c.Far[jj]}, {cs[jj]}, {sn[jj]}')
        k(f'v_cvt_pk_bf16_f32 {c.Fai[jj]}, -{sn[jj]}, {cs[jj]}')
    k(f'v_mul_f32 {base}, {step}, {t}')
    k(f'v_xor_b32 {c.sgn}, 1.0, {k1}')
    sincos(k, base, step, [0, 1, 2, 3], cs, sn)
    c.tw2c, c.tw2s = cs, sn
    v.put(fg)
    v.put(k1, base, step, t)


def p2_zeros(k, c):
    s, v = k.s, k.v
    t0 = c.t0
    t = v.get()
    c.Ci = [v.get(4) for _ in range(4)]
    c.SP = v.get(8)
    for jj in range(4):
        k(f'v_pk_mov_b32 {c.Ci[jj][0:2]}, 0, 0')
        k(f'v_pk_mov_b32 {c.Ci[jj][2:4]}, 0, 0')
        k(f'v_pk_mov_b32 {c.SP[2 * jj:2 * jj + 2]}, 0, 0')
    k(f's_mul_i32 {t0}, {c.w}, {WS}')
    k(f'v_mul_u32_u24 {t}, {PS}, {c.g}')
    k(f'v_lshl_add_u32 {t}, {c.n}, 4, {t}')
    c.aB = v.get()
    k(f'v_add_u32 {c.aB}, {t0}, {t}')
    k(f'ds_write_b128 {c.aB}, {c.Ci[0]} offset:{L_U}')
    v.put(t)


def p2_hpre(k, c):
    s, v = k.s, k.v
    t0, t1 = c.t0, c.t1
    t, base = v.get(), v.get()
    c.aHw, c.aHr = v.get(), v.get()
    k(f's_mul_i32 {t0}, {c.w}, {HS}')
    k(f's_add_u32 {t0}, {t0}, {L_H}')
    k(f'v_lshl_add_u32 {t}, {c.n}, 2, {t0}')
    k(f'v_add_u32 {c.aHw}, {t0}, {c.l16}')
    k(f'v_mov_b32 {base}, 0')
    c.sh = s.get()
    k(f's_lshl_b32 {c.sh}, {c.tau}, 4')
    k(f's_xor_b32 {c.sh}, {c.sh}, 16')
    k(f'ds_write_b32 {t}, {base}')
    k(f'ds_write_b32 {t}, {base} offset:{HC}')
    k(f's_add_u32 {t1}, {c.tau}, 1')
    k(f'v_lshl_add_u32 {t}, {c.g}, 2, {c.n}')
    k(f'v_add_u32 {t}, {t1}, {t}')
    k(f'v_and_b32 {base}, 1, {t}')
    k(f'v_mul_u32_u24 {base}, {HC - 4}, {base}')
    k(f'v_lshl_add_u32 {t}, {t}, 2, {t0}')
    k(f'v_add_u32 {c.aHr}, {base}, {t}')
    v.put(t, base)


def p2_dfrag(k, c):
    s, v = k.s, k.v
    if c.dfold:
        return
    c.AD = v.get(4)
    t = v.get()
    ms = [s.get(2) for _ in range(4)]
    k(f'v_lshl_add_u32 {t}, {c.g}, 2, {c.n}')
    for m in range(4):
        k(f'v_cmp_eq_u32 {ms[m]}, {15 - m}, {t}')
    k(f'v_lshlrev_b32 {c.Dv}, {c.sh}, {c.Dv}')
    for m in range(4):
        k(f'v_cndmask_b32 {c.AD[m]}, 0, {c.Dv}, {ms[m]}')
    s.put(*ms)
    v.put(c.Dv, t)


def out_addrs(k, c):
    if hasattr(c, 'xl'):
        return
    s, v = k.s, k.v
    t0 = c.t0
    c.xl, c.aO1, t = v.get(), v.get(), v.get()
    c.qdone = 0
    k(f's_lshl_b32 {t0}, {c.w}, 2')
    k(f'v_and_b32 {t}, 60, v0')
    k(f'v_lshl_add_u32 {c.xl}, {t}, 2, {t0}')
    k(f'v_and_or_b32 {c.xl}, v0, 3, {c.xl}')
    k(f's_lshl_b32 {t0}, {c.tau}, 7')
    k(f's_add_u32 {t0}, {t0}, {c.E}')
    k(f's_lshl_b32 {t0}, {t0}, 3')
    k(f'v_lshl_add_u32 {c.aO1}, {c.xl}, 11, {t0}')
    v.put(t)
    c.srdq = s.get(4, 4)
    c.po = s.get(3, 1)
    k(f's_mov_b32 {c.srdq[0]}, {c.pq[0]}')
    k(f's_and_b32 {c.srdq[1]}, {c.pq[1]}, 0xffff')
    k(f's_mov_b32 {c.srdq[2]}, {2 << 20}')
    k(f's_mov_b32 {c.srdq[3]}, 0x00020000')
    for cc in range(1, 4):
        k(f's_mov_b32 {c.po[cc - 1]}, {cc << 19}')
    c.qld = lambda cc: f'buffer_load_dwordx2 {c.qn[2 * cc:2 * cc + 2]}, {c.aO1}, {c.srdq}, {c.po[cc - 1] if cc else 0} offen{c.o.get("qm", "")}'


def p2_addrs(k, c):
    s, v = k.s, k.v
    t0, t1 = c.t0, c.t1
    out_addrs(k, c)
    t, u, xl = v.get(), v.get(), c.xl
    c.srdo = s.get(4, 4)
    k(f's_mov_b32 {c.srdo[0]}, {c.pout[0]}')
    k(f's_and_b32 {c.srdo[1]}, {c.pout[1]}, 0xffff')
    k(f's_mov_b32 {c.srdo[2]}, {2 << 20}')
    k(f's_mov_b32 {c.srdo[3]}, 0x00020000')
    m = s.get(2)
    if c.o.get('fl'):
        c.aOf = v.get()
        k(f's_and_b32 {t0}, {c.E}, 15')
        k(f'v_lshrrev_b32 {t}, 2, {c.l}')
        k(f'v_cmp_eq_u32 {m}, {t0}, {t}')
        k(f's_nop 0')
        k(f'v_cndmask_b32 {c.aOf}, 2.0, {c.aO1}, {m}')
    c.aUg, c.aUw = v.get(2, 1), v.get()
    c.e14 = s.get()
    k(f's_lshl_b32 {c.e14}, {c.E}, 14')
    k(f's_add_u32 {t0}, {c.e14}, {UOFF + 4096}')
    k(f'v_lshl_add_u32 {c.aUg[0]}, v0, 4, {t0}')
    k(f'v_add_u32 {c.aUg[1]}, 8192, {c.aUg[0]}')
    k(f'v_and_b32 {t}, 1, v0')
    k(f'v_bfe_u32 {u}, v0, {1 if c.ut0 else 2}, 1')
    k(f'v_lshl_add_u32 {t}, {t}, 1, {u}')
    k(f'v_mul_u32_u24 {c.aUw}, {WS}, {t}')
    k(f'v_bfe_u32 {t}, v0, 3, 2')
    k(f'v_xor_b32 {t}, 3, {t}')
    k(f'v_mul_u32_u24 {t}, {PS}, {t}')
    k(f'v_and_b32 {u}, 0xe0, v0')
    k(f'v_add3_u32 {c.aUw}, {c.aUw}, {t}, {u}')
    k(f'v_and_b32 {t}, {4 if c.ut0 else 2}, v0')
    k(f'v_lshl_add_u32 {c.aUw}, {t}, {2 if c.ut0 else 3}, {c.aUw}')
    c.aZ0, c.aZ1, c.aG = (v.get() for _ in range(3))
    c.aSP = v.get(2, 1)
    c.mir = s.get()
    k(f's_add_u32 {t0}, {c.E}, 63')
    k(f's_lshr_b32 {c.mir}, {t0}, 7')
    k(f's_lshl2_add_u32 {t0}, {c.E}, {c.w}')
    k(f's_lshl1_add_u32 {t1}, {t0}, -512')
    k(f's_mul_i32 {t1}, {t1}, {c.mir}')
    k(f's_sub_u32 {t0}, {t0}, {t1}')
    k(f's_and_b32 {t1}, {t0}, 3')
    k(f's_lshr_b32 {t0}, {t0}, 2')
    k(f's_lshl_b32 {t0}, {t0}, 14')
    k(f's_lshl4_add_u32 {t0}, {t1}, {t0}')
    k(f's_add_u32 {t0}, {t0}, {ZOFF}')
    k(f'v_mov_b32 {c.aSP[0]}, {t0}')
    k(f'v_add_u32 {c.aSP[1]}, 8192, {c.aSP[0]}')
    k(f'v_cmp_eq_u32 {m}, 0, {c.l}')
    if c.zdma:
        c.aZg = v.get()
        k(f'v_sub_u32 {t}, {c.l}, {c.g}')
        k(f's_lshl_b32 {t0}, {c.E}, 2')
        k(f'v_and_or_b32 {t}, {t}, 3, {t0}')
        k(f's_sub_u32 {t0}, 0, {c.mir}')
        k(f's_mul_i32 {t1}, {c.mir}, 513')
        k(f'v_xor_b32 {t}, {t0}, {t}')
        k(f'v_add_u32 {t}, {t1}, {t}')
        k(f'v_lshrrev_b32 {u}, 2, {t}')
        k(f'v_bfi_b32 {t}, 3, {t}, {c.l}')
        k(f's_lshl2_add_u32 {t0}, {c.tau}, {c.w}')
        k(f's_lshl_b32 {t0}, {t0}, 11')
        k(f's_add_u32 {t0}, {t0}, {ZOFF}')
        k(f'v_lshl_add_u32 {t}, {t}, 4, {t0}')
        k(f'v_lshl_add_u32 {c.aZg}, {u}, 14, {t}')
        k(f's_lshl_b32 {t0}, {c.w}, 11')
        k(f's_add_u32 m0, {t0}, {L_Z}')
        k(f'v_lshrrev_b32 {t}, 2, {c.n}')
        k(f'v_add_u32 {t}, {c.w}, {t}')
        k(f'v_and_b32 {t}, 3, {t}')
        k(f'v_lshl_add_u32 {t}, {c.n}, 2, {t}')
        k(f'v_lshl_add_u32 {t}, {c.g}, 7, {t}')
        k(f'v_lshlrev_b32 {c.aZ1}, 4, {t}')
        k(f'v_mov_b32 {t}, {L_U - L_Z}')
        k(f'v_cndmask_b32 {c.aZ0}, {c.aZ1}, {t}, {m}')
    else:
        k(f's_lshl_b32 {t1}, {c.tau}, 13')
        k(f's_add_u32 {t0}, {t0}, {t1}')
        k(f'v_lshl_add_u32 {c.aZ1}, {c.n}, 6, {t0}')
        k(f'v_lshl_add_u32 {c.aZ1}, {c.g}, 11, {c.aZ1}')
        k(f'v_cndmask_b32 {c.aZ0}, {c.aZ1}, 2.0, {m}')
    c.aYBw, c.aYBr, c.aYAw, c.aYAr, c.aYBp = (v.get() for _ in range(5))
    k(f's_lshl1_add_u32 {t0}, {c.mir}, 1')
    k(f'v_mul_u32_u24 {t}, {t0}, v0')
    k(f's_and_b32 {t0}, {c.mir}, {c.tau}')
    k(f'v_subrev_u32 {t}, {t0}, {t}')
    k(f'v_and_b32 {t}, 3, {t}')
    k(f'v_mul_u32_u24 {c.aYBr}, 1088, {t}')
    k(f's_sub_u32 {t0}, {c.mir}, {t0}')
    k(f'v_subrev_u32 {u}, {t0}, {xl}')
    k(f'v_ashrrev_i32 {u}, 2, {u}')
    k(f'v_and_b32 {t}, -16, {u}')
    k(f'v_bfe_u32 {c.aYBp}, {u}, 2, 2')
    k(f'v_and_b32 {u}, 3, {u}')
    k(f'v_lshl_add_u32 {t}, {u}, 2, {t}')
    k(f'v_add_lshl_u32 {t}, {t}, {c.aYBp}, 4')
    k(f'v_add3_u32 {c.aYBr}, {c.aYBr}, {t}, 16')
    k(f's_mul_i32 {t0}, {c.w}, {4 * 1088}')
    k(f'v_add_u32 {c.aYBw}, {t0}, {c.l16}')
    k(f's_add_u32 {t0}, {t0}, {L_YB - 16 - 4 * 63}')
    k(f'v_cmp_eq_u32 {m}, 63, {c.l}')
    k(f'v_mov_b32 {t}, {t0}')
    k(f'v_lshlrev_b32 {c.aYBp}, 2, {c.l}')
    k(f'v_cndmask_b32 {t}, 0, {t}, {m}')
    k(f'v_add_u32 {c.aYBp}, {c.aYBp}, {t}')
    k(f'v_and_b32 {t}, 127, {xl}')
    k(f'v_lshrrev_b32 {u}, 7, {xl}')
    k(f's_lshl_b32 {t0}, {c.tau}, 13')
    k(f's_add_u32 {t0}, {t0}, {GOFF}')
    k(f'v_lshl_add_u32 {c.aG}, {t}, 6, {t0}')
    k(f'v_lshl_add_u32 {c.aG}, {u}, 4, {c.aG}')
    if c.qx:
        c.aQg = v.get()
        k(f'v_lshl_add_u32 {t}, {t}, 1, {u}')
        k(f's_add_u32 {t0}, {c.e14}, {t1}')
        k(f's_add_u32 {t0}, {t0}, {QOFF}')
        k(f'v_lshl_add_u32 {c.aQg}, {t}, 5, {t0}')
    k(f's_mul_i32 {t0}, {c.w}, {YAW}')
    k(f'v_lshl_add_u32 {c.aYAw}, {c.l}, 2, {t0}')
    k(f'v_and_b32 {t}, 3, v0')
    k(f'v_mul_u32_u24 {t}, {YAI - 1}, {t}')
    k(f's_mov_b32 {t0}, {L_YA}')
    k(f'v_add3_u32 {c.aYAr}, {t}, v0, {t0}')
    v.put(t, u, xl)
    s.put(m, c.e14)


def q_prefetch(k, c):
    v = k.v
    a = v.get()
    c.qpf = v.get()
    k(f's_lshl_b32 {c.t0}, {c.j}, 2')
    k(f's_add_u32 {c.t0}, {c.t0}, {c.w}')
    k(f's_lshl_b32 {c.t0}, {c.t0}, 7')
    k(f's_add_u32 {c.t0}, {c.t0}, {c.x}')
    k(f's_lshl_b32 {c.t0}, {c.t0}, 7')
    k(f'v_lshl_add_u32 {a}, {c.n}, 10, {c.t0}')
    k('s_mov_b64 exec, 0xffff')
    k(f'global_load_dword {c.qpf}, {a}, {c.pq}')
    k('s_mov_b64 exec, -1')
    v.put(a)


def narrow_q(k, c, n):
    for cc in range(c.qdone, c.qdone + n):
        k(c.qld(cc))
    c.qdone += n


def p2_hstage(k, c, n0, n1):
    s, v = k.s, k.v
    H = c.H
    if n0 == n1:
        return
    P, sh = c.Pv, c.sh
    U = {n: v.get(4) for n in range(n0, n1)}
    k.waitfor(*H[n0:n1])
    if n0 == 0 and c.dfold:
        t = U[0][0]
        k('s_mov_b64 exec, 1')
        k(f'v_lshlrev_b32 {c.Dv}, 16, {c.Dv}')
        k(f'v_lshlrev_b32 {t}, 16, {H[0][0]}')
        k(f'v_add_f32 {t}, {t}, {c.Dv}')
        k(f'v_and_b32 {H[0][0]}, {c.mhi}, {H[0][0]}')
        k(f'v_cvt_pk_bf16_f32 {H[0][0]}, {t}, {H[0][0]}')
        k('s_mov_b64 exec, -1')
        v.put(c.Dv)
    for n in range(n0 + 1, min(n1 + 1, 4)):
        k(f'v_mov_b32_dpp {P[n]}, {H[n - 1][3]} wave_ror:1 row_mask:0xf bank_mask:0xf')
    for n in range(n0, n1):
        k(f'v_mov_b32_dpp {P[n]}, {H[n][3]} wave_shr:1 row_mask:0xf bank_mask:0xf' + (' bound_ctrl:0' if n == 0 else ''))
    for n in range(n0, n1):
        for m in (1, 2, 3):
            k(f'v_alignbit_b32 {U[n][m]}, {H[n][m]}, {H[n][m - 1]}, {sh}')
        k(f'v_alignbit_b32 {U[n][0]}, {H[n][0]}, {P[n]}, {sh}')
        k(f'ds_write_b128 {c.aHw}, {U[n]} offset:{64 + 1024 * n}')
    k(f's_cmp_eq_u32 {c.tau}, 1')
    lab = k.begin_skip('s_cbranch_scc1', 'noshift')
    for n in range(n0, n1 - 1):
        k(f'v_mov_b32_dpp {H[n][3]}, {U[n + 1][0]} wave_rol:1 row_mask:0xf bank_mask:0xf')
    for n in range(n0, n1):
        k(f'v_pk_mov_b32 {H[n][0:2]}, {U[n][0:2]}, {U[n][2:4]} op_sel:[1,0]')
        k(f'v_mov_b32 {H[n][2]}, {U[n][3]}')
    for n in range(n0, n1):
        k(f'v_mov_b32_dpp {H[n][3]}, {U[n][0]} wave_shl:1 row_mask:0xf bank_mask:0xf')
    k.end_skip(lab)
    k(f'ds_write_b32 {c.aHw}, {U[n0][0]} offset:{HC + 60 + 1024 * n0}')
    for n in range(n0, n1):
        k(f'ds_write_b128 {c.aHw}, {H[n]} offset:{HC + 64 + 1024 * n}')
    v.put(*U.values(), *H[n0:n1])
    if n1 == 4:
        v.put(P, c.aHw)


def p2_afrags(k, c, p, nfill):
    for r in range(16):
        a = R('a', 4 * (16 * p + r), 4)
        for h in range(2):
            k(f'ds_read_b64 {a[2 * h:2 * h + 2]}, {c.aHr} offset:{64 * (16 * p + r) + 8 * h}')
        if r % 4 == 3:
            fill(k, c, nfill)


def fill(k, c, n):
    while c.fill and n > 0:
        it = c.fill.pop(0)
        k.items.append(it)
        if it[0] == 'i':
            n -= 2 if it[1].is_trans else 1


def p2_xloads(k, c):
    s, v = k.s, k.v
    c.Ul = [v.get(4) for _ in range(4)]
    c.Zl = v.get(8)
    c.G = v.get(4)
    ul = lambda n: f'global_load_dwordx4 {c.Ul[n]}, {c.aUg[n >> 1]}, {c.pws} offset:{-4096 + 4096 * (n & 1)}{SC}'
    k(ul(0))
    if c.o.get('u1', 0) != 2:
        k(ul(1))
    k('s_mov_b64 exec, 0xffff')
    k(f'global_load_dwordx4 {c.SP[0:4]}, {c.aSP[0]}, {c.pws}{SC}')
    k(f'global_load_dwordx4 {c.SP[4:8]}, {c.aSP[1]}, {c.pws}{SC}')
    k('s_mov_b64 exec, -1')
    if c.zdma:
        k(f'global_load_lds_dwordx4 {c.aZg}, {c.pws}{SC}')
        k(f'global_load_lds_dwordx4 {c.aZg}, {c.pws} offset:1024{SC}')
        k.mark('zd')
        v.put(c.aZg)
    else:
        k(f'buffer_load_dwordx4 {c.Zl[0:4]}, {c.aZ0}, {c.srdws}, 0 offen{SC}')
        k(f'buffer_load_dwordx4 {c.Zl[4:8]}, {c.aZ1}, {c.srdws}, 0 offen offset:1024{SC}')
        v.put(c.aZ0, c.aZ1)
    if c.o.get('u1', 0) == 2:
        k(ul(1))
    late = [ul(2), ul(3), f'global_load_dwordx4 {c.G}, {c.aG}, {c.pws}{SC}']
    if c.o.get('gfirst', 1):
        late = late[2:] + late[:2]
    if c.o.get('qx0'):
        late += [c.qld(c.qdone)]
        c.qdone += 1
    n = c.o.get('xl', 1)
    for x in late[:n]:
        k(x)
    c.late = late[n:]
    v.put(c.aUg[0], c.aSP)


def page_jump(k, c):
    if c.o.get('page', True):
        lab = k.label('page')
        k(f's_branch {lab}')
        k.raw('.p2align 12')
        k.raw(f'{lab}:')


def p2_main(k, c):
    s, v = k.s, k.v
    o = c.o
    Zl, SP, Ul, G, qn, Ci = c.Zl, c.SP, c.Ul, c.G, c.qn, c.Ci
    uw = lambda n: f'ds_write_b128 {c.aUw}, {Ul[n]} offset:{L_U + 256 + 256 * n}'
    rd = lambda dst, q, r: f'ds_read_b128 {dst}, {c.aB} offset:{L_U + 16 + 256 * q + 16 * (15 - r)}'
    u1 = o.get('u1', 0)
    k(uw(0))
    if not u1:
        k(uw(1))
    lg = o.get('lg', [8, 10])
    if not lg:
        for x in c.late:
            k(x)
        v.put(c.aUg[1], c.aG)
    if c.zdma == 2:
        k.waitfor(vm='zd')
    k('s_waitcnt lgkmcnt(0)')
    k('s_barrier')
    stamp(k, c, 'ubar')
    v.put(Ul[0])
    B0 = [v.get(4) for _ in range(16)]
    B1 = [v.get(4) for _ in range(15)] + [Ul[1]]
    Di = [v.get(4) for _ in range(4)]
    acc = [v.get(4) for _ in range(2)]
    ya = v.get(4)
    t = ya
    gq = c.Fa
    Bf = [Zl[0:4], Zl[4:8]]
    ring2 = ([Ul[2], Ul[3], Zl[0:4], Zl[4:8]] + Di + [SP[0:4], SP[4:8]])[:o.get('r2', 8)]
    ring3 = ([Ul[2], Ul[3], Zl[0:4], Zl[4:8]] + Di + [SP[0:4], SP[4:8]])[:4 + o.get('r3', 4)]
    Y = Ci
    NPRE = o.get('npre', 6)
    for r in range(NPRE):
        k(rd(B0[r], 0, r))
    A = lambda p, r: R('a', 4 * (16 * p + r), 4)
    fr = [Zl[0:2], Zl[4:6], Zl[2:4], Zl[6:8]]
    mf = []
    seen = set()
    def add(cc, a, b, tag=None):
        if any(str(b) == str(x) for x in B0[16 - o.get('skipd', [0] * 4)[cc]:]):
            return
        d = acc[cc & 1]
        mf.append((cc, tag, f'v_mfma_f32_16x16x32_bf16 {d}, {a}, {b}, {d if cc in seen else 0}'))
        seen.add(cc)
    streams = []
    def addstream(cc, p, q, r, reg):
        streams.append((q, r, reg))
        add(cc, A(p, r), reg, ('s', len(streams) - 1))
        if r == 0 and p == 0 and not c.dfold:
            add(cc, c.AD, reg, ('s', len(streams) - 1))
    if not c.dfold:
        add(0, c.AD, B0[0])
    for r in range(16):
        add(0, A(0, r), B0[r])
    for r in range(16):
        add(1, A(1, r), B0[r])
    if not c.dfold:
        add(1, c.AD, B1[0])
    for r in range(16):
        add(1, A(0, r), B1[r])
    d2 = o.get('d2', 26)
    res2 = [(p, r) for r in range(16) for p in (2, 1)]
    for p, r in res2[:d2]:
        add(2, A(p, r), (B0 if p == 2 else B1)[r])
    res2 = res2[d2:]
    for r in range(16):
        addstream(2, 0, 2, r, ring2[r % len(ring2)])
        for p, r_ in res2[len(res2) * r // 16:len(res2) * (r + 1) // 16]:
            add(2, A(p, r_), (B0 if p == 2 else B1)[r_])
    n3 = len(ring3)
    n2 = len(ring2)
    order3 = ring3[n2:] + [ring2[(16 + i) % n2] for i in range(n2)]
    d3 = o.get('d3', 8)
    res3 = [(p, r) for r in range(16) for p in (3, 2)]
    for p, r in res3[:d3]:
        add(3, A(p, r), (B0 if p == 3 else B1)[r])
    res3 = res3[d3:]
    for i in range(32):
        addstream(3, 1 - (i & 1), 2 + (i & 1), i >> 1, order3[i % n3])
        for p, r_ in res3[len(res3) * i // 32:len(res3) * (i + 1) // 32]:
            add(3, A(p, r_), (B0 if p == 3 else B1)[r_])
    def epi(cc):
        e2 = [f'ds_read2st64_b32 {ya[0:2]}, {c.aYAr} offset0:{20 * cc} offset1:{20 * cc + 5}',
              f'ds_read2st64_b32 {ya[2:4]}, {c.aYAr} offset0:{20 * cc + 10} offset1:{20 * cc + 15}']
        e3 = [f'v_fma_f32 {ya[w]}, {gq[w]}, {ya[w]}, {Y[w][cc]}' for w in range(4)]
        ob = qn[2 * cc:2 * cc + 2]
        e3 += [f'v_cvt_pk_bf16_f32 {ob[h]}, {ya[2 * h]}, {ya[2 * h + 1]}' for h in range(2)]
        e4 = [f'buffer_store_dwordx2 {ob}, {c.aO1}, {c.srdo}, {c.po[cc - 1] if cc else 0} offen{o.get("om", "")}']
        return e2, e3, e4

    def pre(cc):
        o1 = []
        for h in range(2):
            o1.append(f'v_lshlrev_b32 {gq[2 * h]}, 16, {qn[2 * cc + h]}')
            o1.append(f'v_and_b32 {gq[2 * h + 1]}, {c.mhi}, {qn[2 * cc + h]}')
        o1 += [f'v_mul_f32 {gq[w]}, {G[cc]}, {gq[w]}' for w in range(4)]
        o2 = [f'v_fma_f32 {Y[w][cc]}, -{G[cc]}, {Y[w][cc]}, {Y[w][cc]}' for w in range(4)]
        return o1, o2
    zs = o.get('zs', 18)
    LW, LR = o.get('lw', 5), o.get('lr', 6)
    sa = zs + 3
    npk = o.get('npk', 4)
    sta = []
    for jj in range(4):
        sta.append((-1, ('a', jj), f'v_mfma_f32_16x16x16_bf16 {Di[jj]}, {fr[jj]}, {c.Fai}, 0'))
        sta.append((-1, ('a', jj), f'v_mfma_f32_16x16x16_bf16 {Ci[jj]}, {fr[jj]}, {c.Far}, {Ci[jj]}'))
    mf[sa:sa] = sta
    base_mf = list(mf)
    Bf4 = [Zl[0:4], Zl[4:8], SP[0:4], SP[4:8]]
    sb = [sa + 12 + 3 * jj for jj in range(4)]
    yaw = lambda cc: [f'ds_write_b32 {c.aYAw}, {acc[cc & 1][i]} offset:{L_YA + YAP * cc + YAI * i}' + (f'@ya{cc}' if i == 3 else '')
                      for i in range(4)]
    while True:
        mf = list(base_mf)
        for jj in range(4):
            mf.insert(sb[jj], (-1, ('b', jj), f'v_mfma_f32_16x16x32_bf16 {Y[jj]}, {c.Fb}, {Bf4[jj]}, 0'))
        st = Stream([m[2] for m in mf])
        pos = lambda tag: [i for i, m in enumerate(mf) if m[1] == tag]
        last = {cc: max(i for i, m in enumerate(mf) if m[0] == cc) for cc in range(4)}
        if c.zdma:
            zr = zs - o.get('zlr', 6)
            if c.zdma == 1:
                st.vmw[zr - 2] = 'zd'
                st.sca[zr - 1].append('s_barrier')
            st.place(zr - 1, [f'ds_read_b128 {Zl[0:4]}, {c.aZ0} offset:{L_Z}', f'ds_read_b128 {Zl[4:8]}, {c.aZ1} offset:{L_Z + 1024}'])
        g = st.place(0, [rd(B0[r], 0, r) for r in range(NPRE, 16)])
        if u1:
            g = st.place(max(g + 1, o.get('u1g', 0)), [uw(1) + '@u1'])
            g = st.barrier_after(g + LW - 1, 'u1') - 1
        g = st.place(g + 1, [rd(B1[r], 1, r) for r in range(16)])
        gw_ = 0
        ufirst = o.get('ufirst', npk < 4)
        if ufirst:
            g = st.place(g + 1, [uw(2)])
            g = st.place(g + 1, [uw(3) + '@uw'])
            gu = st.barrier_after(g + LW, 'uw')
        for jj in range(4):
            gw_ = st.place(pos(('b', jj))[0] + 3, [f'ds_write_b128 {c.aYBw}, {Y[jj]} offset:{L_YB + 1088 * jj}' + ('@yb' if jj == 3 else '')])
        g0 = st.place(max(g + 1, last[0] + 4), yaw(0))
        gpt = st.place(pos(('b', 0))[0] + 3, [f'ds_write2_b32 {c.aYBp}, {Y[0][3]}, {Y[0][0]} offset0:0 offset1:1',
                                               f'ds_write2_b32 {c.aYBp}, {Y[0][1]}, {Y[0][2]} offset0:2 offset1:3@yp'])
        lastw = max((gw_, 'yb'), (g0, 'ya0'), (gpt, 'yp'))[1]
        g0 = max(g0, gpt - 1)
        gb = st.barrier_after(max(gw_ + LW, g0 + LW, gu + 1 if ufirst else 0), lastw)
        e2g = st.place(gb, epi(0)[0])
        gy = st.place(e2g + 1, [f'ds_read_b128 {Y[w]}, {c.aYBr} offset:{L_YB - 16 + 4 * 1088 * w}' for w in range(4)])
        if not ufirst:
            g = st.place(gy + o.get('ud', 1), [uw(2)])
            g = st.place(g + 1, [uw(3) + '@uw'])
            gu = st.barrier_after(g + LW, 'uw')
        erd = {}
        if o.get('eprio', 1):
            for cc in (1, 2):
                gx = st.place(last[cc] + 3, yaw(cc)) + LW - 1
                while st.lgw[gx] or st.sca[gx] or st.sca[gx + 1] or st.lgw[gx + 1]:
                    gx += 1
                erd[cc] = st.place(st.barrier_after(gx, f'ya{cc}'), epi(cc)[0])
        prev_use, leads = {}, []
        for si, (q, r, reg) in enumerate(streams):
            p_ = pos(('s', si))
            lo = prev_use.get(str(reg), None)
            if lo is None:
                lo = max(gu, p_[0] - 12)
                for jj in range(4):
                    if str(reg) in (str(Di[jj]), str(Bf4[jj])):
                        lo = max(lo, pos(('b', jj))[0])
            gg = st.place(lo, [rd(reg, q, r)])
            assert gg < p_[0] - 2, (si, gg, p_)
            leads.append(p_[0] - gg)
            prev_use[str(reg)] = p_[-1]
        if lg:
            for g_, x in zip(lg, c.late):
                st.place(g_, [x])
        if c.qx:
            st.place(o.get('qg', [14])[0], [f'global_load_dwordx4 {qn[4 * h:4 * h + 4]}, {c.aQg}, {c.pws} offset:{16 * h}{SC}' for h in range(2)], per_gap=1)
        else:
            for n_, cc in enumerate(range(c.qdone, 4)):
                st.place(o.get('qg', [20, 44, 56])[n_], [c.qld(cc)])
        pre_a = [f'v_perm_b32 {SP[i]}, {SP[i]}, {SP[i]}, {c.psel}' for i in range(8)]
        pre_a += [f'v_fma_f32 {Ci[jj][0]}, {SP[4 + jj]}, {c.sgn}, {SP[jj]}' for jj in range(4)]
        assert st.place(max(0, zs - o.get('pa', 16)), pre_a) < zs
        st.place(zs, [f'v_swap_b32 {Zl[1]}, {Zl[4]}', f'v_swap_b32 {Zl[3]}, {Zl[6]}'], per_gap=1)
        gblk = sa + 7 + o.get('blkd', 1)
        g = gblk + 1
        ok = True
        for jj in range(4):
            a, b = Ci[jj], Di[jj]
            if jj < npk:
                st.blk[gblk] += [x[1].text for x in k.capture(cmul_tw, k, a, b, c.tw2c, c.tw2s, t)]
            else:
                tw = []
                for h in (0, 2):
                    for i in (h, h + 1):
                        tw.append(f'v_mul_f32 {t[i & 1]}, {b[i]}, {c.tw2s[i]}')
                        tw.append(f'v_mul_f32 {b[i]}, {b[i]}, {c.tw2c[i]}')
                    for i in (h, h + 1):
                        tw.append(f'v_fma_f32 {b[i]}, -{a[i]}, {c.tw2s[i]}, {b[i]}')
                        tw.append(f'v_fma_f32 {a[i]}, {a[i]}, {c.tw2c[i]}, {t[i & 1]}')
                g = st.place(g, tw)
            cv = [f'v_cvt_pk_bf16_f32 {Bf4[jj][2 + h]}, {b[2 * h]}, {b[2 * h + 1]}' for h in range(2)]
            cv += [f'v_cvt_pk_bf16_f32 {Bf4[jj][h]}, {a[2 * h]}, {a[2 * h + 1]}' for h in range(2)]
            g = st.place(g, cv)
            if not g < pos(('b', jj))[0] - 1:
                for j2 in range(jj, 4):
                    sb[j2] += 1
                ok = False
                break
        if ok:
            break
    sys.stderr.write(f'sb {sb} yBbar {gb} ubar {gu} leads {"".join(str(min(x, 9)) for x in leads)}\n')
    gt = g
    if not erd:
        g1 = st.place(last[1] + 4, yaw(1))
        gx = g1 + 3
        while st.lgw[gx] or st.sca[gx] or st.sca[gx + 1] or st.lgw[gx + 1]:
            gx += 1
        gb1 = st.barrier_after(gx, 'ya1')

    gp = g + 1
    gfree = max(gu, gt + 1)
    for cc in range(4):
        o1, o2 = pre(cc)
        gp = st.place(gp, o1)
        if cc == 0:
            e2, e3, e4 = epi(0)
            assert e2g > gt
            g = e2g
            gp = st.place(max(g + LR, gp), [f'v_mul_f32 {ya[w]}, {gq[w]}, {ya[w]}' for w in range(4)] + [f'v_sub_f32 {G[0]}, 1.0, {G[0]}'])
            g = st.place(max(gp, gy + LR - 1), [f'v_fmac_f32 {ya[w]}, {G[0]}, {Y[w][0]}' for w in range(4)] + e3[4:])
            gfree = g + 1
            g = st.place(g + 1, e4)
            sys.stderr.write(f'store {cc} at gap {g} of {len(mf)}\n')
            gp += 1
            continue
        gp = st.place(max(gp, gy + LR), o2)
        if cc < 3:
            e2, e3, e4 = epi(cc)
            if erd:
                g = erd[cc]
                assert g - 1 >= gfree, (cc, g, gfree)
            else:
                if cc == 1:
                    gfree = max(gfree, gb1)
                if cc == 2:
                    g2 = st.place(last[2] + 4, yaw(2))
                    gfree = max(gfree, st.barrier_after(g2 + 3, 'ya2'))
                g = st.place(gfree, e2)
            g = st.place(max(g + LR, gp), e3)
            gfree = g + 1
            gp = g + 1
            g = st.place(g + 1, e4)
            sys.stderr.write(f'store {cc} at gap {g} of {len(mf)}\n')
    if o.get('w2', 1):
        st.place(last[2] + 12, [f'v_add_u32 {c.aYBw}, {L_YA + YAP * 3}, {c.aYAw}'])
    for cc, g in enumerate(o.get('fl', [])):
        st.place(g, [f'buffer_store_dwordx2 {qn[2 * cc:2 * cc + 2]}, {c.aOf}, {c.srdo}, {c.po[cc - 1] if cc else 0} offen{o.get("flm", SC)}'])
    assert not st.tail
    for nm in (c.stamps or []):
        if nm[0] == 'g' and nm[1:].isdigit():
            st.blk[int(nm[1:])] += [x[1].text for x in k.capture(stamp, k, c, nm)]
    for pat in c.drop:
        st.vec = [[x for x in g_ if not x.startswith(pat) or '@' in x] for g_ in st.vec]
        st.sca = [[x for x in g_ if not x.startswith(pat)] for g_ in st.sca]
    st.emit(k)
    stamp(k, c, 'conv')
    if o.get('w2', 1):
        for h in range(2):
            k(f'ds_write2_b32 {c.aYBw}, {acc[1][2 * h]}, {acc[1][2 * h + 1]} offset0:{YAI // 2 * h} offset1:{YAI // 2 * h + YAI // 4}')
    else:
        for x in yaw(3):
            k(x.split('@')[0])
    k('s_waitcnt lgkmcnt(0)')
    k('s_barrier')
    e2, e3, e4 = epi(3)
    for ins in e2 + e3 + e4:
        k(ins)


def sync_go(k, c):
    s, v = k.s, k.v
    k(f's_lshl2_add_u32 {c.t0}, {c.w}, s2')
    k(f's_cmp_ge_u32 {c.t0}, 4')
    lab = k.begin_skip('s_cbranch_scc1', 'nogo')
    a, o = v.get(), v.get()
    k(f's_lshl_b32 {c.t0}, s2, 6')
    k(f'v_lshl_add_u32 {a}, {c.n}, 2, {c.t0}')
    k(f'v_mov_b32 {o}, 1')
    k('s_mov_b64 exec, 0xffff')
    k(f'global_store_dword {a}, {o}, {c.pdbg}{SC} ; untracked')
    k('s_mov_b64 exec, -1')
    v.put(a, o)
    k.end_skip(lab)


def sync_pre(k, c):
    s, v = k.s, k.v
    c.go, c.ago = v.get(), v.get()
    k(f'v_lshlrev_b32 {c.ago}, 6, {c.g}')
    k(f'global_load_dword {c.go}, {c.ago}, {c.pdbg}{SC}')


def sync_addrs(k, c):
    s, v = k.s, k.v
    m = s.get(2)
    c.aat, c.apoll, c.one = (v.get() for _ in range(3))
    k(f's_and_b32 {c.t0}, {c.j if c.o.get("mix", 1) else "s2"}, {NL - 1}')
    k(f's_lshl_b32 {c.t0}, {c.t0}, 7')
    k(f's_add_u32 {c.t0}, {c.t0}, {COFF}')
    k(f'v_cmp_gt_u32 {m}, {c.nrep}, v0')
    k(f'v_lshl_add_u32 {c.aat}, v0, 11, {c.t0}')
    k(f's_and_b32 {c.t0}, {c.x}, {c.nrep - 1}')
    k(f's_lshl_b32 {c.t0}, {c.t0}, 11')
    k(f's_add_u32 {c.t0}, {c.t0}, {COFF}')
    k(f'v_cndmask_b32 {c.aat}, 2.0, {c.aat}, {m}')
    k(f'v_lshl_add_u32 {c.apoll}, {c.n}, 7, {c.t0}')
    k(f'v_mov_b32 {c.one}, 1')
    s.put(m)


def sync_arrive(k, c):
    s, v = k.s, k.v
    if c.stamps and 'sack' in c.stamps:
        k.waitfor(vm='stores')
        stamp(k, c, 'sack')
    k.waitfor(c.go, vm='stores')
    stamp(k, c, 'ack')
    k(f'v_cmp_eq_u32 vcc, 0, {c.go}')
    k(f's_mov_b32 {c.t1}, 0')
    lab = k.begin_skip('s_cbranch_vccz', 'gook')
    lp = k.loop_label('gospin')
    k(f'global_load_dword {c.go}, {c.ago}, {c.pdbg}{SC}')
    k(f's_add_u32 {c.t1}, {c.t1}, 1')
    k(f's_lshr_b32 {c.t2}, {c.t1}, 20')
    k('s_waitcnt vmcnt(0)')
    k(f'v_or_b32 {c.go}, {c.t2}, {c.go}')
    k(f'v_cmp_eq_u32 vcc, 0, {c.go}')
    k(f's_cbranch_vccnz {lp}')
    k.end_skip(lab)
    if c.o.get('w0', 0):
        k(f's_cmp_lg_u32 {c.w}, 0')
        k('s_barrier')
        lab = k.begin_skip('s_cbranch_scc1', 'notw0')
        k(f'buffer_atomic_add {c.one}, {c.aat}, {c.srdws}, 0 offen{SC} ; untracked')
        k.end_skip(lab)
    else:
        k('s_barrier')
        k(f'buffer_atomic_add {c.one}, {c.aat}, {c.srdws}, 0 offen{SC}')
    v.put(c.ago, c.aat, c.one)


def sync_poll(k, c):
    k(f's_cmp_lg_u32 {c.w}, 0')
    lab = k.begin_skip('s_cbranch_scc1', 'nopoll0')
    k('s_mov_b64 exec, 0xffff')
    k(f'global_load_dword {c.go}, {c.apoll}, {c.pws}{SC} ; untracked')
    k('s_mov_b64 exec, -1')
    k.end_skip(lab)


def sync_wait(k, c):
    s, v = k.s, k.v
    d = c.go
    k(f's_cmp_lg_u32 {c.w}, 0')
    lab0 = k.begin_skip('s_cbranch_scc1', 'nopoll')
    k('s_mov_b64 exec, 0xffff')
    k(f's_mov_b32 {c.t1}, 0')
    k(f's_mov_b32 {c.t2}, {256 // NL}')
    k.raw(f'    s_waitcnt vmcnt({c.after_poll})')
    lp = k.loop_label('poll')
    k(f'v_cmp_gt_u32 vcc, {c.t2}, {d}')
    k('s_nop 1')
    k('s_and_b64 exec, exec, vcc')
    lab = k.begin_skip('s_cbranch_scc0', 'done')
    k(f'global_load_dword {d}, {c.apoll}, {c.pws}{SC} ; untracked')
    k(f's_add_u32 {c.t1}, {c.t1}, 1')
    k(f's_cmp_lt_u32 {c.t1}, 0x100000')
    k(f's_cselect_b32 {c.t2}, {256 // NL}, 0')
    k('s_waitcnt vmcnt(0)')
    k(f's_branch {lp}')
    k.end_skip(lab)
    k('s_mov_b64 exec, -1')
    k.end_skip(lab0)
    k('s_barrier')
    v.put(c.apoll, d)


def kern(opts):
    k = Kern(NAME + '_kernel')
    c = Ctx()
    c.stamps = opts.get('stamps', None)
    c.stretch = opts.get('stretch', None)
    c.clk = 's_memtime' if opts.get('cyc') else 's_memrealtime'
    k.c = c
    c.drop = opts.get('drop', [])
    c.o = opts
    c.ne = opts.get('ne', 2)
    c.nrep = NREP
    c.zlate = opts.get('zlate', 1)
    c.zdma = opts.get('zdma', 0)
    c.dfold = opts.get('dfold', 1)
    c.qx = opts.get('qx', 0)
    c.zt10 = opts.get('zt10', 0)
    c.ut0 = opts.get('ut0', 0)
    setup(k, c)
    c.mhi = k.s.get()
    k.hold()
    C = k.capture(load_addrs, k, c) + k.capture(consts_b, k, c) + k.capture(x_addrs, k, c)
    C += k.capture(store_addrs, k, c) + k.capture(consts_a, k, c)
    npre, d0 = opts.get('npre0', 40), opts.get('delay', 85)
    k.items += C[:npre]
    first_loads(k, c)
    hp = opts.get('hpos', 'end')
    Lh = [('i', I(x)) for x in c.Lh]
    if hp == 'q':
        hd = opts.get('hd', 20)
        k.items += C[npre:npre + hd]
        k.interleave(C[npre + hd:npre + d0], Lh, opts.get('hev', 8))
    else:
        dp = opts.get('dp', 0) if opts.get('pf') else 0
        k.items += C[npre:npre + dp]
        if opts.get('pf'):
            line_prefetch(k, c)
        k.interleave(C[npre + dp:npre + d0], [('i', I(x)) for x in c.Lq], 12)
    stamp(k, c, 'd0')
    if hp == 'k':
        c.loads = Lh + c.loads
    if hp == 'v':
        c.loads = c.loads[:12] + Lh + c.loads[12:]
    if hp == 'e':
        c.loads = c.loads + Lh
    k.interleave(C[npre + d0:], c.loads, opts.get('every', 2))
    k(f's_mov_b32 {c.mhi}, 0xffff0000')
    if hp == 'end':
        k.items += Lh
    k.release()
    k.s.put(c.srdk)
    parts = [p2_hpre, sync_addrs, out_addrs, p2_addrs, p2_consts]
    ne_ = opts.get('early', 2)
    for fn in parts[:ne_]:
        fn(k, c)
    stamp(k, c, 'ca')
    if opts.get('j1'):
        page_jump(k, c)
    p1_dft(k, c)
    stamp(k, c, 'dft1')
    p1_kv(k, c)
    stamp(k, c, 'kv')
    stamp(k, c, 'p_ack', 's_waitcnt vmcnt(0)')
    sync_pre(k, c)
    c.Pv = k.v.get(4, 1)
    c.qn = k.v.get(8)
    if ne_ < 1:
        p2_hpre(k, c)
    sv = c.t0, c.t1
    c.t0, c.t1 = k.s.get(), k.s.get()
    k.hold()
    cap = lambda i: k.capture(parts[i], k, c) if i >= ne_ else []
    c.fill = cap(1) + cap(2)
    nfirst = len(c.fill)
    c.fill += cap(3) + k.capture(p2_zeros, k, c)
    nw = len(c.fill)
    c.fill += cap(4) + k.capture(p2_dfrag, k, c)
    ntot = len(c.fill)
    heldv, helds = k.v.held, k.s.held
    k.v.held = k.s.held = None
    c.t0, c.t1 = sv
    prog = opts.get('prog', 'hL0faP1qfqHp2w3')
    what = dict(h='stage the first filter quarters (two dword-shifted copies in LDS)', H='stage the remaining filter quarters',
                L='load the remaining filter quarters', a='arrive at the grid barrier once every store is acknowledged',
                P='pull the q tile into the L2', q='q values of one output pass', p='first barrier poll',
                w='wait for the grid barrier, load kv columns / spectrum / gate')
    for ch in prog:
        if ch in what:
            k.comment('---- ' + what[ch])
        elif ch.isdigit():
            k.comment(f'---- Toeplitz fragments of filter quarter {ch} into AGPRs (+ address / constant setup)')
        if ch in 'aq':
            while ntot - len(c.fill) < nfirst:
                fill(k, c, 1)
        if ch == 'h':
            p2_hstage(k, c, 0, c.ne)
        elif ch == 'H':
            p2_hstage(k, c, c.ne, 4)
        elif ch == 'L':
            for x in c.Lh2:
                k(x)
        elif ch.isdigit():
            p2_afrags(k, c, int(ch), opts.get('nfill', 8))
        elif ch == 'f':
            fill(k, c, 16)
        elif ch == 'F':
            fill(k, c, 10000)
        elif ch == 'a':
            stamp(k, c, 'shadow')
            sync_arrive(k, c)
            stamp(k, c, 'arr')
        elif ch == 'P':
            q_prefetch(k, c)
        elif ch == 'q':
            narrow_q(k, c, 1)
        elif ch == 'p':
            sync_poll(k, c)
            c.poll_at = len(k.items)
        elif ch == 'w':
            while ntot - len(c.fill) < nw:
                fill(k, c, 1)
            c.after_poll = sum(1 for it in k.items[c.poll_at:] if it[0] == 'i' and it[1].is_vm)
            stamp(k, c, 'af')
            sync_wait(k, c)
            stamp(k, c, 'sync')
            p2_xloads(k, c)
    fill(k, c, 10000)
    k.v.put(*heldv, c.ah, c.aHr)
    k.s.put(*helds)
    if hasattr(c, 'qpf'):
        k.v.put(c.qpf)
    k.v.put(c.l, c.l16, c.n, c.g)
    if opts.get('j2', 1):
        page_jump(k, c)
    stamp(k, c, 'xiss')
    stamp(k, c, 'p_x', 's_waitcnt vmcnt(0)')
    p2_main(k, c)
    stamp(k, c, 'epi')
    stamp(k, c, 'end', 's_waitcnt vmcnt(0)')
    stamps_out(k, c)
    k.raw(f'{c.end}:')
    k('s_endpgm')
    return k


HEADER = open('cdna_kernels/%s.s.ref' % NAME).read().split('; Override launch')[0]


DESC = '''; One persistent launch, 256 workgroups (one per CU), one grid barrier. Generated by the author's own script.
;   x~[s,d] = q[s,d] + q[-s,-d]; radix-8 sequence step and the 512-point hidden DFT as two MFMA stages -> Z (channels 0..259),
;   gate g = sigmoid(q . gate_w), u = shortconv(k) * v transposed into per-channel chunks.
; Phase 2 (workgroup = 4 channels x rows of one parity, wave = channel):
;   long causal convolution as Toeplitz(h, with ssm_D folded into h[0]) x u MFMAs, 16x16 sequence DFT of Z
; Hand-off: sc1 stores, vmcnt, workgroup barrier, atomic adds to counters in d_ws that workgroups 0..3 zero first
; (published through d_debug); sc1 polls and loads. Nothing depends on XCD placement or on earlier contents of d_ws.'''

WIDENABLE = ('v_add_f32', 'v_mul_f32', 'v_and_b32', 'v_lshlrev_b32', 'v_xor_b32', 'v_mov_b32', 'v_add_u32', 'v_sub_f32',
             'v_lshrrev_b32', 'v_rcp_f32', 'v_exp_f32', 'v_sin_f32', 'v_cos_f32', 'v_cvt_f32_u32', 'v_fmac_f32')


def align_runs(body, minrun):
    import subprocess, re
    lines = body.split('\n')
    isins = [i for i, l in enumerate(lines) if l.startswith('    ') and not l.strip().startswith((';', '.'))]
    src = '.amdgcn_target "amdgcn-amd-amdhsa--gfx950"\n.text\n' + '\n'.join(l for l in lines if not l.startswith('.p2align')) + '\n'
    open('_al.s', 'w').write(src)
    subprocess.check_call('clang -x assembler -target amdgcn-amd-amdhsa -mcpu=gfx950 -c _al.s -o _al.o', shell=True)
    dis = subprocess.check_output('llvm-objdump -d --mcpu=gfx950 _al.o', shell=True, text=True)
    size = [4 * len(m.group(1).split()) for m in re.finditer(r'// [0-9A-F]{12}: ([0-9A-F ]+)', dis)]
    assert len(size) == len(isins), (len(size), len(isins))
    ph, lo, n, fixed = 0, 0, 0, 0
    prev_line = -1
    page_at = None
    while n < len(isins):
        if any(lines[x].startswith('.p2align') for x in range(prev_line + 1, isins[n])):
            ph, lo = 0, n
            page_at = max(x for x in range(prev_line + 1, isins[n]) if lines[x].startswith('.p2align'))
        e = n
        while e < len(isins) and size[e] == 8 and not lines[isins[e]].strip().startswith(('v_mfma', 'ds_read_b64 a')):
            e += 1
        if e - n >= minrun:
            if ph:
                for b in range(n - 1, lo - 1, -1):
                    mn = lines[isins[b]].split()[0]
                    if size[b] == 4 and mn in WIDENABLE:
                        lines[isins[b]] = lines[isins[b]].replace(mn, mn + '_e64', 1)
                        ph = 0
                        fixed += 1
                        break
                if ph and page_at is not None:
                    lines[page_at] += '\n.fill 1, 4, 0xbf800000'
                    ph = 0
                    fixed += 1
            lo = e
            page_at = None
        if e == n:
            ph = (ph + size[n]) % 8
            e = n + 1
        prev_line = isins[e - 1]
        n = e
    sys.stderr.write(f'aligned {fixed} runs\n')
    return '\n'.join(lines)


def build(opts):
    k = kern(opts)
    abl = opts.get('abl', '')
    if abl:
        c = k.c
        def drop(it):
            if it[0] != 'i':
                return False
            t = it[1].text
            if 'q' in abl and (t.startswith('buffer_load_dwordx2') or (t.startswith('global_load_dword ') and str(c.pq) in t)):
                return True
            if 'h' in abl and t.startswith('global_load_dwordx4') and str(c.ph) in t:
                return True
            if 'z' in abl and t in c.ztxt:
                return True
            if 'y' in abl and t == c.ztxt[1]:
                return True
            if 'u' in abl and t.startswith('global_store_dwordx4') and 'offset' in t:
                return True
            if 'b' in abl and t.startswith('s_branch') and 'poll' in t:
                return True
            if 'o' in abl and t.startswith('buffer_store_dwordx2') and ', 0 offen' not in t:
                return True
            if 'a' in abl and t.startswith('ds_read_b64 a'):
                return True
            if 'm' in abl and t.startswith('v_mfma') and ', a[' in t and int(t.split(', a[')[1].split(':')[0]) % 8 == 4:
                return True
            return False
        k.items = [it for it in k.items if not drop(it)]
    body = k.finalize()
    if opts.get('al', 8):
        body = align_runs(body, opts.get('al', 8))
    sys.stderr.write(f'{k.stats} vhi={k.v.hi_water} shi={k.s.hi_water}\n')
    out = [HEADER.rstrip('\n'), f'; @launch grid=(256,1,1) block=(256,1,1) lds={LDS_BYTES}',
           DESC, '.amdgcn_target "amdgcn-amd-amdhsa--gfx950"', '.text',
           *(['.p2align 12', f'.fill {(4096 - 768 + opts.get("entry", 0)) % 4096 // 4}, 4, 0xbf800000'] if opts.get('page', True) else []),
           f'.globl {k.name}', '.p2align 8', f'.type {k.name},@function', f'{k.name}:', body,
           '.section .rodata,"a"', '.p2align 6', f'.amdhsa_kernel {k.name}',
           '  .amdhsa_next_free_vgpr 512', '  .amdhsa_next_free_sgpr 102', '  .amdhsa_accum_offset 256',
           '  .amdhsa_group_segment_fixed_size 0', '  .amdhsa_kernarg_size 120', '  .amdhsa_user_sgpr_count 2',
           '  .amdhsa_user_sgpr_kernarg_segment_ptr 1', '  .amdhsa_system_sgpr_workgroup_id_x 1',
           '  .amdhsa_float_denorm_mode_32 3', '.end_amdhsa_kernel']
    return '\n'.join(out) + '\n'


if __name__ == '__main__':
    opts = {}
    for a in sys.argv[2:]:
        kk, vv = a.split('=', 1)
        opts[kk] = eval(vv)
    open(sys.argv[1], 'w').write(build(opts))
```

```python
import sys, struct
from asmgen import Kern, R, I

NAME = 'gated_mix__ssm_conv_h3__spectral_fnet__prompt'
UOFF, ZOFF, QOFF, GOFF, COFF, SOFF = 0, 2 << 20, 4 << 20, 6 << 20, (6 << 20) + 65536, 8 << 20
STM = ' sc1'
L_X = 0
L_H = 10240
HC = 4224
HS = 2 * HC
PS, WS = 1280, 5152
L_Z = 1024
L_U = 10240
L_YB = L_U + 4 * WS
L_YA = L_YB + 16 * 1088
YAP, YAW, YAI = 5120, 1280, 288
L_G = L_YA + 4 * YAP
L_H = L_G + 2048
LDS_BYTES = L_H + 4 * HS
NREP = 8
NL = 16
SC = ' sc1'


def fl(x):
    return '0x%08x' % struct.unpack('<I', struct.pack('<f', x))[0]


class Ctx:
    pass


def stamp(k, c, name, pre=None):
    if c.stamps and name in c.stamps:
        if pre:
            k(pre)
        i = c.stamps.index(name)
        k(f'{c.clk} {c.st[2 * i:2 * i + 2]}')
        k('s_waitcnt lgkmcnt(0)')


def stamps_out(k, c):
    if not c.stamps:
        return
    if c.stretch is not None:
        k(f's_memrealtime {c.st[22:24]}')
        k(f's_sub_u32 {c.t0}, {c.st[2]}, {c.st[0]}')
        k(f's_mul_i32 {c.t0}, {c.t0}, {c.stretch}')
        k(f's_min_u32 {c.t0}, {c.t0}, 100000')
        k('s_waitcnt lgkmcnt(0)')
        k(f's_mov_b32 {c.t1}, {c.st[22]}')
        lp = k.loop_label('stretch')
        k(f's_memrealtime {c.st[22:24]}')
        k('s_waitcnt lgkmcnt(0)')
        k(f's_sub_u32 {c.t2}, {c.st[22]}, {c.t1}')
        k(f's_cmp_lt_u32 {c.t2}, {c.t0}')
        k(f's_cbranch_scc1 {lp}')
        return
    t = k.v.get(2)
    a = k.v.get()
    k(f's_lshl_b32 {c.t0}, s2, 2')
    k(f's_add_u32 {c.t0}, {c.t0}, {c.w}')
    k(f's_lshl_b32 {c.t0}, {c.t0}, 7')
    k(f's_add_u32 {c.t0}, {c.t0}, {SOFF}')
    k(f'v_mov_b32 {a}, {c.t0}')
    for i in range(len(c.stamps)):
        k(f'v_mov_b32 {t[0]}, {c.st[2 * i]}')
        k(f'v_mov_b32 {t[1]}, {c.st[2 * i + 1]}')
        k(f'global_store_dwordx2 {a}, {t}, {c.pws} offset:{8 * i}')
    k.v.put(t, a)


def sincos(k, base, step, mults, cs, sn, negsin=False):
    for i, m in enumerate(mults):
        if m and mults[i - 1] == m - 1:
            k(f'v_add_f32 {sn[i]}, {step}, {sn[i - 1] if mults[i - 1] else base}')
        elif m:
            k(f'v_fmamk_f32 {sn[i]}, {step}, {fl(m)}, {base}')
    for i, m in enumerate(mults):
        src = base if m == 0 else sn[i]
        k(f'v_cos_f32 {cs[i]}, {src}')
        k(f'v_sin_f32 {sn[i]}, {"-" if negsin else ""}{src}')


def cmul_tw(k, a, b, cc, ss, t):
    for h in (0, 2):
        k(f'v_pk_mul_f32 {t[h:h + 2]}, {b[h:h + 2]}, {ss[h:h + 2]}')
        k(f'v_pk_mul_f32 {b[h:h + 2]}, {b[h:h + 2]}, {cc[h:h + 2]}')
    for h in (0, 2):
        k(f'v_pk_fma_f32 {b[h:h + 2]}, {a[h:h + 2]}, {ss[h:h + 2]}, {b[h:h + 2]} neg_lo:[1,0,0] neg_hi:[1,0,0]')
        k(f'v_pk_fma_f32 {a[h:h + 2]}, {a[h:h + 2]}, {cc[h:h + 2]}, {t[h:h + 2]}')


WIDE = ('ds_write_b128', 'v_exp', 'v_rcp')


class Stream:
    def __init__(self, mfmas):
        self.m = list(mfmas)
        n = len(self.m)
        self.vec = [[] for _ in range(n)]
        self.sca = [[] for _ in range(n)]
        self.lgw = [None] * n
        self.vmw = [None] * n
        self.tail = []
        self.nods = set()
        self.blk = [[] for _ in range(n)]

    def place(self, g, instrs, per_gap=2):
        last = g
        used = 0
        for ins in instrs:
            while g < len(self.m):
                mem = ins.startswith(('ds_', 'global_', 'buffer_'))
                ok = len(self.vec[g]) < 2 and used < per_gap
                if ok and mem and used and not self.vec[g][-1].startswith(('ds_', 'global_', 'buffer_')):
                    ok = False
                if ok and mem and any(x.startswith('ds_') for x in self.vec[g]) and ins.startswith('ds_'):
                    ok = False
                if ok and ins.startswith('ds_') and g in self.nods:
                    ok = False
                if ok and ins.startswith('ds_write_b128') and (self.vec[g] or any(
                        x.startswith('ds_') for gg in (g + 1, g + 2) if gg < len(self.m) for x in self.vec[gg])):
                    ok = False
                if ok and (ins.startswith(WIDE) and self.vec[g] or any(x.startswith(WIDE) for x in self.vec[g])):
                    ok = False
                if ok:
                    break
                g += 1
                used = 0
            if g >= len(self.m):
                self.tail.append(ins)
                last = len(self.m)
                continue
            self.vec[g].append(ins)
            if ins.startswith('ds_write_b128'):
                self.nods |= {g + 1, g + 2}
            used += 1
            last = g
        return last

    def scalar(self, g, ins):
        self.sca[g].append(ins)

    def barrier_after(self, g, mark):
        self.lgw[g] = mark
        self.sca[g + 1].append('s_barrier')
        return g + 1

    def emit(self, k):
        isa = lambda x: x.split('@')[0]
        for i, m in enumerate(self.m):
            k(m)
            mem = [x for x in self.vec[i] if x.startswith(('ds_', 'global_', 'buffer_'))]
            alu = [x for x in self.vec[i] if x not in mem]
            look = [isa(x) for x in self.vec[i]]
            if i + 1 < len(self.m):
                look.append(self.m[i + 1])
                if self.sca[i + 1]:
                    look += [isa(x) for x in self.vec[i + 1]]
                    if i + 2 < len(self.m):
                        look.append(self.m[i + 2])
            k.waitfor(*look, lg=self.lgw[i], vm=self.vmw[i])
            for x in self.sca[i]:
                k(x)
            for x in mem + alu:
                k(isa(x))
                if '@' in x:
                    k.mark(x.split('@')[1])
            for x in self.blk[i]:
                if x.startswith('RAW '):
                    k.raw(x[4:])
                else:
                    k(x)
        for x in self.tail:
            k(isa(x))
            if '@' in x:
                k.mark(x.split('@')[1])


def setup(k, c):
    s, v = k.s, k.v
    c.end = k.label('end')
    k('s_cmp_ge_u32 s2, 256')
    k(f's_cbranch_scc1 {c.end}')
    a0 = s.get(8, 4); a1 = s.get(4, 4); a2 = s.get(8, 4)
    k(f's_load_dwordx8 {a0}, s[0:1], 0')
    k(f's_load_dwordx8 {a2}, s[0:1], 88')
    k(f's_load_dwordx4 {a1}, s[0:1], 32')
    c.pq, c.pk, c.pv, c.psk = a0[0:2], a0[2:4], a0[4:6], a0[6:8]
    c.ph, c.pD = a1[0:2], a1[2:4]
    c.pgw, c.pout, c.pdbg, c.pws = a2[0:2], a2[2:4], a2[4:6], a2[6:8]
    if c.stamps:
        c.st = s.get(24, 4)
        if 'start' in c.stamps:
            i = c.stamps.index('start')
            k(f'{c.clk} {c.st[2 * i:2 * i + 2]}')
    pc = s.get(2)
    c.dummy, a = v.get(), v.get()
    k(f's_getpc_b64 {pc}')
    here = k.label('pc')
    k.raw(f'{here}:')
    k(f's_lshl_b32 s3, s2, 9')
    k(f's_and_b32 s3, s3, 0x3000')
    k(f'v_lshl_add_u32 {a}, v0, 4, s3')
    k(f'v_min_u32 {a}, {c.end}-{here}, {a}')
    k(f'global_load_dword {c.dummy}, {a}, {pc}')
    s.put(pc)
    v.put(a)
    c.x, c.j, c.w, c.t0, c.t1, c.t2, c.s0, c.iA, c.E, c.tau = (s.get() for _ in range(10))
    c.l, c.l16, c.n, c.g = (v.get() for _ in range(4))
    t0, t1 = c.t0, c.t1
    k(f'v_lshrrev_b32 {c.l}, 6, v0')
    k(f's_and_b32 {c.x}, s2, 7')
    k(f'v_readfirstlane_b32 {c.w}, {c.l}')
    k(f's_bfe_u32 {t1}, s2, 0x40003')
    k(f'v_and_b32 {c.l}, 63, v0')
    k(f'v_lshlrev_b32 {c.l16}, 4, {c.l}')
    k(f's_lshl4_add_u32 {t0}, {c.x}, {t1}')
    k(f's_sub_u32 {t1}, 256, {t0}')
    k(f's_cmp_eq_u32 {t0}, 0')
    k(f's_cselect_b32 {t1}, 128, {t1}')
    k(f's_cmp_lt_u32 s2, 128')
    k(f's_cselect_b32 {c.s0}, {t0}, {t1}')
    k(f's_and_b32 {t0}, {c.w}, 2')
    k(f's_add_u32 {c.iA}, {c.w}, {t0}')
    k(f's_lshl_b32 {t0}, {c.iA}, 8')
    k(f's_add_u32 {t0}, {t0}, {c.s0}')
    k(f's_lshl_b32 {t0}, {t0}, 10')
    c.aq = aq = v.get(4, 1)
    k(f'v_add_u32 {aq[0]}, {t0}, {c.l16}')
    k(f's_sub_u32 {t1}, {2048 * 1024 + 1008}, {t0}')
    k(f's_bitset0_b32 {t1}, 21')
    k(f'v_sub_u32 {aq[1]}, {t1}, {c.l16}')
    k(f'v_add_u32 {aq[2]}, {512 * 1024}, {aq[0]}')
    k(f'v_sub_u32 {aq[3]}, {1536 * 1024 + 1008}, {aq[0]}')
    c.qd = [v.get(4), v.get(4)]
    c.qm = [v.get(4), v.get(4)]
    c.K, c.V = v.get(11, 1), v.get(8, 1)
    c.gw, c.skw = v.get(4), v.get(4)
    c.H = [v.get(4) for _ in range(4)]
    c.Dv = v.get()
    c.srdk, c.srdws = s.get(4, 4), s.get(4, 4)


def load_addrs(k, c):
    s, v = k.s, k.v
    t0, t1 = c.t0, c.t1
    c.P, c.cb, akv, akh, ask, c.ah, aD = (v.get() for _ in range(7))
    k(f's_lshr_b32 {c.j}, s2, 3')
    k(f'v_and_b32 {c.n}, 15, v0')
    k(f'v_lshrrev_b32 {c.g}, 4, {c.l}')
    k(f'v_and_b32 {c.P}, 31, v0')
    k(f'v_lshrrev_b32 {c.cb}, 5, {c.l}')
    k(f's_lshl3_add_u32 {t0}, {c.j}, {c.w}')
    k(f's_lshl4_add_u32 {t0}, {t0}, 8')
    k(f's_lshl2_add_u32 {t0}, {t0}, {c.x}')
    k(f's_lshl_b32 {t0}, {t0}, 7')
    k(f'v_lshl_add_u32 {akv}, {c.cb}, 15, {t0}')
    k(f'v_lshl_add_u32 {akv}, {c.P}, 2, {akv}')
    k(f'v_subrev_u32 {akh}, 7168, {akv}')
    k(f's_mov_b32 {c.srdk[2]}, {2 << 20}')
    k(f's_mov_b32 {c.srdk[3]}, 0x00020000')
    k(f's_mov_b32 {c.srdws[2]}, {1 << 28}')
    k(f's_mov_b32 {c.srdws[3]}, 0x00020000')
    k(f's_lshr_b32 {t0}, s2, 4')
    k(f's_lshl4_add_u32 {c.E}, {c.x}, {t0}')
    k(f's_and_b32 {c.tau}, {c.j}, 1')
    k(f's_lshl_b32 {t1}, {c.x}, 9')
    k(f'v_lshl_add_u32 {ask}, {c.P}, 4, {t1}')
    k(f's_lshl2_add_u32 {t0}, {c.E}, {c.w}')
    k(f's_lshl_b32 {t1}, {t0}, 12')
    k(f'v_add_u32 {c.ah}, {t1}, {c.l16}')
    k(f'v_lshrrev_b32 {aD}, 11, {c.ah}')
    c.Lq = []
    if c.qx:
        ap = v.get(2, 1)
        c.qp = [v.get(4), v.get(4)]
        k(f'v_and_b32 {ap[0]}, 1, {c.g}')
        k(f'v_lshl_add_u32 {ap[0]}, {ap[0]}, 2, {c.cb}')
        k(f's_lshl3_add_u32 {t0}, {c.s0}, {c.w}')
        k(f's_lshl_b32 {t0}, {t0}, 7')
        k(f'v_lshl_add_u32 {ap[0]}, {ap[0]}, 18, {t0}')
        k(f'v_lshl_add_u32 {ap[0]}, {c.n}, 3, {ap[0]}')
        k(f'v_add_u32 {ap[1]}, {512 * 1024}, {ap[0]}')
        c.Lq = [f'global_load_dwordx2 {c.qp[eh][2 * r:2 * r + 2]}, {ap[r]}, {c.pq} offset:{512 * eh}' for eh in range(2) for r in range(2)]
        v.put(ap)
    nt = lambda ch: c.o.get('ntm', ' nt') if ch in c.o.get('nt', '') else ''
    L = [f'buffer_load_dword {c.K[t]}, {akh}, {c.srdk}, 0 offen offset:{1024 * t}{nt("k")}' for t in range(3)]
    L += [f'global_load_dword {c.K[3 + t]}, {akv}, {c.pk} offset:{1024 * (t - 4)}{nt("k")}' for t in range(8)]
    L += [f'global_load_dwordx4 {c.skw}, {ask}, {c.psk}']
    L += [f'global_load_dword {c.V[t]}, {akv}, {c.pv} offset:{1024 * (t - 4)}{nt("v")}' for t in range(8)]
    Lh = [f'global_load_dwordx4 {c.H[n]}, {c.ah}, {c.ph} offset:{1024 * n}{nt("h")}' for n in range(4)]
    c.Lh, c.Lh2 = Lh[:c.ne] + [f'global_load_ushort {c.Dv}, {aD}, {c.pD}'], Lh[c.ne:]
    c.loads = [('i', I(x)) for x in L]
    v.put(akv, akh, ask, aD)


def first_loads(k, c):
    s, v = k.s, k.v
    aq = c.aq
    ntq = c.o.get('ntm', ' nt') if 'q' in c.o.get('nt', '') else ''
    k('s_waitcnt lgkmcnt(0)')
    stamp(k, c, 'karg')
    k(f'global_load_dwordx4 {c.qd[0]}, {aq[0]}, {c.pq}{ntq}')
    k(f's_mov_b32 {c.srdk[0]}, {c.pk[0]}')
    k(f'global_load_dwordx4 {c.qm[0]}, {aq[1]}, {c.pq}{ntq}')
    k(f's_and_b32 {c.srdk[1]}, {c.pk[1]}, 0xffff')
    k(f'global_load_dwordx4 {c.qd[1]}, {aq[2]}, {c.pq}{ntq}')
    k(f's_mov_b32 {c.srdws[0]}, {c.pws[0]}')
    k(f'global_load_dwordx4 {c.qm[1]}, {aq[3]}, {c.pq}{ntq}')
    k(f's_and_b32 {c.srdws[1]}, {c.pws[1]}, 0xffff')
    k('s_cmp_ge_u32 s2, 4')
    lab = k.begin_skip('s_cbranch_scc1', 'noclear')
    z4 = c.H[3]
    k(f's_lshl_b32 s3, s2, 12')
    k(f's_add_u32 s3, s3, {COFF}')
    k(f'v_lshl_add_u32 {aq[0]}, v0, 4, s3')
    k(f'v_pk_mov_b32 {z4[0:2]}, 0, 0')
    k(f'v_pk_mov_b32 {z4[2:4]}, 0, 0')
    k(f'global_store_dwordx4 {aq[0]}, {z4}, {c.pws}{SC} ; untracked')
    k.end_skip(lab)
    k(f'global_load_dwordx4 {c.gw}, {c.l16}, {c.pgw}')
    v.put(aq)


def line_prefetch(k, c):
    s, v = k.s, k.v
    mode = c.o.get('pf')
    b, o, sh = s.get(2), s.get(), s.get()
    c.pfd = v.get()
    if mode == 'h':
        k(f's_lshl1_add_u32 {o}, {c.E}, {c.tau}')
        k(f's_lshl2_add_u32 {o}, {o}, {c.w}')
        k(f's_lshl_b32 {o}, {o}, 11')
        k(f'v_lshl_add_u32 {c.pfd}, {c.l}, 5, {o}')
        k(f'global_load_dword {c.pfd}, {c.pfd}, {c.ph}')
    else:
        k(f's_lshl_b32 {o}, {c.j}, 9')
        k(f's_add_u32 {o}, {o}, {c.x}')
        k(f's_lshl_b32 {o}, {o}, 7')
        k(f's_lshl1_add_u32 {sh}, {c.E}, {c.tau}')
        k(f's_lshl1_add_u32 {sh}, {sh}, {c.w}')
        k(f's_sub_u32 {sh}, {sh}, 2')
        k(f's_lshl_b32 {sh}, {sh}, 12')
        k(f's_cmp_eq_u32 {c.w}, 0')
        k(f's_cselect_b64 {b}, {c.pk}, {c.pv}')
        k(f's_cmp_lt_u32 {c.w}, 2')
        k(f's_cselect_b64 {b}, {b}, {c.ph}')
        k(f's_cselect_b32 {o}, {o}, {sh}')
        k(f's_cselect_b32 {sh}, 10, 6')
        k(f'v_lshlrev_b32 {c.pfd}, {sh}, {c.l}')
        k(f'v_add_u32 {c.pfd}, {o}, {c.pfd}')
        k(f'global_load_dword {c.pfd}, {c.pfd}, {b}')
    s.put(b, o, sh)


def consts_b(k, c):
    s, v = k.s, k.v
    base, step, t = v.get(), v.get(), v.get()
    cs, sn = v.get(8), v.get(8)
    c.sg = s.get()
    c.CBc = [v.get(4), v.get(4)]
    c.CBs = [v.get(4)]
    c.CBn = [v.get(4)]
    c.a2, c.gea = v.get(), v.get()
    k(f'v_mul_u32_u24 {base}, {c.g}, {c.n}')
    k(f'v_cvt_f32_u32 {step}, {c.n}')
    k(f'v_cvt_f32_u32 {base}, {base}')
    k(f'v_mul_f32 {step}, {fl(1 / 32)}, {step}')
    k(f'v_mul_f32 {base}, {fl(1 / 8)}, {base}')
    k(f's_mov_b32 {c.sg}, 0x80008000')
    sincos(k, base, step, [0, 1, 2, 3], cs, sn)
    k(f'v_bfe_i32 {t}, v0, 0, 1')
    k(f'v_and_b32 {t}, {c.sg}, {t}')
    for m in range(2):
        k(f'v_cvt_pk_bf16_f32 {c.CBc[0][m]}, {cs[2 * m]}, {cs[2 * m + 1]}')
        k(f'v_cvt_pk_bf16_f32 {c.CBs[0][m]}, {sn[2 * m]}, {sn[2 * m + 1]}')
    for m in range(2):
        k(f'v_xor_b32 {c.CBc[0][2 + m]}, {t}, {c.CBc[0][m]}')
        k(f'v_xor_b32 {c.CBs[0][2 + m]}, {t}, {c.CBs[0][m]}')
    k(f'v_lshrrev_b32 {c.a2}, 2, {c.n}')
    k(f'v_lshl_add_u32 {t}, {c.w}, 2, {c.a2}')
    k(f'v_mul_u32_u24 {c.gea}, {c.g}, {t}')
    k(f'v_cvt_f32_u32 {step}, {t}')
    k(f'v_cvt_f32_u32 {base}, {c.gea}')
    k(f'v_mul_f32 {step}, {fl(1 / 512)}, {step}')
    k(f'v_mul_f32 {base}, {fl(1 / 128)}, {base}')
    sincos(k, base, step, [0, 1, 2, 3, 16, 17, 18, 19], cs, sn)
    c.tw1c, c.tw1s = cs, sn
    c.cbx = []
    for m in range(4):
        c.cbx.append(f'v_xor_b32 {c.CBn[0][m]}, {c.sg}, {c.CBs[0][m]}')
    c.cbx.append(f'v_mov_b32 {c.CBc[1][0]}, 0xbf803f80')
    c.cbx += [f'v_mov_b32 {c.CBc[1][m]}, {c.CBc[1][0]}' for m in range(1, 4)]
    c.cbx_s = [c.sg]
    n = c.o.get('cbx', 8)
    for x in c.cbx[n:]:
        k(x)
    c.cbx = c.cbx[:n]
    v.put(base, step, t)


def x_addrs(k, c):
    s, v = k.s, k.v
    t0, t1 = c.t0, c.t1
    t, u = v.get(), v.get()
    c.aXw, c.aXr, c.aGw, c.aGr = (v.get() for _ in range(4))
    k(f's_and_b32 {t1}, {c.w}, 1')
    k(f's_mul_i32 {t0}, {c.iA}, 40')
    k(f's_add_u32 {t0}, {t0}, {t1}')
    k(f'v_lshl_add_u32 {c.aXw}, {t0}, 5, {c.l16}')
    k(f'v_bfe_u32 {t}, v0, 2, 2')
    k(f'v_and_b32 {u}, 8, v0')
    k(f'v_mul_u32_u24 {c.aXr}, {1280 + 32}, {t}')
    k(f'v_and_or_b32 {u}, v0, 3, {u}')
    k(f'v_lshl_add_u32 {u}, {c.g}, 3, {u}')
    k(f'v_lshl_add_u32 {c.aXr}, {u}, 3, {c.aXr}')
    k(f's_lshr_b32 {t0}, {c.w}, 1')
    k(f's_lshl1_add_u32 {t0}, {t1}, {t0}')
    k(f's_lshl_b32 {t0}, {t0}, 9')
    k(f's_add_u32 {t0}, {t0}, {L_G}')
    k(f'v_lshl_add_u32 {c.aGw}, {c.l}, 2, {t0}')
    k(f's_mov_b32 {t1}, {L_G}')
    k(f'v_lshl_add_u32 {c.aGr}, {c.l}, 5, {t1}')
    v.put(t, u)


def store_addrs(k, c):
    s, v = k.s, k.v
    t0, t1 = c.t0, c.t1
    t = v.get()
    c.aZ, c.aU, c.aGs = v.get(2, 1), v.get(), v.get()
    m = s.get(2)
    k(f's_lshl4_add_u32 {t0}, {c.w}, {ZOFF >> 10}')
    k(f's_lshl4_add_u32 {t0}, {t0}, {c.s0}')
    k(f's_lshl_b32 {t0}, {t0}, 6')
    k(f'v_lshl_add_u32 {t}, {c.g}, 4, {t0}')
    k(f'v_lshl_add_u32 {c.aZ[0]}, {c.n}, 16, {t}')
    k(f'v_and_b32 {c.aU}, 0xcf, v0')
    k(f'v_cmp_eq_u32 {m}, 0, {c.aU}')
    k(f'v_add_u32 {t}, {1 << 20}, {t}')
    k(f's_and_b32 {t0}, {c.s0}, 1')
    k(f'v_cndmask_b32 {c.aZ[1]}, 2.0, {t}, {m}')
    k(f's_mul_i32 {t0}, {t0}, 255')
    k(f's_add_u32 {t0}, {t0}, {c.s0}')
    if c.qx:
        c.aQ = v.get(2, 1)
        k(f's_lshl_b32 {t1}, {c.w}, 13')
        k(f's_add_u32 {t1}, {t1}, {t0}')
        k(f's_lshl_b32 {t1}, {t1}, 5')
        k(f's_add_u32 {t1}, {t1}, {QOFF}')
        k(f'v_lshl_add_u32 {t}, {c.g}, 4, {t1}')
        k(f'v_lshl_add_u32 {c.aQ[0]}, {c.n}, 14, {t}')
        k(f'v_add_u32 {c.aQ[1]}, {1 << 20}, {c.aQ[0]}')
    k(f's_lshl4_add_u32 {t0}, {t0}, {GOFF >> 1}')
    k(f'v_and_b32 {t}, 0xc6, v0')
    k(f'v_cmp_eq_u32 {m}, 0, {t}')
    k(f'v_and_b32 {t}, 1, v0')
    k(f'v_lshl_add_u32 {c.aGs}, {t}, 4, {t0}')
    k(f'v_lshrrev_b32 {c.aU}, 2, v0')
    k(f'v_add_lshl_u32 {c.aGs}, {c.aGs}, {c.aU}, 1')
    k(f'v_cndmask_b32 {c.aGs}, 2.0, {c.aGs}, {m}')
    k(f's_lshl_b32 {t0}, {c.x}, 9')
    k(f's_add_u32 {t0}, {t0}, {c.j}')
    k(f's_lshl2_add_u32 {t0}, {t0}, {c.w}')
    k(f's_lshl_b32 {t0}, {t0}, 7')
    if c.ut0:
        k(f'v_and_b32 {t}, 3, v0')
        k(f'v_lshl_add_u32 {t}, {c.cb}, 2, {t}')
        k(f'v_lshl_add_u32 {t}, {t}, 4, {t0}')
        k(f'v_lshrrev_b32 {c.aU}, 2, {c.P}')
        k(f'v_lshl_add_u32 {c.aU}, {c.aU}, 15, {t}')
    else:
        k(f'v_lshl_add_u32 {t}, {c.cb}, 1, {t}')
        k(f'v_lshl_add_u32 {t}, {t}, 4, {t0}')
        k(f'v_lshrrev_b32 {c.aU}, 1, {c.P}')
        k(f'v_lshl_add_u32 {c.aU}, {c.aU}, 14, {t}')
    s.put(m)
    v.put(t, c.P, c.cb)


def consts_a(k, c):
    s, v = k.s, k.v
    ip, base, step = (v.get() for _ in range(3))
    cs, sn = v.get(4), v.get(4)
    c.sel = s.get(4, 2)
    sp, sig = s.get(), s.get()
    k(f's_movk_i32 {c.sel[0]}, 0x3f80')
    k(f's_movk_i32 {c.sel[2]}, 0x3f80')
    k(f's_lshr_b32 {c.t0}, {c.s0}, 7')
    k(f's_mul_i32 {sig}, {c.t0}, {c.sg}')
    k(f's_lshl_b32 {c.t0}, {c.t0}, 1')
    k(f's_mov_b32 {c.t2}, 0')
    k(f's_and_b32 {sp}, {c.s0}, 127')
    lab = k.begin_skip('s_cbranch_scc1', 'nospecial')
    k(f's_lshl_b32 {c.t0}, {c.iA}, 8')
    k(f's_add_u32 {c.t0}, {c.t0}, {c.s0}')
    k(f'v_cvt_f32_u32 {base}, {c.t0}')
    k(f'v_mul_f32 {base}, {fl(1 / 4096)}, {base}')
    k(f'v_sub_f32 {step}, {fl(1 / 8)}, {base}')
    k(f'v_cos_f32 {base}, {base}')
    k(f'v_cos_f32 {step}, {step}')
    k(f's_mov_b32 {c.t0}, 1')
    k(f'v_cvt_pk_bf16_f32 {base}, {step}, {base}')
    k(f's_movk_i32 {c.t2}, 3584')
    k(f'v_readfirstlane_b32 {c.sel[2]}, {base}')
    k(f's_and_b32 {c.sel[0]}, {c.sel[2]}, 0xffff')
    k(f's_lshr_b32 {c.sel[2]}, {c.sel[2]}, 16')
    k.end_skip(lab)
    k(f's_lshl_b32 {c.sel[1]}, {c.sel[0]}, 16')
    k(f's_lshl_b32 {c.sel[3]}, {c.sel[2]}, 16')
    k(f'v_and_b32 {ip}, 3, v0')
    k(f'v_lshl_add_u32 {ip}, {ip}, 2, {c.t0}')
    k(f'v_lshl_add_u32 {base}, {c.gea}, 8, {c.t2}')
    k(f'v_mad_u32_u24 {base}, {ip}, {c.s0}, {base}')
    k(f'v_cvt_f32_u32 {step}, {ip}')
    k(f'v_cvt_f32_u32 {base}, {base}')
    k(f'v_mul_f32 {step}, {fl(-1 / 16)}, {step}')
    k(f'v_mul_f32 {base}, {fl(-1 / 4096)}, {base}')
    sincos(k, base, step, [0, 1, 2, 3], cs, sn)
    c.CAr = [v.get(4) for _ in range(4)]
    c.CAi = [v.get(4) for _ in range(4)]
    C, S = c.CAr[0], c.CAi[0]
    mo, m2, m12 = ip, base, step
    odd = s.get(2)
    k(f'v_bfe_i32 {mo}, v0, 2, 1')
    k(f'v_bfe_i32 {m2}, v0, 3, 1')
    for m in range(2):
        k(f'v_cvt_pk_bf16_f32 {C[m]}, {cs[2 * m]}, {cs[2 * m + 1]}')
        k(f'v_cvt_pk_bf16_f32 {S[m]}, {sn[2 * m]}, {sn[2 * m + 1]}')
    k(f's_mov_b32 {odd[0]}, 0xf0f0f0f0')
    k(f's_mov_b32 {odd[1]}, {odd[0]}')
    k(f'v_and_b32 {mo}, {c.sg}, {mo}')
    k(f'v_and_b32 {m2}, {c.sg}, {m2}')
    k(f'v_xor_b32 {m12}, {mo}, {m2}')
    for m in range(2):
        k(f'v_xor_b32 {C[2 + m]}, {sig}, {C[m]}')
        k(f'v_xor_b32 {S[2 + m]}, {sig}, {S[m]}')
    k(f's_cmp_lg_u32 {sp}, 0')
    lab = k.begin_skip('s_cbranch_scc1', 'nospecial')
    for m in range(2):
        k(f'v_mov_b32 {C[2 + m]}, {S[m]}')
        k(f'v_xor_b32 {S[2 + m]}, {c.sg}, {C[m]}')
    k.end_skip(lab)
    for m in range(4):
        k(f'v_cndmask_b32 {c.CAr[3][m]}, {C[m]}, {S[m]}, {odd}')
        k(f'v_cndmask_b32 {c.CAi[3][m]}, {S[m]}, {C[m]}, {odd}')
        k(f'v_xor_b32 {c.CAr[2][m]}, {C[m]}, {mo}')
        k(f'v_xor_b32 {c.CAi[2][m]}, {S[m]}, {mo}')
    for m in range(4):
        k(f'v_xor_b32 {c.CAr[1][m]}, {c.CAr[3][m]}, {m2}')
        k(f'v_xor_b32 {c.CAi[1][m]}, {c.CAi[3][m]}, {m12}')
        k(f'v_xor_b32 {c.CAr[3][m]}, {c.CAr[3][m]}, {m12}')
        k(f'v_xor_b32 {c.CAi[3][m]}, {c.CAi[3][m]}, {m2}')
    s.put(odd, sp, sig)
    v.put(ip, base, step, cs, sn, c.a2, c.gea)


def p1_dft(k, c):
    s, v = k.s, k.v
    f = v.get(8)
    o = v.get(4)
    X = v.get()
    if c.stamps and 'qarr' in c.stamps:
        k.waitfor(*c.qd, *c.qm)
        stamp(k, c, 'qarr')
    for r in range(2):
        A, M = c.qd[r], c.qm[r]
        lo, hi = c.sel[2 * r], c.sel[2 * r + 1]
        for m in range(4):
            k(f'v_dot2_f32_bf16 {f[2 * m]}, {A[m]}, {lo}, 0')
            k(f'v_dot2_f32_bf16 {f[2 * m + 1]}, {A[m]}, {hi}, 0')
        k(f'v_mov_b32_dpp {X}, {M[0]} wave_ror:1 row_mask:0xf bank_mask:0xf')
        src = [(X, 0), (M[3], 1), (M[3], 0), (M[2], 1), (M[2], 0), (M[1], 1), (M[1], 0), (M[0], 1)]
        for e in range(0 if 'x' in c.o.get('abl', '') else 8):
            k(f'v_dot2c_f32_bf16 {f[e]}, {hi if src[e][1] else lo}, {src[e][0]}')
        dst = o if r == 0 else c.qm[0]
        for m in range(4):
            k(f'v_cvt_pk_bf16_f32 {dst[m]}, {f[2 * m]}, {f[2 * m + 1]}')
        k(f'ds_write_b128 {c.aXw}, {dst} offset:{L_X + r * (2560 + 128)}')
    z = f[0:2]
    for m in range(4):
        for r in range(2):
            k(f'v_dot2_f32_bf16 {z[r]}, {c.qd[r][m]}, {c.gw[m]}, {z[r] if m else 0}')
    k('s_waitcnt lgkmcnt(0)')
    stamp(k, c, 'xt')
    k('s_barrier')
    v.put(o, X, c.qm[0], c.qm[1], c.aXw, c.qd[0], c.qd[1], c.gw)
    s.put(c.sel)
    F = [[v.get(4) for _ in range(4)] for _ in range(2)]
    tr = [f'ds_read_b64_tr_b16 {F[T][ks][2 * h:2 * h + 2]}, {c.aXr} offset:{L_X + 5120 * h + 256 * ks + 32 * T}'
          for T in range(2) for ks in range(4) for h in range(2)]
    ntr = c.o.get('ntr', 8)
    for x in tr[:ntr]:
        k(x)
    k(f'ds_write2st64_b32 {c.aGw}, {z[0]}, {z[1]} offset0:0 offset1:1')
    k.mark('gp')
    sync_go(k, c)
    Dr = [v.get(4), v.get(4)]
    Di = [v.get(4), v.get(4)]
    Re, Im, t = v.get(4), v.get(4), v.get(4)
    Hr, Hi = F[0][0:2], F[0][2:4]
    mf = []
    for T in range(2):
        for ks in range(4):
            mf.append(f'v_mfma_f32_16x16x32_bf16 {Dr[T]}, {F[T][ks]}, {c.CAr[ks]}, {Dr[T] if ks else 0}')
            mf.append(f'v_mfma_f32_16x16x32_bf16 {Di[T]}, {F[T][ks]}, {c.CAi[ks]}, {Di[T] if ks else 0}')
    mf.append(f'v_mfma_f32_16x16x32_bf16 {Hr[0]}, {Im}, {c.CBs[0]}, 0')
    mf.append(f'v_mfma_f32_16x16x32_bf16 {Hi[0]}, {Im}, {c.CBc[0]}, 0')
    mf.append(f'v_mfma_f32_16x16x32_bf16 {Hr[0]}, {Re}, {c.CBc[0]}, {Hr[0]}')
    mf.append(f'v_mfma_f32_16x16x32_bf16 {Hi[0]}, {Re}, {c.CBn[0]}, {Hi[0]}')
    mf.append(f'v_mfma_f32_16x16x32_bf16 {Hi[1]}, {Im}, {c.CBc[1]}, 0')
    mf.append(f'v_mfma_f32_16x16x32_bf16 {Hr[1]}, {Re}, {c.CBc[1]}, 0')
    st = Stream(mf)

    def twid():
        for T in range(2):
            cmul_tw(k, Dr[T], Di[T], c.tw1c[4 * T:4 * T + 4], c.tw1s[4 * T:4 * T + 4], t)
            for h in range(2):
                k(f'v_cvt_pk_bf16_f32 {Im[2 * T + h]}, {Di[T][2 * h]}, {Di[T][2 * h + 1]}')
            for h in range(2):
                k(f'v_cvt_pk_bf16_f32 {Re[2 * T + h]}, {Dr[T][2 * h]}, {Dr[T][2 * h + 1]}')
    st.blk[15] = [x[1].text for x in k.capture(twid)]
    g = st.place(0, tr[ntr:])
    gb = st.barrier_after(c.o.get('gbar', 5), 'gp')
    g = st.place(max(g + 1, gb), [f'ds_read_b128 {f[4 * h:4 * h + 4]}, {c.aGr} offset:{16 * h}' for h in range(2)])
    z = f[0]
    g = st.place(g + 4, [f'v_add_f32 {f[i]}, {f[i]}, {f[i + 4]}' for i in range(4)] +
                 [f'v_add_f32 {f[i]}, {f[i]}, {f[i + 2]}' for i in range(2)])
    chain = [f'v_add_f32 {z}, {z}, {f[1]}']
    chain += [f'v_add_f32_dpp {z}, {z}, {z} {ctl} row_mask:0xf bank_mask:0xf' for ctl in
              ('quad_perm:[1,0,3,2]', 'quad_perm:[2,3,0,1]', 'row_half_mirror')]
    chain += [f'v_mul_f32 {z}, {fl(-1.4426950408889634)}, {z}', f'v_exp_f32 {z}, {z}', f'v_add_f32 {z}, 1.0, {z}',
              f'v_rcp_f32 {z}, {z}']
    g = st.place(g + 1, chain, per_gap=1)
    rest, st.tail = st.tail, []
    assert st.place(0, c.cbx) < 15
    c.Kf = [v.get(2) for _ in range(11)]
    c.Wt = [v.get(2) for _ in range(4)]
    c.unp = unp = lambda d, x: [f'v_lshlrev_b32 {d[0]}, 16, {x}', f'v_and_b32 {d[1]}, {c.mhi}, {x}']
    c.unpK = [i for t_ in range(11) for i in unp(c.Kf[t_], c.K[t_])]
    for ch in range(2):
        for jj in range(4):
            src = c.skw[2 * ch + (jj >> 1)]
            c.unpK.append(f'v_and_b32 {c.Wt[jj][ch]}, {c.mhi}, {src}' if jj & 1 else f'v_lshlrev_b32 {c.Wt[jj][ch]}, 16, {src}')
    st.place(c.o.get('ks0', 10), c.unpK)
    c.unpK, st.tail = rest + st.tail, []
    st.emit(k)
    stamp(k, c, 'stB')
    c.zst = []
    for x in c.unpK[:4]:
        k(x)
    c.unpK = c.unpK[4:]
    for Tb in range(2):
        o = F[1][Tb]
        for i in range(4):
            k(f'v_cvt_pk_bf16_f32 {o[i]}, {Hr[Tb][i]}, {Hi[Tb][i]}')
        c.zst.append(f'buffer_store_dwordx4 {o}, {c.aZ[Tb]}, {c.srdws}, 0 offen{SC}')
        while c.zlate == 0 and c.zst:
            k(c.zst.pop(0))
    c.zst.append(f'buffer_store_dword {z}, {c.aGs}, {c.srdws}, 0 offen{SC}')
    c.ztxt = list(c.zst)
    c.qst = [f'global_store_dwordx4 {c.aQ[eh]}, {c.qp[eh]}, {c.pws}{SC}' for eh in range(2)] if c.qx else []
    if c.qx == 1:
        c.zst = c.qst + c.zst
    v.put(*F[0], *F[1][2:], *Dr, *Di, Re, Im, t, c.aXr, c.tw1c, c.tw1s, c.aGr, c.aGw)
    c.zfree = [*F[1][:2], c.aZ, f, c.aGs]
    v.put(*c.CAr, *c.CAi, *c.CBc, *c.CBs, *c.CBn)
    s.put(*c.cbx_s)


def p1_kv(k, c):
    s, v = k.s, k.v
    Kf, Wt = c.Kf, c.Wt
    Vf = [v.get(2) for _ in range(8)]
    kab = 'k' in c.o.get('abl', '')
    for x in c.unpK[:4 if kab else None]:
        k(x)
    S = [v.get(2) for _ in range(8)]
    for jj in range(1 if kab else 4):
        if c.qx == 2 and jj in (0, 2):
            k(c.qst[jj // 2])
        for t in range(8):
            if jj == 0:
                k(f'v_pk_mul_f32 {S[t]}, {Kf[3 + t]}, {Wt[0]}')
            else:
                k(f'v_pk_fma_f32 {S[t]}, {Kf[3 + t - jj]}, {Wt[jj]}, {S[t]}')
    stamp(k, c, 'ks')
    if c.o.get('hs1') == 2:
        p2_hstage(k, c, 0, c.ne)
    k.waitfor(c.V)
    stamp(k, c, 'varr')
    unpV = [i for t_ in range(8) for i in c.unp(Vf[7 - t_], c.V[7 - t_])][::(2 if kab else 1)]
    if c.o.get('w0', 0) and c.zlate == 1:
        k(c.zst[0])
        k(f's_cmp_lg_u32 {c.w}, 0')
        lab = k.begin_skip('s_cbranch_scc1', 'notw0')
        for x in c.zst[1:]:
            k(x + ' ; untracked')
        k.end_skip(lab)
        c.zst = []
    side = [('i', I(x)) for x in c.zst] if c.zlate <= 1 else []
    if c.o.get('zev', 6) == 0:
        k.items += side
        side = []
    k.interleave([('i', I(x)) for x in unpV], side, c.o.get('zev', 6))
    for t in range(8):
        k(f'v_pk_mul_f32 {S[7 - t]}, {S[7 - t]}, {Vf[7 - t]}')
    o = [v.get(4), v.get(4)]
    for p in range(2):
        for m in range(4):
            k(f'v_cvt_pk_bf16_f32 {o[p][m]}, {S[7 - 2 * m][p]}, {S[6 - 2 * m][p]}')
        if not c.ut0:
            k(f'global_store_dwordx4 {c.aU}, {o[p]}, {c.pws} offset:{UOFF + 64 * p}{SC}')
    if c.ut0:
        X, Y = v.get(4), v.get(4)
        k('s_mov_b32 vcc_lo, 0x33333333')
        k('s_mov_b32 vcc_hi, 0x33333333')
        for m in range(4):
            k(f'v_cndmask_b32_dpp {X[m]}, {o[1][m]}, {o[0][m]}, vcc quad_perm:[2,3,0,1] row_mask:0xf bank_mask:0xf')
            k('s_nop 0')
        k(f'global_store_dwordx4 {c.aU}, {X}, {c.pws} offset:{UOFF}{SC}')
        k('s_not_b64 vcc, vcc')
        k(f'v_add_u32 {c.aU}, 16384, {c.aU}')
        for m in range(4):
            k(f'v_cndmask_b32_dpp {Y[m]}, {o[0][m]}, {o[1][m]}, vcc quad_perm:[2,3,0,1] row_mask:0xf bank_mask:0xf')
            k('s_nop 0')
        k(f'global_store_dwordx4 {c.aU}, {Y}, {c.pws} offset:{UOFF}{SC}')
        v.put(X, Y)
    if c.zlate == 2:
        for x in c.zst:
            k(x)
    k.mark('stores')
    if c.qx:
        v.put(c.aQ, *c.qp)
    if c.o.get('pf'):
        v.put(c.pfd)
    v.put(*c.zfree, *Wt, *Kf, *Vf, *S, *o, c.K, c.V, c.skw, c.aU, c.dummy)


def p2_consts(k, c):
    s, v = k.s, k.v
    t0, t1 = c.t0, c.t1
    k1, base, step, t = (v.get() for _ in range(4))
    fg = v.get()
    k(f'v_lshrrev_b32 {t}, 2, {c.n}')
    k(f'v_and_b32 {k1}, 3, v0')
    k(f'v_lshl_add_u32 {k1}, {k1}, 2, {t}')
    c.sgn = v.get()
    c.psel = s.get()
    k(f's_mul_i32 {t0}, {c.tau}, 0x02020000')
    k(f's_add_u32 {c.psel}, {t0}, 0x01000c0c')
    k(f's_lshl_b32 {t1}, {c.mir}, 31')
    k(f's_xor_b32 {t1}, {t1}, {fl(1 / 16)}')
    k(f'v_cvt_f32_u32 {fg}, {c.g}')
    cs, sn = v.get(4), v.get(4)
    k(f'v_cvt_f32_u32 {step}, {k1}')
    k(f'v_add_u32 {k1}, {c.mir}, {k1}')
    k(f'v_mul_f32 {step}, {t1}, {step}')
    k(f'v_mul_f32 {t}, 4.0, {fg}')
    k(f'v_mul_f32 {base}, {step}, {t}')
    sincos(k, base, step, [0, 1, 2, 3], cs, sn)
    c.Fb = v.get(4)
    k(f'v_cvt_f32_u32 {step}, {k1}')
    k(f's_mul_i32 {t0}, {c.tau}, {fl(8.0)}')
    for h in range(2):
        k(f'v_cvt_pk_bf16_f32 {c.Fb[h]}, {cs[2 * h]}, {cs[2 * h + 1]}')
        k(f'v_cvt_pk_bf16_f32 {c.Fb[2 + h]}, {sn[2 * h]}, {sn[2 * h + 1]}')
    k(f'v_mul_f32 {step}, {t1}, {step}')
    k(f'v_fma_f32 {fg}, 2.0, {fg}, {t0}')
    k(f'v_mul_f32 {base}, {step}, {fg}')
    sincos(k, base, step, [0, 1], cs, sn)
    c.Fa = v.get(4)
    c.Far, c.Fai = c.Fa[0:2], c.Fa[2:4]
    k(f'v_mul_f32 {step}, {fl(1 / 16)}, {step}')
    k(f'v_lshlrev_b32 {k1}, 31, {k1}')
    for jj in range(2):
        k(f'v_cvt_pk_bf16_f32 {c.Far[jj]}, {cs[jj]}, {sn[jj]}')
        k(f'v_cvt_pk_bf16_f32 {c.Fai[jj]}, -{sn[jj]}, {cs[jj]}')
    k(f'v_mul_f32 {base}, {step}, {t}')
    k(f'v_xor_b32 {c.sgn}, 1.0, {k1}')
    sincos(k, base, step, [0, 1, 2, 3], cs, sn)
    c.tw2c, c.tw2s = cs, sn
    v.put(fg)
    v.put(k1, base, step, t)


def p2_zeros(k, c):
    s, v = k.s, k.v
    t0 = c.t0
    t = v.get()
    c.Ci = [v.get(4) for _ in range(4)]
    c.SP = v.get(8)
    for jj in range(4):
        k(f'v_pk_mov_b32 {c.Ci[jj][0:2]}, 0, 0')
        k(f'v_pk_mov_b32 {c.Ci[jj][2:4]}, 0, 0')
        k(f'v_pk_mov_b32 {c.SP[2 * jj:2 * jj + 2]}, 0, 0')
    k(f's_mul_i32 {t0}, {c.w}, {WS}')
    k(f'v_mul_u32_u24 {t}, {PS}, {c.g}')
    k(f'v_lshl_add_u32 {t}, {c.n}, 4, {t}')
    c.aB = v.get()
    k(f'v_add_u32 {c.aB}, {t0}, {t}')
    k(f'ds_write_b128 {c.aB}, {c.Ci[0]} offset:{L_U}')
    v.put(t)


def p2_hpre(k, c):
    s, v = k.s, k.v
    t0, t1 = c.t0, c.t1
    t, base = v.get(), v.get()
    c.aHw, c.aHr = v.get(), v.get()
    k(f's_mul_i32 {t0}, {c.w}, {HS}')
    k(f's_add_u32 {t0}, {t0}, {L_H}')
    k(f'v_lshl_add_u32 {t}, {c.n}, 2, {t0}')
    k(f'v_add_u32 {c.aHw}, {t0}, {c.l16}')
    k(f'v_mov_b32 {base}, 0')
    c.sh = s.get()
    k(f's_lshl_b32 {c.sh}, {c.tau}, 4')
    k(f's_xor_b32 {c.sh}, {c.sh}, 16')
    k(f'ds_write_b32 {t}, {base}')
    k(f'ds_write_b32 {t}, {base} offset:{HC}')
    k(f's_add_u32 {t1}, {c.tau}, 1')
    k(f'v_lshl_add_u32 {t}, {c.g}, 2, {c.n}')
    k(f'v_add_u32 {t}, {t1}, {t}')
    k(f'v_and_b32 {base}, 1, {t}')
    k(f'v_mul_u32_u24 {base}, {HC - 4}, {base}')
    k(f'v_lshl_add_u32 {t}, {t}, 2, {t0}')
    k(f'v_add_u32 {c.aHr}, {base}, {t}')
    v.put(t, base)


def p2_dfrag(k, c):
    s, v = k.s, k.v
    if c.dfold:
        return
    c.AD = v.get(4)
    t = v.get()
    ms = [s.get(2) for _ in range(4)]
    k(f'v_lshl_add_u32 {t}, {c.g}, 2, {c.n}')
    for m in range(4):
        k(f'v_cmp_eq_u32 {ms[m]}, {15 - m}, {t}')
    k(f'v_lshlrev_b32 {c.Dv}, {c.sh}, {c.Dv}')
    for m in range(4):
        k(f'v_cndmask_b32 {c.AD[m]}, 0, {c.Dv}, {ms[m]}')
    s.put(*ms)
    v.put(c.Dv, t)


def out_addrs(k, c):
    if hasattr(c, 'xl'):
        return
    s, v = k.s, k.v
    t0 = c.t0
    c.xl, c.aO1, t = v.get(), v.get(), v.get()
    c.qdone = 0
    k(f's_lshl_b32 {t0}, {c.w}, 2')
    k(f'v_and_b32 {t}, 60, v0')
    k(f'v_lshl_add_u32 {c.xl}, {t}, 2, {t0}')
    k(f'v_and_or_b32 {c.xl}, v0, 3, {c.xl}')
    k(f's_lshl_b32 {t0}, {c.tau}, 7')
    k(f's_add_u32 {t0}, {t0}, {c.E}')
    k(f's_lshl_b32 {t0}, {t0}, 3')
    k(f'v_lshl_add_u32 {c.aO1}, {c.xl}, 11, {t0}')
    v.put(t)
    c.srdq = s.get(4, 4)
    c.po = s.get(3, 1)
    k(f's_mov_b32 {c.srdq[0]}, {c.pq[0]}')
    k(f's_and_b32 {c.srdq[1]}, {c.pq[1]}, 0xffff')
    k(f's_mov_b32 {c.srdq[2]}, {2 << 20}')
    k(f's_mov_b32 {c.srdq[3]}, 0x00020000')
    for cc in range(1, 4):
        k(f's_mov_b32 {c.po[cc - 1]}, {cc << 19}')
    c.qld = lambda cc: f'buffer_load_dwordx2 {c.qn[2 * cc:2 * cc + 2]}, {c.aO1}, {c.srdq}, {c.po[cc - 1] if cc else 0} offen{c.o.get("qm", "")}'


def p2_addrs(k, c):
    s, v = k.s, k.v
    t0, t1 = c.t0, c.t1
    out_addrs(k, c)
    t, u, xl = v.get(), v.get(), c.xl
    c.srdo = s.get(4, 4)
    k(f's_mov_b32 {c.srdo[0]}, {c.pout[0]}')
    k(f's_and_b32 {c.srdo[1]}, {c.pout[1]}, 0xffff')
    k(f's_mov_b32 {c.srdo[2]}, {2 << 20}')
    k(f's_mov_b32 {c.srdo[3]}, 0x00020000')
    m = s.get(2)
    if c.o.get('fl'):
        c.aOf = v.get()
        k(f's_and_b32 {t0}, {c.E}, 15')
        k(f'v_lshrrev_b32 {t}, 2, {c.l}')
        k(f'v_cmp_eq_u32 {m}, {t0}, {t}')
        k(f's_nop 0')
        k(f'v_cndmask_b32 {c.aOf}, 2.0, {c.aO1}, {m}')
    c.aUg, c.aUw = v.get(2, 1), v.get()
    c.e14 = s.get()
    k(f's_lshl_b32 {c.e14}, {c.E}, 14')
    k(f's_add_u32 {t0}, {c.e14}, {UOFF + 4096}')
    k(f'v_lshl_add_u32 {c.aUg[0]}, v0, 4, {t0}')
    k(f'v_add_u32 {c.aUg[1]}, 8192, {c.aUg[0]}')
    k(f'v_and_b32 {t}, 1, v0')
    k(f'v_bfe_u32 {u}, v0, {1 if c.ut0 else 2}, 1')
    k(f'v_lshl_add_u32 {t}, {t}, 1, {u}')
    k(f'v_mul_u32_u24 {c.aUw}, {WS}, {t}')
    k(f'v_bfe_u32 {t}, v0, 3, 2')
    k(f'v_xor_b32 {t}, 3, {t}')
    k(f'v_mul_u32_u24 {t}, {PS}, {t}')
    k(f'v_and_b32 {u}, 0xe0, v0')
    k(f'v_add3_u32 {c.aUw}, {c.aUw}, {t}, {u}')
    k(f'v_and_b32 {t}, {4 if c.ut0 else 2}, v0')
    k(f'v_lshl_add_u32 {c.aUw}, {t}, {2 if c.ut0 else 3}, {c.aUw}')
    c.aZ0, c.aZ1, c.aG = (v.get() for _ in range(3))
    c.aSP = v.get(2, 1)
    c.mir = s.get()
    k(f's_add_u32 {t0}, {c.E}, 63')
    k(f's_lshr_b32 {c.mir}, {t0}, 7')
    k(f's_lshl2_add_u32 {t0}, {c.E}, {c.w}')
    k(f's_lshl1_add_u32 {t1}, {t0}, -512')
    k(f's_mul_i32 {t1}, {t1}, {c.mir}')
    k(f's_sub_u32 {t0}, {t0}, {t1}')
    k(f's_and_b32 {t1}, {t0}, 3')
    k(f's_lshr_b32 {t0}, {t0}, 2')
    k(f's_lshl_b32 {t0}, {t0}, 14')
    k(f's_lshl4_add_u32 {t0}, {t1}, {t0}')
    k(f's_add_u32 {t0}, {t0}, {ZOFF}')
    k(f'v_mov_b32 {c.aSP[0]}, {t0}')
    k(f'v_add_u32 {c.aSP[1]}, 8192, {c.aSP[0]}')
    k(f'v_cmp_eq_u32 {m}, 0, {c.l}')
    if c.zdma:
        c.aZg = v.get()
        k(f'v_sub_u32 {t}, {c.l}, {c.g}')
        k(f's_lshl_b32 {t0}, {c.E}, 2')
        k(f'v_and_or_b32 {t}, {t}, 3, {t0}')
        k(f's_sub_u32 {t0}, 0, {c.mir}')
        k(f's_mul_i32 {t1}, {c.mir}, 513')
        k(f'v_xor_b32 {t}, {t0}, {t}')
        k(f'v_add_u32 {t}, {t1}, {t}')
        k(f'v_lshrrev_b32 {u}, 2, {t}')
        k(f'v_bfi_b32 {t}, 3, {t}, {c.l}')
        k(f's_lshl2_add_u32 {t0}, {c.tau}, {c.w}')
        k(f's_lshl_b32 {t0}, {t0}, 11')
        k(f's_add_u32 {t0}, {t0}, {ZOFF}')
        k(f'v_lshl_add_u32 {t}, {t}, 4, {t0}')
        k(f'v_lshl_add_u32 {c.aZg}, {u}, 14, {t}')
        k(f's_lshl_b32 {t0}, {c.w}, 11')
        k(f's_add_u32 m0, {t0}, {L_Z}')
        k(f'v_lshrrev_b32 {t}, 2, {c.n}')
        k(f'v_add_u32 {t}, {c.w}, {t}')
        k(f'v_and_b32 {t}, 3, {t}')
        k(f'v_lshl_add_u32 {t}, {c.n}, 2, {t}')
        k(f'v_lshl_add_u32 {t}, {c.g}, 7, {t}')
        k(f'v_lshlrev_b32 {c.aZ1}, 4, {t}')
        k(f'v_mov_b32 {t}, {L_U - L_Z}')
        k(f'v_cndmask_b32 {c.aZ0}, {c.aZ1}, {t}, {m}')
    else:
        k(f's_lshl_b32 {t1}, {c.tau}, 13')
        k(f's_add_u32 {t0}, {t0}, {t1}')
        k(f'v_lshl_add_u32 {c.aZ1}, {c.n}, 6, {t0}')
        k(f'v_lshl_add_u32 {c.aZ1}, {c.g}, 11, {c.aZ1}')
        k(f'v_cndmask_b32 {c.aZ0}, {c.aZ1}, 2.0, {m}')
    c.aYBw, c.aYBr, c.aYAw, c.aYAr, c.aYBp = (v.get() for _ in range(5))
    k(f's_lshl1_add_u32 {t0}, {c.mir}, 1')
    k(f'v_mul_u32_u24 {t}, {t0}, v0')
    k(f's_and_b32 {t0}, {c.mir}, {c.tau}')
    k(f'v_subrev_u32 {t}, {t0}, {t}')
    k(f'v_and_b32 {t}, 3, {t}')
    k(f'v_mul_u32_u24 {c.aYBr}, 1088, {t}')
    k(f's_sub_u32 {t0}, {c.mir}, {t0}')
    k(f'v_subrev_u32 {u}, {t0}, {xl}')
    k(f'v_ashrrev_i32 {u}, 2, {u}')
    k(f'v_and_b32 {t}, -16, {u}')
    k(f'v_bfe_u32 {c.aYBp}, {u}, 2, 2')
    k(f'v_and_b32 {u}, 3, {u}')
    k(f'v_lshl_add_u32 {t}, {u}, 2, {t}')
    k(f'v_add_lshl_u32 {t}, {t}, {c.aYBp}, 4')
    k(f'v_add3_u32 {c.aYBr}, {c.aYBr}, {t}, 16')
    k(f's_mul_i32 {t0}, {c.w}, {4 * 1088}')
    k(f'v_add_u32 {c.aYBw}, {t0}, {c.l16}')
    k(f's_add_u32 {t0}, {t0}, {L_YB - 16 - 4 * 63}')
    k(f'v_cmp_eq_u32 {m}, 63, {c.l}')
    k(f'v_mov_b32 {t}, {t0}')
    k(f'v_lshlrev_b32 {c.aYBp}, 2, {c.l}')
    k(f'v_cndmask_b32 {t}, 0, {t}, {m}')
    k(f'v_add_u32 {c.aYBp}, {c.aYBp}, {t}')
    k(f'v_and_b32 {t}, 127, {xl}')
    k(f'v_lshrrev_b32 {u}, 7, {xl}')
    k(f's_lshl_b32 {t0}, {c.tau}, 13')
    k(f's_add_u32 {t0}, {t0}, {GOFF}')
    k(f'v_lshl_add_u32 {c.aG}, {t}, 6, {t0}')
    k(f'v_lshl_add_u32 {c.aG}, {u}, 4, {c.aG}')
    if c.qx:
        c.aQg = v.get()
        k(f'v_lshl_add_u32 {t}, {t}, 1, {u}')
        k(f's_add_u32 {t0}, {c.e14}, {t1}')
        k(f's_add_u32 {t0}, {t0}, {QOFF}')
        k(f'v_lshl_add_u32 {c.aQg}, {t}, 5, {t0}')
    k(f's_mul_i32 {t0}, {c.w}, {YAW}')
    k(f'v_lshl_add_u32 {c.aYAw}, {c.l}, 2, {t0}')
    k(f'v_and_b32 {t}, 3, v0')
    k(f'v_mul_u32_u24 {t}, {YAI - 1}, {t}')
    k(f's_mov_b32 {t0}, {L_YA}')
    k(f'v_add3_u32 {c.aYAr}, {t}, v0, {t0}')
    v.put(t, u, xl)
    s.put(m, c.e14)


def q_prefetch(k, c):
    v = k.v
    a = v.get()
    c.qpf = v.get()
    k(f's_lshl_b32 {c.t0}, {c.j}, 2')
    k(f's_add_u32 {c.t0}, {c.t0}, {c.w}')
    k(f's_lshl_b32 {c.t0}, {c.t0}, 7')
    k(f's_add_u32 {c.t0}, {c.t0}, {c.x}')
    k(f's_lshl_b32 {c.t0}, {c.t0}, 7')
    k(f'v_lshl_add_u32 {a}, {c.n}, 10, {c.t0}')
    k('s_mov_b64 exec, 0xffff')
    k(f'global_load_dword {c.qpf}, {a}, {c.pq}')
    k('s_mov_b64 exec, -1')
    v.put(a)


def narrow_q(k, c, n):
    for cc in range(c.qdone, c.qdone + n):
        k(c.qld(cc))
    c.qdone += n


def p2_hstage(k, c, n0, n1):
    s, v = k.s, k.v
    H = c.H
    if n0 == n1:
        return
    P, sh = c.Pv, c.sh
    U = {n: v.get(4) for n in range(n0, n1)}
    k.waitfor(*H[n0:n1])
    if n0 == 0 and c.dfold:
        t = U[0][0]
        k('s_mov_b64 exec, 1')
        k(f'v_lshlrev_b32 {c.Dv}, 16, {c.Dv}')
        k(f'v_lshlrev_b32 {t}, 16, {H[0][0]}')
        k(f'v_add_f32 {t}, {t}, {c.Dv}')
        k(f'v_and_b32 {H[0][0]}, {c.mhi}, {H[0][0]}')
        k(f'v_cvt_pk_bf16_f32 {H[0][0]}, {t}, {H[0][0]}')
        k('s_mov_b64 exec, -1')
        v.put(c.Dv)
    for n in range(n0 + 1, min(n1 + 1, 4)):
        k(f'v_mov_b32_dpp {P[n]}, {H[n - 1][3]} wave_ror:1 row_mask:0xf bank_mask:0xf')
    for n in range(n0, n1):
        k(f'v_mov_b32_dpp {P[n]}, {H[n][3]} wave_shr:1 row_mask:0xf bank_mask:0xf' + (' bound_ctrl:0' if n == 0 else ''))
    for n in range(n0, n1):
        for m in (1, 2, 3):
            k(f'v_alignbit_b32 {U[n][m]}, {H[n][m]}, {H[n][m - 1]}, {sh}')
        k(f'v_alignbit_b32 {U[n][0]}, {H[n][0]}, {P[n]}, {sh}')
        k(f'ds_write_b128 {c.aHw}, {U[n]} offset:{64 + 1024 * n}')
    k(f's_cmp_eq_u32 {c.tau}, 1')
    lab = k.begin_skip('s_cbranch_scc1', 'noshift')
    for n in range(n0, n1 - 1):
        k(f'v_mov_b32_dpp {H[n][3]}, {U[n + 1][0]} wave_rol:1 row_mask:0xf bank_mask:0xf')
    for n in range(n0, n1):
        k(f'v_pk_mov_b32 {H[n][0:2]}, {U[n][0:2]}, {U[n][2:4]} op_sel:[1,0]')
        k(f'v_mov_b32 {H[n][2]}, {U[n][3]}')
    for n in range(n0, n1):
        k(f'v_mov_b32_dpp {H[n][3]}, {U[n][0]} wave_shl:1 row_mask:0xf bank_mask:0xf')
    k.end_skip(lab)
    k(f'ds_write_b32 {c.aHw}, {U[n0][0]} offset:{HC + 60 + 1024 * n0}')
    for n in range(n0, n1):
        k(f'ds_write_b128 {c.aHw}, {H[n]} offset:{HC + 64 + 1024 * n}')
    v.put(*U.values(), *H[n0:n1])
    if n1 == 4:
        v.put(P, c.aHw)


def p2_afrags(k, c, p, nfill):
    for r in range(16):
        a = R('a', 4 * (16 * p + r), 4)
        for h in range(2):
            k(f'ds_read_b64 {a[2 * h:2 * h + 2]}, {c.aHr} offset:{64 * (16 * p + r) + 8 * h}')
        if r % 4 == 3:
            fill(k, c, nfill)


def fill(k, c, n):
    while c.fill and n > 0:
        it = c.fill.pop(0)
        k.items.append(it)
        if it[0] == 'i':
            n -= 2 if it[1].is_trans else 1


def p2_xloads(k, c):
    s, v = k.s, k.v
    c.Ul = [v.get(4) for _ in range(4)]
    c.Zl = v.get(8)
    c.G = v.get(4)
    ul = lambda n: f'global_load_dwordx4 {c.Ul[n]}, {c.aUg[n >> 1]}, {c.pws} offset:{-4096 + 4096 * (n & 1)}{SC}'
    k(ul(0))
    if c.o.get('u1', 0) != 2:
        k(ul(1))
    k('s_mov_b64 exec, 0xffff')
    k(f'global_load_dwordx4 {c.SP[0:4]}, {c.aSP[0]}, {c.pws}{SC}')
    k(f'global_load_dwordx4 {c.SP[4:8]}, {c.aSP[1]}, {c.pws}{SC}')
    k('s_mov_b64 exec, -1')
    if c.zdma:
        k(f'global_load_lds_dwordx4 {c.aZg}, {c.pws}{SC}')
        k(f'global_load_lds_dwordx4 {c.aZg}, {c.pws} offset:1024{SC}')
        k.mark('zd')
        v.put(c.aZg)
    else:
        k(f'buffer_load_dwordx4 {c.Zl[0:4]}, {c.aZ0}, {c.srdws}, 0 offen{SC}')
        k(f'buffer_load_dwordx4 {c.Zl[4:8]}, {c.aZ1}, {c.srdws}, 0 offen offset:1024{SC}')
        v.put(c.aZ0, c.aZ1)
    if c.o.get('u1', 0) == 2:
        k(ul(1))
    late = [ul(2), ul(3), f'global_load_dwordx4 {c.G}, {c.aG}, {c.pws}{SC}']
    if c.o.get('gfirst', 1):
        late = late[2:] + late[:2]
    if c.o.get('qx0'):
        late += [c.qld(c.qdone)]
        c.qdone += 1
    n = c.o.get('xl', 1)
    for x in late[:n]:
        k(x)
    c.late = late[n:]
    v.put(c.aUg[0], c.aSP)


def page_jump(k, c):
    if c.o.get('page', True):
        lab = k.label('page')
        k(f's_branch {lab}')
        k.raw('.p2align 12')
        k.raw(f'{lab}:')


def p2_main(k, c):
    s, v = k.s, k.v
    o = c.o
    Zl, SP, Ul, G, qn, Ci = c.Zl, c.SP, c.Ul, c.G, c.qn, c.Ci
    uw = lambda n: f'ds_write_b128 {c.aUw}, {Ul[n]} offset:{L_U + 256 + 256 * n}'
    rd = lambda dst, q, r: f'ds_read_b128 {dst}, {c.aB} offset:{L_U + 16 + 256 * q + 16 * (15 - r)}'
    u1 = o.get('u1', 0)
    k(uw(0))
    if not u1:
        k(uw(1))
    lg = o.get('lg', [8, 10])
    if not lg:
        for x in c.late:
            k(x)
        v.put(c.aUg[1], c.aG)
    if c.zdma == 2:
        k.waitfor(vm='zd')
    k('s_waitcnt lgkmcnt(0)')
    k('s_barrier')
    stamp(k, c, 'ubar')
    v.put(Ul[0])
    B0 = [v.get(4) for _ in range(16)]
    B1 = [v.get(4) for _ in range(15)] + [Ul[1]]
    Di = [v.get(4) for _ in range(4)]
    acc = [v.get(4) for _ in range(2)]
    ya = v.get(4)
    t = ya
    gq = c.Fa
    Bf = [Zl[0:4], Zl[4:8]]
    ring2 = ([Ul[2], Ul[3], Zl[0:4], Zl[4:8]] + Di + [SP[0:4], SP[4:8]])[:o.get('r2', 8)]
    ring3 = ([Ul[2], Ul[3], Zl[0:4], Zl[4:8]] + Di + [SP[0:4], SP[4:8]])[:4 + o.get('r3', 4)]
    Y = Ci
    NPRE = o.get('npre', 6)
    for r in range(NPRE):
        k(rd(B0[r], 0, r))
    A = lambda p, r: R('a', 4 * (16 * p + r), 4)
    fr = [Zl[0:2], Zl[4:6], Zl[2:4], Zl[6:8]]
    mf = []
    seen = set()
    def add(cc, a, b, tag=None):
        if any(str(b) == str(x) for x in B0[16 - o.get('skipd', [0] * 4)[cc]:]):
            return
        d = acc[cc & 1]
        mf.append((cc, tag, f'v_mfma_f32_16x16x32_bf16 {d}, {a}, {b}, {d if cc in seen else 0}'))
        seen.add(cc)
    streams = []
    def addstream(cc, p, q, r, reg):
        streams.append((q, r, reg))
        add(cc, A(p, r), reg, ('s', len(streams) - 1))
        if r == 0 and p == 0 and not c.dfold:
            add(cc, c.AD, reg, ('s', len(streams) - 1))
    if not c.dfold:
        add(0, c.AD, B0[0])
    for r in range(16):
        add(0, A(0, r), B0[r])
    for r in range(16):
        add(1, A(1, r), B0[r])
    if not c.dfold:
        add(1, c.AD, B1[0])
    for r in range(16):
        add(1, A(0, r), B1[r])
    d2 = o.get('d2', 26)
    res2 = [(p, r) for r in range(16) for p in (2, 1)]
    for p, r in res2[:d2]:
        add(2, A(p, r), (B0 if p == 2 else B1)[r])
    res2 = res2[d2:]
    for r in range(16):
        addstream(2, 0, 2, r, ring2[r % len(ring2)])
        for p, r_ in res2[len(res2) * r // 16:len(res2) * (r + 1) // 16]:
            add(2, A(p, r_), (B0 if p == 2 else B1)[r_])
    n3 = len(ring3)
    n2 = len(ring2)
    order3 = ring3[n2:] + [ring2[(16 + i) % n2] for i in range(n2)]
    d3 = o.get('d3', 8)
    res3 = [(p, r) for r in range(16) for p in (3, 2)]
    if o.get('a3s') is not None:
        res3 = [(p, r) for p in (2, 3) for r in range(16)]
    for p, r in res3[:d3]:
        add(3, A(p, r), (B0 if p == 3 else B1)[r])
    res3 = res3[d3:]
    for i in range(32):
        addstream(3, 1 - (i & 1), 2 + (i & 1), i >> 1, order3[i % n3])
        for p, r_ in res3[len(res3) * i // 32:len(res3) * (i + 1) // 32]:
            add(3, A(p, r_), (B0 if p == 3 else B1)[r_])
    def epi(cc):
        e2 = [f'ds_read2st64_b32 {ya[0:2]}, {c.aYAr} offset0:{20 * cc} offset1:{20 * cc + 5}',
              f'ds_read2st64_b32 {ya[2:4]}, {c.aYAr} offset0:{20 * cc + 10} offset1:{20 * cc + 15}']
        e3 = [f'v_fma_f32 {ya[w]}, {gq[w]}, {ya[w]}, {Y[w][cc]}' for w in range(4)]
        ob = qn[2 * cc:2 * cc + 2]
        e3 += [f'v_cvt_pk_bf16_f32 {ob[h]}, {ya[2 * h]}, {ya[2 * h + 1]}' for h in range(2)]
        e4 = [f'buffer_store_dwordx2 {ob}, {c.aO1}, {c.srdo}, {c.po[cc - 1] if cc else 0} offen{o.get("om", "")}']
        return e2, e3, e4

    def pre(cc):
        o1 = []
        for h in range(2):
            o1.append(f'v_lshlrev_b32 {gq[2 * h]}, 16, {qn[2 * cc + h]}')
            o1.append(f'v_and_b32 {gq[2 * h + 1]}, {c.mhi}, {qn[2 * cc + h]}')
        o1 += [f'v_mul_f32 {gq[w]}, {G[cc]}, {gq[w]}' for w in range(4)]
        o2 = [f'v_fma_f32 {Y[w][cc]}, -{G[cc]}, {Y[w][cc]}, {Y[w][cc]}' for w in range(4)]
        return o1, o2
    zs = o.get('zs', 18)
    LW, LR = o.get('lw', 5), o.get('lr', 6)
    sa = zs + 3
    npk = o.get('npk', 4)
    sta = []
    for jj in range(4):
        sta.append((-1, ('a', jj), f'v_mfma_f32_16x16x16_bf16 {Di[jj]}, {fr[jj]}, {c.Fai}, 0'))
        sta.append((-1, ('a', jj), f'v_mfma_f32_16x16x16_bf16 {Ci[jj]}, {fr[jj]}, {c.Far}, {Ci[jj]}'))
    mf[sa:sa] = sta
    base_mf = list(mf)
    Bf4 = [Zl[0:4], Zl[4:8], SP[0:4], SP[4:8]]
    sb = [sa + 12 + 3 * jj for jj in range(4)]
    yaw = lambda cc: [f'ds_write_b32 {c.aYAw}, {acc[cc & 1][i]} offset:{L_YA + YAP * cc + YAI * i}' + (f'@ya{cc}' if i == 3 else '')
                      for i in range(4)]
    while True:
        mf = list(base_mf)
        for jj in range(4):
            mf.insert(sb[jj], (-1, ('b', jj), f'v_mfma_f32_16x16x32_bf16 {Y[jj]}, {c.Fb}, {Bf4[jj]}, 0'))
        st = Stream([m[2] for m in mf])
        pos = lambda tag: [i for i, m in enumerate(mf) if m[1] == tag]
        last = {cc: max(i for i, m in enumerate(mf) if m[0] == cc) for cc in range(4)}
        if c.zdma:
            zr = zs - o.get('zlr', 6)
            if c.zdma == 1:
                st.vmw[zr - 2] = 'zd'
                st.sca[zr - 1].append('s_barrier')
            st.place(zr - 1, [f'ds_read_b128 {Zl[0:4]}, {c.aZ0} offset:{L_Z}', f'ds_read_b128 {Zl[4:8]}, {c.aZ1} offset:{L_Z + 1024}'])
        g = st.place(0, [rd(B0[r], 0, r) for r in range(NPRE, 16)])
        if u1:
            g = st.place(max(g + 1, o.get('u1g', 0)), [uw(1) + '@u1'])
            g = st.barrier_after(g + LW - 1, 'u1') - 1
        g = st.place(g + 1, [rd(B1[r], 1, r) for r in range(16)])
        gw_ = 0
        ufirst = o.get('ufirst', npk < 4)
        if ufirst:
            g = st.place(g + 1, [uw(2)])
            g = st.place(g + 1, [uw(3) + '@uw'])
            gu = st.barrier_after(g + LW, 'uw')
        for jj in range(4):
            gw_ = st.place(pos(('b', jj))[0] + 3, [f'ds_write_b128 {c.aYBw}, {Y[jj]} offset:{L_YB + 1088 * jj}' + ('@yb' if jj == 3 else '')])
        g0 = st.place(max(g + 1, last[0] + 4), yaw(0))
        gpt = st.place(pos(('b', 0))[0] + 3, [f'ds_write2_b32 {c.aYBp}, {Y[0][3]}, {Y[0][0]} offset0:0 offset1:1',
                                               f'ds_write2_b32 {c.aYBp}, {Y[0][1]}, {Y[0][2]} offset0:2 offset1:3@yp'])
        lastw = max((gw_, 'yb'), (g0, 'ya0'), (gpt, 'yp'))[1]
        g0 = max(g0, gpt - 1)
        gb = st.barrier_after(max(gw_ + LW, g0 + LW, gu + 1 if ufirst else 0), lastw)
        e2g = st.place(gb, epi(0)[0])
        gy = st.place(e2g + 1, [f'ds_read_b128 {Y[w]}, {c.aYBr} offset:{L_YB - 16 + 4 * 1088 * w}' for w in range(4)])
        if not ufirst:
            g = st.place(gy + o.get('ud', 1), [uw(2)])
            g = st.place(g + 1, [uw(3) + '@uw'])
            gu = st.barrier_after(g + LW, 'uw')
        erd = {}
        if o.get('eprio', 1):
            for cc in (1, 2):
                gx = st.place(last[cc] + 3, yaw(cc)) + LW - 1
                while st.lgw[gx] or st.sca[gx] or st.sca[gx + 1] or st.lgw[gx + 1]:
                    gx += 1
                erd[cc] = st.place(st.barrier_after(gx, f'ya{cc}'), epi(cc)[0])
        prev_use, leads = {}, []
        for si, (q, r, reg) in enumerate(streams):
            p_ = pos(('s', si))
            lo = prev_use.get(str(reg), None)
            if lo is None:
                lo = max(gu, p_[0] - 12)
                for jj in range(4):
                    if str(reg) in (str(Di[jj]), str(Bf4[jj])):
                        lo = max(lo, pos(('b', jj))[0])
            gg = st.place(lo, [rd(reg, q, r)])
            assert gg < p_[0] - 2, (si, gg, p_)
            leads.append(p_[0] - gg)
            prev_use[str(reg)] = p_[-1]
        if o.get('a3s') is not None:
            g = o['a3s']
            for r in range(16):
                a = A(3, r)
                g = st.place(g, [f'ds_read_b64 {a[2 * h:2 * h + 2]}, {c.aHr} offset:{64 * (48 + r) + 8 * h}' for h in range(2)])
                use = next(i for i, m in enumerate(mf) if f', {a},' in m[2])
                assert g < use - 4, (r, g, use)
        if lg:
            for g_, x in zip(lg, c.late):
                st.place(g_, [x])
        if c.qx:
            st.place(o.get('qg', [14])[0], [f'global_load_dwordx4 {qn[4 * h:4 * h + 4]}, {c.aQg}, {c.pws} offset:{16 * h}{SC}' for h in range(2)], per_gap=1)
        else:
            for n_, cc in enumerate(range(c.qdone, 4)):
                st.place(o.get('qg', [20, 44, 56])[n_], [c.qld(cc)])
        pre_a = [f'v_perm_b32 {SP[i]}, {SP[i]}, {SP[i]}, {c.psel}' for i in range(8)]
        pre_a += [f'v_fma_f32 {Ci[jj][0]}, {SP[4 + jj]}, {c.sgn}, {SP[jj]}' for jj in range(4)]
        assert st.place(max(0, zs - o.get('pa', 16)), pre_a) < zs
        st.place(zs, [f'v_swap_b32 {Zl[1]}, {Zl[4]}', f'v_swap_b32 {Zl[3]}, {Zl[6]}'], per_gap=1)
        gblk = sa + 7 + o.get('blkd', 1)
        g = gblk + 1
        ok = True
        for jj in range(4):
            a, b = Ci[jj], Di[jj]
            if jj < npk:
                st.blk[gblk] += [x[1].text for x in k.capture(cmul_tw, k, a, b, c.tw2c, c.tw2s, t)]
            else:
                tw = []
                for h in (0, 2):
                    for i in (h, h + 1):
                        tw.append(f'v_mul_f32 {t[i & 1]}, {b[i]}, {c.tw2s[i]}')
                        tw.append(f'v_mul_f32 {b[i]}, {b[i]}, {c.tw2c[i]}')
                    for i in (h, h + 1):
                        tw.append(f'v_fma_f32 {b[i]}, -{a[i]}, {c.tw2s[i]}, {b[i]}')
                        tw.append(f'v_fma_f32 {a[i]}, {a[i]}, {c.tw2c[i]}, {t[i & 1]}')
                g = st.place(g, tw)
            cv = [f'v_cvt_pk_bf16_f32 {Bf4[jj][2 + h]}, {b[2 * h]}, {b[2 * h + 1]}' for h in range(2)]
            cv += [f'v_cvt_pk_bf16_f32 {Bf4[jj][h]}, {a[2 * h]}, {a[2 * h + 1]}' for h in range(2)]
            g = st.place(g, cv)
            if not g < pos(('b', jj))[0] - 1:
                for j2 in range(jj, 4):
                    sb[j2] += 1
                ok = False
                break
        if ok:
            break
    sys.stderr.write(f'sb {sb} yBbar {gb} ubar {gu} leads {"".join(str(min(x, 9)) for x in leads)}\n')
    gt = g
    if not erd:
        g1 = st.place(last[1] + 4, yaw(1))
        gx = g1 + 3
        while st.lgw[gx] or st.sca[gx] or st.sca[gx + 1] or st.lgw[gx + 1]:
            gx += 1
        gb1 = st.barrier_after(gx, 'ya1')

    gp = g + 1
    gfree = max(gu, gt + 1)
    for cc in range(4):
        o1, o2 = pre(cc)
        gp = st.place(gp, o1)
        if cc == 0:
            e2, e3, e4 = epi(0)
            assert e2g > gt
            g = e2g
            gp = st.place(max(g + LR, gp), [f'v_mul_f32 {ya[w]}, {gq[w]}, {ya[w]}' for w in range(4)] + [f'v_sub_f32 {G[0]}, 1.0, {G[0]}'])
            g = st.place(max(gp, gy + LR - 1), [f'v_fmac_f32 {ya[w]}, {G[0]}, {Y[w][0]}' for w in range(4)] + e3[4:])
            gfree = g + 1
            g = st.place(g + 1, e4)
            sys.stderr.write(f'store {cc} at gap {g} of {len(mf)}\n')
            gp += 1
            continue
        gp = st.place(max(gp, gy + LR), o2)
        if cc < 3:
            e2, e3, e4 = epi(cc)
            if erd:
                g = erd[cc]
                assert g - 1 >= gfree, (cc, g, gfree)
            else:
                if cc == 1:
                    gfree = max(gfree, gb1)
                if cc == 2:
                    g2 = st.place(last[2] + 4, yaw(2))
                    gfree = max(gfree, st.barrier_after(g2 + 3, 'ya2'))
                g = st.place(gfree, e2)
            g = st.place(max(g + LR, gp), e3)
            gfree = g + 1
            gp = g + 1
            g = st.place(g + 1, e4)
            sys.stderr.write(f'store {cc} at gap {g} of {len(mf)}\n')
    if o.get('w2', 1):
        st.place(last[2] + 12, [f'v_add_u32 {c.aYBw}, {L_YA + YAP * 3}, {c.aYAw}'])
    for cc, g in enumerate(o.get('fl', [])):
        st.place(g, [f'buffer_store_dwordx2 {qn[2 * cc:2 * cc + 2]}, {c.aOf}, {c.srdo}, {c.po[cc - 1] if cc else 0} offen{o.get("flm", SC)}'])
    assert not st.tail
    for nm in (c.stamps or []):
        if nm[0] == 'g' and nm[1:].isdigit():
            st.blk[int(nm[1:])] += [x[1].text for x in k.capture(stamp, k, c, nm)]
    for pat in c.drop:
        st.vec = [[x for x in g_ if not x.startswith(pat) or '@' in x] for g_ in st.vec]
        st.sca = [[x for x in g_ if not x.startswith(pat)] for g_ in st.sca]
    st.emit(k)
    stamp(k, c, 'conv')
    if o.get('w2', 1):
        for h in range(2):
            k(f'ds_write2_b32 {c.aYBw}, {acc[1][2 * h]}, {acc[1][2 * h + 1]} offset0:{YAI // 2 * h} offset1:{YAI // 2 * h + YAI // 4}')
    else:
        for x in yaw(3):
            k(x.split('@')[0])
    k('s_waitcnt lgkmcnt(0)')
    k('s_barrier')
    e2, e3, e4 = epi(3)
    for ins in e2 + e3 + e4:
        k(ins)


def sync_go(k, c):
    s, v = k.s, k.v
    k(f's_lshl2_add_u32 {c.t0}, {c.w}, s2')
    k(f's_cmp_ge_u32 {c.t0}, 4')
    lab = k.begin_skip('s_cbranch_scc1', 'nogo')
    a, o = v.get(), v.get()
    k(f's_lshl_b32 {c.t0}, s2, 6')
    k(f'v_lshl_add_u32 {a}, {c.n}, 2, {c.t0}')
    k(f'v_mov_b32 {o}, 1')
    k('s_mov_b64 exec, 0xffff')
    k(f'global_store_dword {a}, {o}, {c.pdbg}{SC} ; untracked')
    k('s_mov_b64 exec, -1')
    v.put(a, o)
    k.end_skip(lab)


def sync_pre(k, c):
    s, v = k.s, k.v
    c.go, c.ago = v.get(), v.get()
    k(f'v_lshlrev_b32 {c.ago}, 6, {c.g}')
    k(f'global_load_dword {c.go}, {c.ago}, {c.pdbg}{SC}')


def sync_addrs(k, c):
    s, v = k.s, k.v
    m = s.get(2)
    c.aat, c.apoll, c.one = (v.get() for _ in range(3))
    k(f's_and_b32 {c.t0}, {c.j if c.o.get("mix", 1) else "s2"}, {NL - 1}')
    k(f's_lshl_b32 {c.t0}, {c.t0}, 7')
    k(f's_add_u32 {c.t0}, {c.t0}, {COFF}')
    k(f'v_cmp_gt_u32 {m}, {c.nrep}, v0')
    k(f'v_lshl_add_u32 {c.aat}, v0, 11, {c.t0}')
    k(f's_and_b32 {c.t0}, {c.x}, {c.nrep - 1}')
    k(f's_lshl_b32 {c.t0}, {c.t0}, 11')
    k(f's_add_u32 {c.t0}, {c.t0}, {COFF}')
    k(f'v_cndmask_b32 {c.aat}, 2.0, {c.aat}, {m}')
    k(f'v_lshl_add_u32 {c.apoll}, {c.n}, 7, {c.t0}')
    k(f'v_mov_b32 {c.one}, 1')
    s.put(m)


def sync_arrive(k, c):
    s, v = k.s, k.v
    if c.stamps and 'sack' in c.stamps:
        k.waitfor(vm='stores')
        stamp(k, c, 'sack')
    k.waitfor(c.go, vm='stores')
    stamp(k, c, 'ack')
    k(f'v_cmp_eq_u32 vcc, 0, {c.go}')
    k(f's_mov_b32 {c.t1}, 0')
    lab = k.begin_skip('s_cbranch_vccz', 'gook')
    lp = k.loop_label('gospin')
    k(f'global_load_dword {c.go}, {c.ago}, {c.pdbg}{SC}')
    k(f's_add_u32 {c.t1}, {c.t1}, 1')
    k(f's_lshr_b32 {c.t2}, {c.t1}, 20')
    k('s_waitcnt vmcnt(0)')
    k(f'v_or_b32 {c.go}, {c.t2}, {c.go}')
    k(f'v_cmp_eq_u32 vcc, 0, {c.go}')
    k(f's_cbranch_vccnz {lp}')
    k.end_skip(lab)
    if c.o.get('w0', 0):
        k(f's_cmp_lg_u32 {c.w}, 0')
        k('s_barrier')
        lab = k.begin_skip('s_cbranch_scc1', 'notw0')
        k(f'buffer_atomic_add {c.one}, {c.aat}, {c.srdws}, 0 offen{SC} ; untracked')
        k.end_skip(lab)
    else:
        k('s_barrier')
        k(f'buffer_atomic_add {c.one}, {c.aat}, {c.srdws}, 0 offen{SC}')
    v.put(c.ago, c.aat, c.one)


def sync_poll(k, c):
    k(f's_cmp_lg_u32 {c.w}, 0')
    lab = k.begin_skip('s_cbranch_scc1', 'nopoll0')
    k('s_mov_b64 exec, 0xffff')
    k(f'global_load_dword {c.go}, {c.apoll}, {c.pws}{SC} ; untracked')
    k('s_mov_b64 exec, -1')
    k.end_skip(lab)


def sync_wait(k, c):
    s, v = k.s, k.v
    d = c.go
    k(f's_cmp_lg_u32 {c.w}, 0')
    lab0 = k.begin_skip('s_cbranch_scc1', 'nopoll')
    k('s_mov_b64 exec, 0xffff')
    k(f's_mov_b32 {c.t1}, 0')
    k(f's_mov_b32 {c.t2}, {256 // NL}')
    k.raw(f'    s_waitcnt vmcnt({c.after_poll})')
    lp = k.loop_label('poll')
    k(f'v_cmp_gt_u32 vcc, {c.t2}, {d}')
    k('s_nop 1')
    k('s_and_b64 exec, exec, vcc')
    lab = k.begin_skip('s_cbranch_scc0', 'done')
    k(f'global_load_dword {d}, {c.apoll}, {c.pws}{SC} ; untracked')
    k(f's_add_u32 {c.t1}, {c.t1}, 1')
    k(f's_cmp_lt_u32 {c.t1}, 0x100000')
    k(f's_cselect_b32 {c.t2}, {256 // NL}, 0')
    k('s_waitcnt vmcnt(0)')
    k(f's_branch {lp}')
    k.end_skip(lab)
    k('s_mov_b64 exec, -1')
    k.end_skip(lab0)
    k('s_barrier')
    v.put(c.apoll, d)


def kern(opts):
    k = Kern(NAME + '_kernel')
    c = Ctx()
    c.stamps = opts.get('stamps', None)
    c.stretch = opts.get('stretch', None)
    c.clk = 's_memtime' if opts.get('cyc') else 's_memrealtime'
    k.c = c
    c.drop = opts.get('drop', [])
    c.o = opts
    c.ne = opts.get('ne', 2)
    c.nrep = NREP
    c.zlate = opts.get('zlate', 1)
    c.zdma = opts.get('zdma', 0)
    c.dfold = opts.get('dfold', 1)
    c.qx = opts.get('qx', 0)
    c.zt10 = opts.get('zt10', 0)
    c.ut0 = opts.get('ut0', 0)
    setup(k, c)
    c.mhi = k.s.get()
    k.hold()
    C = k.capture(load_addrs, k, c) + k.capture(consts_b, k, c) + k.capture(x_addrs, k, c)
    C += k.capture(store_addrs, k, c) + k.capture(consts_a, k, c)
    npre, d0 = opts.get('npre0', 40), opts.get('delay', 85)
    k.items += C[:npre]
    first_loads(k, c)
    hp = opts.get('hpos', 'end')
    Lh = [('i', I(x)) for x in c.Lh]
    if hp == 'q':
        hd = opts.get('hd', 20)
        k.items += C[npre:npre + hd]
        k.interleave(C[npre + hd:npre + d0], Lh, opts.get('hev', 8))
    else:
        dp = opts.get('dp', 0) if opts.get('pf') else 0
        k.items += C[npre:npre + dp]
        if opts.get('pf'):
            line_prefetch(k, c)
        k.interleave(C[npre + dp:npre + d0], [('i', I(x)) for x in c.Lq], 12)
    stamp(k, c, 'd0')
    if hp == 'k':
        c.loads = Lh + c.loads
    if hp == 'v':
        c.loads = c.loads[:12] + Lh + c.loads[12:]
    if hp == 'e':
        c.loads = c.loads + Lh
    k.interleave(C[npre + d0:], c.loads, opts.get('every', 2))
    k(f's_mov_b32 {c.mhi}, 0xffff0000')
    if hp == 'end':
        k.items += Lh
    k.release()
    k.s.put(c.srdk)
    parts = [p2_hpre, sync_addrs, out_addrs, p2_addrs, p2_consts]
    ne_ = opts.get('early', 2)
    for fn in parts[:ne_]:
        fn(k, c)
    stamp(k, c, 'ca')
    if opts.get('j1'):
        page_jump(k, c)
    p1_dft(k, c)
    stamp(k, c, 'dft1')
    c.Pv = k.v.get(4, 1)
    c.fill = []
    if opts.get('hs1') == 1:
        p2_hstage(k, c, 0, c.ne)
    p1_kv(k, c)
    stamp(k, c, 'kv')
    stamp(k, c, 'p_ack', 's_waitcnt vmcnt(0)')
    sync_pre(k, c)
    c.qn = k.v.get(8)
    if ne_ < 1:
        p2_hpre(k, c)
    sv = c.t0, c.t1
    c.t0, c.t1 = k.s.get(), k.s.get()
    k.hold()
    cap = lambda i: k.capture(parts[i], k, c) if i >= ne_ else []
    c.fill = cap(1) + cap(2)
    nfirst = len(c.fill)
    c.fill += cap(3) + k.capture(p2_zeros, k, c)
    nw = len(c.fill)
    c.fill += cap(4) + k.capture(p2_dfrag, k, c)
    ntot = len(c.fill)
    heldv, helds = k.v.held, k.s.held
    k.v.held = k.s.held = None
    c.t0, c.t1 = sv
    prog = opts.get('prog', 'hL0faP1qfqHp2w3')
    what = dict(h='stage the first filter quarters (two dword-shifted copies in LDS)', H='stage the remaining filter quarters',
                L='load the remaining filter quarters', a='arrive at the grid barrier once every store is acknowledged',
                P='pull the q tile into the L2', q='q values of one output pass', p='first barrier poll',
                w='wait for the grid barrier, load kv columns / spectrum / gate')
    for ch in prog:
        if ch in what:
            k.comment('---- ' + what[ch])
        elif ch.isdigit():
            k.comment(f'---- Toeplitz fragments of filter quarter {ch} into AGPRs (+ address / constant setup)')
        if ch in 'aq':
            while ntot - len(c.fill) < nfirst:
                fill(k, c, 1)
        if ch == 'h':
            p2_hstage(k, c, 0, c.ne)
        elif ch == 'H':
            p2_hstage(k, c, c.ne, 4)
        elif ch == 'L':
            for x in c.Lh2:
                k(x)
        elif ch.isdigit():
            p2_afrags(k, c, int(ch), opts.get('nfill', 8))
        elif ch == 'f':
            fill(k, c, 16)
        elif ch == 'F':
            fill(k, c, 10000)
        elif ch == 'a':
            stamp(k, c, 'shadow')
            sync_arrive(k, c)
            stamp(k, c, 'arr')
        elif ch == 'P':
            q_prefetch(k, c)
        elif ch == 'q':
            narrow_q(k, c, 1)
        elif ch == 'p':
            sync_poll(k, c)
            c.poll_at = len(k.items)
        elif ch == 'w':
            while ntot - len(c.fill) < nw:
                fill(k, c, 1)
            c.after_poll = sum(1 for it in k.items[c.poll_at:] if it[0] == 'i' and it[1].is_vm)
            stamp(k, c, 'af')
            sync_wait(k, c)
            stamp(k, c, 'sync')
            p2_xloads(k, c)
    fill(k, c, 10000)
    k.v.put(*heldv, c.ah)
    if opts.get('a3s') is None:
        k.v.put(c.aHr)
    k.s.put(*helds)
    if hasattr(c, 'qpf'):
        k.v.put(c.qpf)
    k.v.put(c.l, c.l16, c.n, c.g)
    if opts.get('j2', 1):
        page_jump(k, c)
    stamp(k, c, 'xiss')
    stamp(k, c, 'p_x', 's_waitcnt vmcnt(0)')
    p2_main(k, c)
    stamp(k, c, 'epi')
    stamp(k, c, 'end', 's_waitcnt vmcnt(0)')
    stamps_out(k, c)
    k.raw(f'{c.end}:')
    k('s_endpgm')
    return k


HEADER = open('cdna_kernels/%s.s.ref' % NAME).read().split('; Override launch')[0]


DESC = '''; One persistent launch, 256 workgroups (one per CU), one grid barrier. Generated by the author's own script.
;   x~[s,d] = q[s,d] + q[-s,-d]; radix-8 sequence step and the 512-point hidden DFT as two MFMA stages -> Z (channels 0..259),
;   gate g = sigmoid(q . gate_w), u = shortconv(k) * v transposed into per-channel chunks.
; Phase 2 (workgroup = 4 channels x rows of one parity, wave = channel):
;   long causal convolution as Toeplitz(h, with ssm_D folded into h[0]) x u MFMAs, 16x16 sequence DFT of Z
; Hand-off: sc1 stores, vmcnt, workgroup barrier, atomic adds to counters in d_ws that workgroups 0..3 zero first
; (published through d_debug); sc1 polls and loads. Nothing depends on XCD placement or on earlier contents of d_ws.'''

WIDENABLE = ('v_add_f32', 'v_mul_f32', 'v_and_b32', 'v_lshlrev_b32', 'v_xor_b32', 'v_mov_b32', 'v_add_u32', 'v_sub_f32',
             'v_lshrrev_b32', 'v_rcp_f32', 'v_exp_f32', 'v_sin_f32', 'v_cos_f32', 'v_cvt_f32_u32', 'v_fmac_f32')


def align_runs(body, minrun):
    import subprocess, re
    lines = body.split('\n')
    isins = [i for i, l in enumerate(lines) if l.startswith('    ') and not l.strip().startswith((';', '.'))]
    src = '.amdgcn_target "amdgcn-amd-amdhsa--gfx950"\n.text\n' + '\n'.join(l for l in lines if not l.startswith('.p2align')) + '\n'
    open('_al.s', 'w').write(src)
    subprocess.check_call('clang -x assembler -target amdgcn-amd-amdhsa -mcpu=gfx950 -c _al.s -o _al.o', shell=True)
    dis = subprocess.check_output('llvm-objdump -d --mcpu=gfx950 _al.o', shell=True, text=True)
    size = [4 * len(m.group(1).split()) for m in re.finditer(r'// [0-9A-F]{12}: ([0-9A-F ]+)', dis)]
    assert len(size) == len(isins), (len(size), len(isins))
    ph, lo, n, fixed = 0, 0, 0, 0
    prev_line = -1
    page_at = None
    while n < len(isins):
        if any(lines[x].startswith('.p2align') for x in range(prev_line + 1, isins[n])):
            ph, lo = 0, n
            page_at = max(x for x in range(prev_line + 1, isins[n]) if lines[x].startswith('.p2align'))
        e = n
        while e < len(isins) and size[e] == 8 and not lines[isins[e]].strip().startswith(('v_mfma', 'ds_read_b64 a')):
            e += 1
        if e - n >= minrun:
            if ph:
                for b in range(n - 1, lo - 1, -1):
                    mn = lines[isins[b]].split()[0]
                    if size[b] == 4 and mn in WIDENABLE:
                        lines[isins[b]] = lines[isins[b]].replace(mn, mn + '_e64', 1)
                        ph = 0
                        fixed += 1
                        break
                if ph and page_at is not None:
                    lines[page_at] += '\n.fill 1, 4, 0xbf800000'
                    ph = 0
                    fixed += 1
            lo = e
            page_at = None
        if e == n:
            ph = (ph + size[n]) % 8
            e = n + 1
        prev_line = isins[e - 1]
        n = e
    sys.stderr.write(f'aligned {fixed} runs\n')
    return '\n'.join(lines)


def build(opts):
    k = kern(opts)
    abl = opts.get('abl', '')
    if abl:
        c = k.c
        def drop(it):
            if it[0] != 'i':
                return False
            t = it[1].text
            if 'q' in abl and (t.startswith('buffer_load_dwordx2') or (t.startswith('global_load_dword ') and str(c.pq) in t)):
                return True
            if 'h' in abl and t.startswith('global_load_dwordx4') and str(c.ph) in t:
                return True
            if 'z' in abl and t in c.ztxt:
                return True
            if 'y' in abl and t == c.ztxt[1]:
                return True
            if 'u' in abl and t.startswith('global_store_dwordx4') and 'offset' in t:
                return True
            if 'b' in abl and t.startswith('s_branch') and 'poll' in t:
                return True
            if 'o' in abl and t.startswith('buffer_store_dwordx2') and ', 0 offen' not in t:
                return True
            if 'a' in abl and t.startswith('ds_read_b64 a'):
                return True
            if 'm' in abl and t.startswith('v_mfma') and ', a[' in t and int(t.split(', a[')[1].split(':')[0]) % 8 == 4:
                return True
            return False
        k.items = [it for it in k.items if not drop(it)]
    body = k.finalize()
    if opts.get('al', 8):
        body = align_runs(body, opts.get('al', 8))
    sys.stderr.write(f'{k.stats} vhi={k.v.hi_water} shi={k.s.hi_water}\n')
    out = [HEADER.rstrip('\n'), f'; @launch grid=(256,1,1) block=(256,1,1) lds={LDS_BYTES}',
           DESC, '.amdgcn_target "amdgcn-amd-amdhsa--gfx950"', '.text',
           *(['; unreachable padding: puts the entry point at the start of a 4 KiB page (instruction prefetch stops at page ends)', '.p2align 12', f'.fill {(4096 - 768 + opts.get("entry", 0)) % 4096 // 4}, 4, 0xbf800000'] if opts.get('page', True) else []),
           f'.globl {k.name}', '.p2align 8', f'.type {k.name},@function', f'{k.name}:', body,
           '.section .rodata,"a"', '.p2align 6', f'.amdhsa_kernel {k.name}',
           '  .amdhsa_next_free_vgpr 512', '  .amdhsa_next_free_sgpr 102', '  .amdhsa_accum_offset 256',
           '  .amdhsa_group_segment_fixed_size 0', '  .amdhsa_kernarg_size 120', '  .amdhsa_user_sgpr_count 2',
           '  .amdhsa_user_sgpr_kernarg_segment_ptr 1', '  .amdhsa_system_sgpr_workgroup_id_x 1',
           '  .amdhsa_float_denorm_mode_32 3', '.end_amdhsa_kernel']
    return '\n'.join(out) + '\n'


if __name__ == '__main__':
    opts = {}
    for a in sys.argv[2:]:
        kk, vv = a.split('=', 1)
        opts[kk] = eval(vv)
    open(sys.argv[1], 'w').write(build(opts))
```
